```python
import torch

def _softmax(x, axis=-1):
    return torch.softmax(x, dim=axis)

def _gelu(x):
    return torch.nn.functional.gelu(x, approximate='tanh')

def _silu(x):
    return torch.nn.functional.silu(x)

def _sigmoid(x):
    return torch.sigmoid(x)

def _layernorm(x, axis=-1, eps=1e-05):
    m = x.mean(dim=axis, keepdim=True)
    v = x.var(dim=axis, keepdim=True, unbiased=False)
    return (x - m) / torch.sqrt(v + eps)

def _scatter_add(tgt, idx, src, axis=0):
    return tgt.clone().index_add_(axis, idx, src)

def _segment_sum(src, seg, n):
    out = torch.zeros((n,) + src.shape[1:], dtype=src.dtype)
    return out.index_add_(0, seg, src)

def _pad(x, pw):
    flat = tuple((v for pair in reversed(pw) for v in pair))
    return torch.nn.functional.pad(x, flat)
kernel_name = 'gated_mix__memory_aug_recurrent_mem_tr__softmax_full_mha__prompt'

def setup_inputs():

    _w = lambda a: (lambda t: t.to(torch.bfloat16) if t.is_floating_point() else t)(torch.as_tensor(a))

    def _A_setup():
        B, S, Dm = (1, 2048, 512)
        H, Dh = (32, 128)
        M, seg = (8, 32)
        seg = min(seg, S)
        S = S // seg * seg
        return {'x': _w((lambda *s: torch.randn(*s, dtype=torch.bfloat16) * 0.05)(B, S, Dm)), 'mem0': _w((lambda *s: torch.randn(*s, dtype=torch.bfloat16) * 0.8)(B, M, Dm)), 'Wq': _w((lambda *s: torch.randn(*s, dtype=torch.bfloat16) * 1.6)(Dm, H, Dh) * Dm ** (-0.5)), 'Wk': _w((lambda *s: torch.randn(*s, dtype=torch.bfloat16) * 1.6)(Dm, H, Dh) * Dm ** (-0.5)), 'Wv': _w((lambda *s: torch.randn(*s, dtype=torch.bfloat16) * 0.8)(Dm, H, Dh) * Dm ** (-0.5)), 'Wo': _w((lambda *s: torch.randn(*s, dtype=torch.bfloat16) * 0.8)(H, Dh, Dm) * (H * Dh) ** (-0.5)), 'seg_len': seg}
    _A_in = _A_setup()

    def _B_setup():
        B, S, D = (1, 2048, 512)
        return {'x': _w((lambda *s: torch.randn(*s, dtype=torch.bfloat16) * 0.05)(B, S, D)), 'wqkv': _w((lambda *s: torch.randn(*s, dtype=torch.bfloat16) * 0.8)(D, 3 * D)), 'wo': _w((lambda *s: torch.randn(*s, dtype=torch.bfloat16) * 0.05)(D, D))}
    _B_in = _B_setup()
    return {'A_x': _A_in['x'], 'A_mem0': _A_in['mem0'], 'A_Wq': _A_in['Wq'], 'A_Wk': _A_in['Wk'], 'A_Wv': _A_in['Wv'], 'A_Wo': _A_in['Wo'], 'A_seg_len': _A_in['seg_len'], 'B_x': _B_in['x'], 'B_wqkv': _B_in['wqkv'], 'B_wo': _B_in['wo'], 'gate_w': _w((lambda *s: torch.randn(*s, dtype=torch.bfloat16) * 0.05)(512) * 16.0)}

def reference(A_x, A_mem0, A_Wq, A_Wk, A_Wv, A_Wo, A_seg_len, B_x, B_wqkv, B_wo, gate_w):

    def _A_ref(x, mem0, Wq, Wk, Wv, Wo, seg_len):
        B, S, Dm = x.shape
        H, Dh = (Wq.shape[1], Wq.shape[2])
        M = mem0.shape[1]
        scale = Dh ** (-0.5)
        n_seg = S // seg_len
        L = M + seg_len
        idx = torch.arange(L)
        mask = (idx[:, None] < M) | (idx[:, None] >= idx[None, :])
        mem = mem0
        outs = []
        for s in range(n_seg):
            xs = x[:, s * seg_len:(s + 1) * seg_len, :].clone()
            h = torch.concatenate([mem, xs], axis=1)
            q = torch.einsum('btd,dhe->bhte', h, Wq)
            k = torch.einsum('btd,dhe->bhte', h, Wk)
            v = torch.einsum('btd,dhe->bhte', h, Wv)
            scores = torch.einsum('bhqe,bhke->bhqk', q, k) * scale
            scores = torch.where(mask[None, None], scores, -1000000000.0)
            p = _softmax(scores, axis=-1)
            o = torch.einsum('bhqk,bhke->bhqe', p, v)
            o = torch.einsum('bhte,hed->btd', o, Wo)
            mem = o[:, :M, :].clone()
            outs.append(o[:, M:, :])
        return torch.concatenate(outs, axis=1)

    def _B_ref(x, wqkv, wo):
        B, S, D = x.shape
        H = 32
        Dh = D // H
        qkv = (lambda x, *d: x.permute(*d))((x @ wqkv).reshape(B, S, 3, H, Dh), 2, 0, 3, 1, 4)
        q, k, v = (qkv[0], qkv[1], qkv[2])
        scale = Dh ** (-0.5)
        scores = torch.einsum('bhqd,bhkd->bhqk', q, k) * scale
        p = _softmax(scores, axis=-1)
        o = torch.einsum('bhqk,bhkd->bhqd', p, v)
        return (lambda x, *d: x.permute(*d))(o, 0, 2, 1, 3).reshape(B, S, D) @ wo
    x = A_x
    g = _sigmoid((x * gate_w).sum(-1, keepdims=True))
    a = _A_ref(x, A_mem0, A_Wq, A_Wk, A_Wv, A_Wo, A_seg_len)
    b = _B_ref(x, B_wqkv, B_wo)
    return g * a + (1 - g) * b
```

```python
import re

REG_RE = re.compile(r'\b([vas])(\d+)\b|\b([vas])\[(\d+):(\d+)\]|\b(vcc_lo|vcc_hi|vcc|exec_lo|exec_hi|exec|m0)\b')

def R(kind, base, n=1):
    if n == 1:
        return f"{kind}{base}"
    return f"{kind}[{base}:{base+n-1}]"
def V(b, n=1): return R('v', b, n)
def A(b, n=1): return R('a', b, n)
def S(b, n=1): return R('s', b, n)

def regs_of(op):
    out = set()
    for m in REG_RE.finditer(op):
        if m.group(1):
            out.add((m.group(1), int(m.group(2))))
        elif m.group(3):
            for i in range(int(m.group(4)), int(m.group(5)) + 1):
                out.add((m.group(3), i))
        else:
            t = m.group(6)
            if t == 'vcc': out |= {('vcc', 0), ('vcc', 1)}
            elif t == 'vcc_lo': out.add(('vcc', 0))
            elif t == 'vcc_hi': out.add(('vcc', 1))
            elif t == 'exec': out |= {('exec', 0), ('exec', 1)}
            elif t == 'exec_lo': out.add(('exec', 0))
            elif t == 'exec_hi': out.add(('exec', 1))
            else: out.add(('m0', 0))
    return out

def split_ops(s):
    ops, depth, cur = [], 0, ''
    for ch in s:
        if ch in '[(': depth += 1
        if ch in '])': depth -= 1
        if ch == ',' and depth == 0:
            ops.append(cur.strip()); cur = ''
        else:
            cur += ch
    if cur.strip(): ops.append(cur.strip())
    return ops

TRANS = ('v_exp_f32', 'v_log_f32', 'v_rcp_f32', 'v_rsq_f32', 'v_sqrt_f32', 'v_sin_f32', 'v_cos_f32', 'v_rcp_iflag_f32')

class Ins:
    def __init__(self, text):
        self.text = text
        code = text.split(';')[0].strip()
        parts = code.split(None, 1)
        self.mn = mn = parts[0]
        rest = parts[1] if len(parts) > 1 else ''
        ops = split_ops(rest)
        self.mods = ''
        if ops:
            last = ops[-1]
            depth = 0
            for i, ch in enumerate(last):
                if ch in '[(': depth += 1
                if ch in '])': depth -= 1
                if ch == ' ' and depth == 0:
                    self.mods = last[i:]
                    ops[-1] = last[:i]
                    break
        self.ops = ops
        self.kind = 'other'
        self.w = set(); self.r = set()
        self.srcC = set(); self.srcAB = set(); self.passes = 0
        self.states = 1
        self.target = None
        self.store_data = set()
        rs = [regs_of(o) for o in ops]
        def U(l):
            s = set()
            for x in l: s |= x
            return s
        if mn.startswith('v_mfma') or mn.startswith('v_smfmac'):
            self.kind = 'mfma'
            self.w = rs[0]
            if mn.startswith('v_smfmac'):
                self.srcC = rs[0]; self.srcAB = U(rs[1:4])
            else:
                self.srcC = rs[3]; self.srcAB = U(rs[1:3])
            self.r = self.srcC | self.srcAB
            if '32x32' in mn: self.passes = 8
            elif '16x16' in mn: self.passes = 4
            else: raise ValueError(mn)
            assert '_f32_' in mn and ('bf16' in mn or 'f16' in mn), mn
        elif mn.startswith('v_'):
            self.kind = 'valu'
            if mn.startswith('v_cmpx'): raise ValueError('no cmpx')
            if mn.startswith('v_permlane') and 'swap' in mn:
                self.w = rs[0] | rs[1]; self.r = rs[0] | rs[1]
            elif re.match(r'v_(add|sub|subrev)_co_u32', mn) or re.match(r'v_(addc|subb)_co_u32', mn):
                self.w = rs[0] | rs[1]; self.r = U(rs[2:])
            elif mn == 'v_nop':
                pass
            else:
                self.w = rs[0]; self.r = U(rs[1:])
                if mn.startswith('v_fmac') or mn.startswith('v_pk_fmac') or mn.startswith('v_dot2c') or mn.startswith('v_writelane'):
                    self.r |= rs[0]
                if mn.startswith('v_cndmask') and len(ops) == 3:
                    self.r |= {('vcc', 0), ('vcc', 1)}
            self.dpp = bool(re.search(r'row_|quad_perm|wave_|_dpp', code))
            if self.dpp: self.r |= rs[0]
            self.trans = any(mn.startswith(t) for t in TRANS)
            self.perml = mn.startswith('v_permlane')
            self.rdlane = mn.startswith('v_readlane') or mn.startswith('v_readfirstlane')
        elif mn.startswith('buffer_') or mn.startswith('global_'):
            self.kind = 'vmem'
            self.ldsdma = (' lds' in self.mods + ' ') or mn.startswith('global_load_lds')
            if mn in ('buffer_wbl2', 'buffer_inv'):
                pass
            elif 'load' in mn and not self.ldsdma:
                self.w = rs[0]; self.r = U(rs[1:])
                if 'd16' in mn: self.r |= rs[0]
            elif 'atomic' in mn:
                if mn.startswith('global_') and len(ops) == 4:
                    self.w = rs[0]; self.r = U(rs[1:])
                elif mn.startswith('buffer_') and 'sc0' in self.mods:
                    self.w = rs[0]; self.r = U(rs)
                else:
                    self.r = U(rs)
            else:
                self.r = U(rs)
                if 'store' in mn and ('x4' in mn or 'x3' in mn):
                    self.store_data = rs[0] if mn.startswith('buffer_') else rs[1]
            if self.ldsdma: self.r.add(('m0', 0))
        elif mn.startswith('ds_'):
            self.kind = 'ds'
            if mn.startswith('ds_read') or mn.startswith('ds_bpermute') or mn.startswith('ds_permute') or mn.startswith('ds_swizzle') or '_rtn' in mn:
                self.w = rs[0]; self.r = U(rs[1:])
            else:
                self.r = U(rs)
        elif mn.startswith('s_'):
            self.kind = 'salu'
            if mn == 's_nop':
                self.states = int(ops[0], 0) + 1
            elif mn.startswith('s_cbranch') or mn == 's_branch':
                self.kind = 'branch'; self.target = ops[0]
            elif mn.startswith('s_cmp') or mn.startswith('s_bitcmp') or mn in ('s_waitcnt', 's_barrier', 's_endpgm', 's_sleep', 's_setprio'):
                self.r = U(rs)
            else:
                self.w = rs[0] if rs else set(); self.r = U(rs[1:])
                if 'saveexec' in mn: self.w |= {('exec', 0), ('exec', 1)}
        else:
            raise ValueError("unknown instr: " + text)

def is_vec(r): return r[0] in ('v', 'a')
def is_sca(r): return r[0] in ('s', 'vcc')

def required(p, c):
    n = 0
    if p.kind == 'mfma':
        big = {4: 8, 8: 12}[p.passes]
        if c.kind == 'mfma':
            if p.w & c.srcAB: n = max(n, big)
            if p.w & c.srcC:
                if p.w == c.srcC and p.passes == c.passes: pass
                else: n = max(n, big - 2)
            elif p.w & c.w:
                n = max(n, big - 2)
        elif c.kind in ('valu', 'vmem', 'ds'):
            if p.w & (c.r | c.w): n = max(n, big)
        if c.kind == 'valu' and (p.srcC & c.w):
            n = max(n, {4: 3, 8: 7}[p.passes])
    elif p.kind == 'valu':
        pv = {r for r in p.w if is_vec(r)}
        ps = {r for r in p.w if is_sca(r)}
        if c.kind == 'mfma' and pv & c.r: n = max(n, 2)
        if c.kind == 'vmem' and ps & c.r: n = max(n, 5)
        if c.kind == 'valu':
            if ps & c.r: n = max(n, 4 if (c.rdlane or c.mn.startswith('v_writelane')) else 2)
            if pv & c.r:
                if c.dpp or c.perml: n = max(n, 2)
                if c.rdlane: n = max(n, 1)
                if p.trans and not c.trans: n = max(n, 1)
    elif p.kind == 'vmem':
        if p.store_data & c.w:
            n = max(n, 2 if c.kind == 'valu' else 1)
    elif p.kind == 'salu':
        if ('m0', 0) in p.w and c.kind in ('vmem', 'ds') and ('m0', 0) in c.r: n = max(n, 1)
    return n

MAXD = 12

class Asm:
    def __init__(self):
        self.items = []
        self.uid = 0
    def __call__(self, text):
        for line in text.split('\n'):
            t = line.strip()
            if not t: continue
            if t.startswith(';'):
                self.items.append(('raw', '    ' + t)); continue
            if t.endswith(':'):
                self.items.append(('label', t[:-1])); continue
            if t.startswith('.'):
                self.items.append(('raw', t)); continue
            self.items.append(Ins(t))
    def label(self, n): self.items.append(('label', n))
    def raw(self, t): self.items.append(('raw', t))
    def newlabel(self, p='L'):
        self.uid += 1
        return f"{p}_{self.uid}"
    def finalize(self, verbose=False):
        items = self.items
        ins_idx = [i for i, x in enumerate(items) if isinstance(x, Ins)]
        pos = {i: k for k, i in enumerate(ins_idx)}
        ins = [items[i] for i in ins_idx]
        lab = {}
        k = 0
        for i, x in enumerate(items):
            if isinstance(x, Ins): k = pos[i] + 1
            elif x[0] == 'label': lab[x[1]] = k
        preds = [[] for _ in ins]
        for k, x in enumerate(ins):
            if k + 1 < len(ins) and x.mn not in ('s_branch', 's_endpgm'):
                preds[k + 1].append(k)
            if x.kind == 'branch':
                t = lab[x.target]
                if t < len(ins): preds[t].append(k)
        pad = [0] * len(ins)
        total = 0
        for k, c in enumerate(ins):
            need = 0
            seen = {}
            stack = [(p, 0) for p in preds[k]]
            while stack:
                p, d = stack.pop()
                if p in seen and seen[p] <= d: continue
                seen[p] = d
                req = required(ins[p], c)
                if req > d: need = max(need, req - d)
                nd = d + ins[p].states + pad[p]
                if nd < MAXD:
                    for q in preds[p]: stack.append((q, nd))
            pad[k] = need
            total += need
        out = []
        for i, x in enumerate(items):
            if isinstance(x, Ins):
                n = pad[pos[i]]
                while n > 0:
                    m = min(n, 16)
                    out.append(f"    s_nop {m-1}")
                    n -= m
                out.append("    " + x.text)
            elif x[0] == 'label': out.append(x[1] + ":")
            else: out.append(x[1])
        if verbose: print("inserted wait states:", total)
        return "\n".join(out) + "\n"

def kernel_desc(name, vgpr=512, sgpr=102, accum=256):
    return f""".p2align 6
.amdhsa_kernel {name}
  .amdhsa_next_free_vgpr {vgpr}
  .amdhsa_next_free_sgpr {sgpr}
  .amdhsa_accum_offset {accum}
  .amdhsa_group_segment_fixed_size 0
  .amdhsa_kernarg_size 112
  .amdhsa_user_sgpr_count 2
  .amdhsa_user_sgpr_kernarg_segment_ptr 1
  .amdhsa_system_sgpr_workgroup_id_x 1
.end_amdhsa_kernel
"""
```

```python
MB = 1 << 20
QXB  = 0
KXB  = 16 * MB
VXB  = 32 * MB
M2B  = 48 * MB
P1B  = 49 * MB
KVMB = 96 * MB
QBB  = 62 * MB
KBB  = 64 * MB
VBB  = 66 * MB
GB   = 68 * MB
OXB  = 70 * MB
MGB  = 90 * MB
PROFB = 92 * MB
MDBG = 93 * MB
WIMG = 112 * MB
WS_BYTES = 268435456
D_REC, D_P, D_O, D_SEG, D_KV = 8, 9, 10, 16, 32
```

```python
from asm import *
from layout import *
import struct, math

def f32bits(x): return struct.unpack('<I', struct.pack('<f', x))[0]

XROW = 1040
XBUF = 32 * XROW
sWS = 4
sXS = 8
sWT = 12
sCB, sR, sW, sStr, sWoff, sOut, sOstep, sOp, sOt, sScale, sI, sBuf, sXoff, sTmp, sTmp2, sM, sDb, sOcur = range(16, 34)
vLane, vXr, vXa, vOut, vT0, vT1, vT2, vL16 = range(8)
ACC = [8, 40]
FR = 72
PK = 104
vOc = 120
NFR = 8
AHEAD = 6

def proj_setup(a, sArg):
    L = a.newlabel("PJ")
    a(f"s_load_dwordx2 {S(sXS,2)}, {S(sArg,2)}, 0")
    a(f"s_mov_b32 {S(sXS+2)}, {2048*1024}")
    a(f"s_mov_b32 {S(sXS+3)}, 0x20000")
    a(f"s_mov_b32 {S(sWT+3)}, 0x20000")
    a(f"s_mov_b32 {S(sScale)}, 1.0")
    a(f"s_and_b32 {S(sTmp)}, {S(sW)}, 1")
    a(f"s_lshr_b32 {S(sTmp2)}, {S(sW)}, 1")
    a(f"s_cmp_ge_u32 {S(sCB)}, 48")
    a(f"s_cbranch_scc1 {L}_B")
    a(f"s_mov_b32 {S(sStr)}, 8192")
    a(f"s_mov_b32 {S(sWT+2)}, {512*8192}")
    a(f"s_mov_b32 {S(sOstep)}, {4*32*8192}")
    a(f"s_mov_b32 {S(sOp)}, 512")
    a(f"s_cmp_ge_u32 {S(sCB)}, 32")
    a(f"s_cbranch_scc1 {L}_Q")
    a(f"s_mov_b32 {S(sI)}, {S(sCB)}")
    a(f"s_cmp_eq_u32 {S(sTmp2)}, 0")
    a(f"s_cbranch_scc0 {L}_V")
    a(f"s_load_dwordx2 {S(sWT,2)}, {S(sArg,2)}, 24")
    a(f"s_mov_b32 {S(sOut)}, {KXB}")
    a(f"s_branch {L}_KQ")
    a(f"{L}_Q:")
    a(f"s_load_dwordx2 {S(sWT,2)}, {S(sArg,2)}, 16")
    a(f"s_sub_u32 {S(sI)}, {S(sCB)}, 32")
    a(f"s_lshl_b32 {S(sI)}, {S(sI)}, 1")
    a(f"s_add_u32 {S(sI)}, {S(sI)}, {S(sTmp2)}")
    a(f"s_mov_b32 {S(sOut)}, {QXB}")
    a(f"{L}_KQ:")
    a(f"s_mov_b32 {S(sM)}, 0")
    a(f"s_mov_b32 {S(sOt)}, 1024")
    a(f"s_lshl_b32 {S(sBuf)}, {S(sTmp)}, 11")
    a(f"s_branch {L}_A")
    a(f"{L}_V:")
    a(f"s_load_dwordx2 {S(sWT,2)}, {S(sArg,2)}, 32")
    a(f"s_mov_b32 {S(sOut)}, {VXB}")
    a(f"s_mov_b32 {S(sM)}, 1")
    a(f"s_mov_b32 {S(sOt)}, 2048")
    a(f"s_lshl_b32 {S(sBuf)}, {S(sTmp)}, 12")
    a(f"{L}_A:")
    a(f"s_add_u32 {S(sOut)}, {S(sOut)}, {S(sBuf)}")
    a(f"s_lshl_b32 {S(sBuf)}, {S(sI)}, 13")
    a(f"s_add_u32 {S(sOut)}, {S(sOut)}, {S(sBuf)}")
    a(f"s_lshl_b32 {S(sBuf)}, {S(sR)}, 18")
    a(f"s_add_u32 {S(sOut)}, {S(sOut)}, {S(sBuf)}")
    a(f"s_lshl_b32 {S(sWoff)}, {S(sI)}, 8")
    a(f"s_lshl_b32 {S(sTmp)}, {S(sTmp)}, 7")
    a(f"s_add_u32 {S(sWoff)}, {S(sWoff)}, {S(sTmp)}")
    a(f"s_branch {L}_done")
    a(f"{L}_B:")
    a(f"s_load_dwordx2 {S(sWT,2)}, {S(sArg,2)}, 64")
    a(f"s_mov_b32 {S(sStr)}, 3072")
    a(f"s_mov_b32 {S(sWT+2)}, {512*3072}")
    a(f"s_mov_b32 {S(sOstep)}, 4096")
    a(f"s_mov_b32 {S(sOt)}, {2*65536}")
    a(f"s_sub_u32 {S(sI)}, {S(sCB)}, 48")
    a(f"s_lshl_b32 {S(sI)}, {S(sI)}, 2")
    a(f"s_add_u32 {S(sI)}, {S(sI)}, {S(sW)}")
    a(f"s_lshl_b32 {S(sWoff)}, {S(sI)}, 7")
    a(f"s_lshl_b32 {S(sOut)}, {S(sI)}, 18")
    a(f"s_add_u32 {S(sOut)}, {S(sOut)}, {QBB}")
    a(f"s_lshl_b32 {S(sBuf)}, {S(sR)}, 10")
    a(f"s_add_u32 {S(sOut)}, {S(sOut)}, {S(sBuf)}")
    a(f"s_mov_b32 {S(sM)}, 2")
    a(f"s_mov_b32 {S(sOp)}, 65536")
    a(f"s_cmp_lt_u32 {S(sI)}, 8")
    a(f"s_cselect_b32 {S(sScale)}, {f32bits(0.25 * math.log2(math.e)):#x}, 1.0")
    a(f"s_cmp_lt_u32 {S(sI)}, 16")
    a(f"s_cbranch_scc1 {L}_done")
    a(f"s_mov_b32 {S(sM)}, 3")
    a(f"s_mov_b32 {S(sOp)}, 512")
    a(f"{L}_done:")
    a("s_waitcnt lgkmcnt(0)")

def proj_load_weights(a):
    a(f"v_lshrrev_b32 {V(vT0)}, 3, {V(vLane)}")
    a(f"v_mul_lo_u32 {V(vT0)}, {V(vT0)}, {S(sStr)}")
    a(f"v_and_b32 {V(vT1)}, 7, {V(vLane)}")
    a(f"v_lshl_add_u32 {V(vT0)}, {V(vT1)}, 4, {V(vT0)}")
    a(f"v_add_u32 {V(vT0)}, {S(sWoff)}, {V(vT0)}")
    a(f"s_mul_i32 {S(sBuf)}, {S(sW)}, 40960")
    a(f"v_lshrrev_b32 {V(vT1)}, 5, {V(vLane)}")
    a(f"v_lshlrev_b32 {V(vT1)}, 10, {V(vT1)}")
    a(f"v_bfe_u32 {V(vT2)}, {V(vLane)}, 2, 2")
    a(f"v_lshl_add_u32 {V(vT1)}, {V(vT2)}, 7, {V(vT1)}")
    a(f"v_bfe_u32 {V(vT2)}, {V(vLane)}, 4, 1")
    a(f"v_lshl_add_u32 {V(vT1)}, {V(vT2)}, 5, {V(vT1)}")
    a(f"v_and_b32 {V(vT2)}, 3, {V(vLane)}")
    a(f"v_lshl_add_u32 {V(vT1)}, {V(vT2)}, 3, {V(vT1)}")
    a(f"v_add_u32 {V(vT1)}, {S(sBuf)}, {V(vT1)}")
    a(f"s_lshl_b32 {S(sTmp2)}, {S(sStr)}, 3")
    a(f"s_mov_b32 {S(sTmp)}, 0")
    def dma(qr):
        for j in range(16):
            a(f"s_add_u32 m0, {S(sBuf)}, {(qr % 2) * 16384 + j * 1024}")
            a(f"buffer_load_dwordx4 {V(vT0)}, {S(sWT,4)}, {S(sTmp)} offen lds")
            a(f"s_add_u32 {S(sTmp)}, {S(sTmp)}, {S(sTmp2)}")
    def rd(qr):
        for k8 in range(8):
            kk = qr * 8 + k8
            for T in range(2):
                for hf in range(2):
                    a(f"ds_read_b64_tr_b16 {A((T*32+kk)*4 + 2*hf, 2)}, {V(vT1)} offset:{(qr%2)*16384 + k8*2048 + hf*512 + T*64}")
    dma(0); dma(1)
    a("s_waitcnt vmcnt(16)"); rd(0); a("s_waitcnt lgkmcnt(0)")
    dma(2)
    a("s_waitcnt vmcnt(16)"); rd(1); a("s_waitcnt lgkmcnt(0)")
    dma(3)
    a("s_waitcnt vmcnt(16)"); rd(2)
    a("s_waitcnt vmcnt(0)"); rd(3); a("s_waitcnt lgkmcnt(0)")

def xdma(buf_sgpr):
    ops = []
    for j in range(8):
        if j % 4 == 0:
            ops.append(f"s_add_u32 {S(sTmp2)}, {S(sXoff)}, {j*1024}")
        ops.append(f"s_add_u32 m0, {S(buf_sgpr)}, {j*XROW - (j%4)*1024}")
        ops.append(f"buffer_load_dwordx4 {V(vL16)}, {S(sXS,4)}, {S(sTmp2)} offen offset:{(j%4)*1024} lds")
    return ops

def proj_main(a, typ, st='', hook=None):
    L = a.newlabel(f"PM{typ}")
    trans = typ in (0, 2)
    def mf(acc, T, kk, fr, first):
        wreg = A((T*32+kk)*4, 4); x = V(fr, 4)
        d = V(acc + 16*T, 16)
        c = "0" if first else d
        return f"v_mfma_f32_32x32x16_bf16 {d}, {wreg}, {x}, {c}" if trans else f"v_mfma_f32_32x32x16_bf16 {d}, {x}, {wreg}, {c}"
    def epilogue(acc):
        ops = []
        for T in range(2):
            b = acc + 16 * T
            if typ == 2:
                ops += [f"v_mul_f32 {V(b+i)}, {S(sScale)}, {V(b+i)}" for i in range(16)]
            for q in range(2):
                d = PK + 8 * T + 4 * q
                if typ == 0: prs = [(4*q + x, 4*(q+2) + x) for x in range(4)]
                elif typ == 1: prs = [(4*q, 4*q+1), (4*q+2, 4*q+3), (4*q+8, 4*q+9), (4*q+10, 4*q+11)]
                else: prs = [(8*q + 2*x, 8*q + 2*x + 1) for x in range(4)]
                ops += [f"v_cvt_pk_bf16_f32 {V(d+i)}, {V(b+p0)}, {V(b+p1)}" for i, (p0, p1) in enumerate(prs)]
                if (T, q) == (0, 0): ops.append(f"s_mov_b32 {S(sTmp)}, {S(sOut)}")
                elif q == 1: ops.append(f"s_add_u32 {S(sTmp)}, {S(sTmp)}, {S(sOp)}")
                else: ops.append(f"s_add_u32 {S(sTmp)}, {S(sOut)}, {S(sOt)}")
                ops.append(f"buffer_store_dwordx4 {V(d,4)}, {V(vOc)}, {S(sWS,4)}, {S(sTmp)} offen {st}")
        ops.append(f"s_add_u32 {S(sOut)}, {S(sOut)}, {S(sOcur)}")
        ops.append(f"s_mov_b32 {S(sOcur)}, {S(sOstep)}")
        ops.append(f"v_mov_b32 {V(vOc)}, {V(vOut)}")
        return ops
    n16 = {0: 4096, 1: 1024, 2: 256, 3: 65536}[typ]
    hs = {0: 256, 1: 256, 2: 512, 3: 256}[typ]
    a(f"v_bfe_u32 {V(vT0)}, {V(vLane)}, 4, 1")
    a(f"v_mul_u32_u24 {V(vOut)}, {n16}, {V(vT0)}")
    a(f"v_lshrrev_b32 {V(vT0)}, 5, {V(vLane)}")
    a(f"v_mul_u32_u24 {V(vT0)}, {hs}, {V(vT0)}")
    a(f"v_add_u32 {V(vOut)}, {V(vOut)}, {V(vT0)}")
    a(f"v_and_b32 {V(vT0)}, 15, {V(vLane)}")
    a(f"v_lshl_add_u32 {V(vOut)}, {V(vT0)}, 4, {V(vOut)}")
    def rdf(kk): return f"ds_read_b128 {V(FR + 4*(kk % NFR), 4)}, {V(vXa)} offset:{32*(kk % 32)}"
    a(f"v_mov_b32 {V(vOc)}, 0x40000000")
    a(f"s_mov_b32 {S(sOcur)}, 0")
    a("s_waitcnt vmcnt(8)")
    a("s_barrier")
    a(f"v_mov_b32 {V(vXa)}, {V(vXr)}")
    for kk in range(AHEAD): a(rdf(kk))
    a(f"s_mov_b32 {S(sI)}, 0")
    a(f"s_mov_b32 {S(sBuf)}, 0")
    def tile(par):
        acc = ACC[par]
        fill = [f"s_add_u32 {S(sXoff)}, {S(sXoff)}, {4*32*1024}",
                f"s_add_u32 {S(sDb)}, {S(sDb)}, {XBUF}",
                f"s_cmp_ge_u32 {S(sDb)}, {4*XBUF}",
                f"s_cselect_b32 {S(sTmp)}, {4*XBUF}, 0",
                f"s_sub_u32 {S(sDb)}, {S(sDb)}, {S(sTmp)}"] + xdma(sDb) + epilogue(ACC[1 - par])
        per = 2
        for kk in range(32):
            a(f"s_waitcnt lgkmcnt({AHEAD-1})")
            a(mf(acc, 0, kk, FR + 4*(kk % NFR), kk == 0))
            for _ in range(per):
                if fill: a(fill.pop(0))
            a(mf(acc, 1, kk, FR + 4*(kk % NFR), kk == 0))
            if kk + AHEAD == 32:
                assert not fill
                a(f"s_add_u32 {S(sBuf)}, {S(sBuf)}, {XBUF}")
                a(f"s_cmp_ge_u32 {S(sBuf)}, {4*XBUF}")
                a(f"s_cselect_b32 {S(sBuf)}, 0, {S(sBuf)}")
                a(f"v_add_u32 {V(vXa)}, {S(sBuf)}, {V(vXr)}")
                a("s_waitcnt vmcnt(12)")
                a("s_barrier")
                if hook: hook(a, par, typ)
            a(rdf(kk + AHEAD))
            for _ in range(per):
                if fill: a(fill.pop(0))
    a(f"{L}_loop:")
    tile(0); tile(1)
    a(f"s_add_u32 {S(sI)}, {S(sI)}, 2")
    a(f"s_cmp_lt_u32 {S(sI)}, 16")
    a(f"s_cbranch_scc1 {L}_loop")
    for x in epilogue(ACC[1]): a(x)
    a("s_waitcnt vmcnt(0) lgkmcnt(0)")

def proj_start(a):
    a(f"v_lshlrev_b32 {V(vL16)}, 4, {V(vLane)}")
    a(f"v_and_b32 {V(vT0)}, 31, {V(vLane)}")
    a(f"v_mul_u32_u24 {V(vXr)}, {XROW}, {V(vT0)}")
    a(f"v_lshrrev_b32 {V(vT0)}, 5, {V(vLane)}")
    a(f"v_lshl_add_u32 {V(vXr)}, {V(vT0)}, 4, {V(vXr)}")
    a(f"s_lshl_b32 {S(sXoff)}, {S(sR)}, 15")
    a(f"s_lshl_b32 {S(sTmp)}, {S(sW)}, 13")
    a(f"s_add_u32 {S(sXoff)}, {S(sXoff)}, {S(sTmp)}")
    a(f"s_mul_i32 {S(sDb)}, {S(sW)}, {8*XROW}")
    a("s_barrier")
    for x in xdma(sDb): a(x)
    a(f"s_add_u32 {S(sXoff)}, {S(sXoff)}, {4*32*1024}")
    a(f"s_add_u32 {S(sDb)}, {S(sDb)}, {XBUF}")
    for x in xdma(sDb): a(x)

def proj_role(a, sArg, st='', hook=None, pre=None):
    L = a.newlabel("PR")
    proj_setup(a, sArg)
    proj_load_weights(a)
    if pre: pre()
    proj_start(a)
    for t in range(1, 4):
        a(f"s_cmp_eq_u32 {S(sM)}, {t}")
        a(f"s_cbranch_scc1 {L}_t{t}")
    for t in range(4):
        a(f"{L}_t{t}:")
        proj_main(a, t, st, hook)
        if t < 3: a(f"s_branch {L}_end")
    a(f"{L}_end:")
```

```python
from asm import *
import math

from layout import *

L_M, L_KX, L_Q, L_K, L_O, L_W = 0, 8192, 16384, 18688, 20992, 24576
RS = 288
WREG = 17 * 2048

vL16, vIdx, vWl, vQKw, vQKr, vP1st, vM2st, vWarm = range(8)
vSel = 8
vB0, vB1 = 12, 14
accQ, accK, accV = 16, 24, 32
vVx = 40
RING = [56, 60, 48, 52]
X = 64
RES = 136
sSRD = 4
sH, sS, sM2r, sKX, sVX, sWarm, sP1st, sP1st2, sP1ld, sM2w, sKVM, sSpin, sC, sTmp = range(8, 22)
sPm = 22
DBG_M = False
sT = 24
SPIN_MAX = 1 << 20
NST = 16

NQL = 9
def qidx(w, ks, t): return ((ks - 2 * w) % 8) * 2 + t
def qblk(w, ks, t):
    i = qidx(w, ks, t)
    return V(X + 8 * i, 8) if i < NQL else V(RES + 8 * (i - NQL), 8)
def kblk(ks, t): return A(8 * (ks * 2 + t), 8)
def vblk(ks, t): return A(128 + 8 * (ks * 2 + t), 8)
def oblk(T, ko):
    i = T * 2 + ko
    return V(RES + 56 + 8 * i, 8) if i < 8 else V(X + 8 * (i - 8), 8)

def smf_s(acc, areg, b):
    return f"v_smfmac_f32_16x16x64_bf16 {V(acc,4)}, {V(areg,4)}, {b}, {V(vIdx)}"

STN = [0]
STNAMES = []
def stamp(a, n, prof):
    if prof:
        k = STN[0]; STN[0] += 1
        if len(STNAMES) <= k: STNAMES.append(str(n))
        assert k < NST
        a(f"s_memtime {S(sT + 2*k, 2)}")

def check8(a, r, tmp):
    a(f"v_max3_u32 {V(tmp)}, {V(r)}, {V(r+1)}, {V(r+2)}")
    a(f"v_max3_u32 {V(tmp+1)}, {V(r+3)}, {V(r+4)}, {V(r+5)}")
    a(f"v_max3_u32 {V(tmp)}, {V(tmp)}, {V(r+6)}, {V(r+7)}")
    a(f"v_max_u32 {V(tmp)}, {V(tmp)}, {V(tmp+1)}")
    a(f"v_cmp_eq_u32 vcc, -1, {V(tmp)}")

def poll_issue(a, r, soff):
    a(f"buffer_load_dwordx4 {V(r,4)}, {V(vL16)}, {S(sSRD,4)}, {S(soff)} offen sc1")
    a(f"buffer_load_dwordx4 {V(r+4,4)}, {V(vL16)}, {S(sSRD,4)}, {S(soff)} offen offset:1024 sc1")

def poll_finish(a, name, r, soff, tmp, younger):
    a(f"s_waitcnt vmcnt({younger})")
    check8(a, r, tmp)
    a(f"s_cbranch_vccz {name}_ok")
    a(f"{name}:")
    poll_issue(a, r, soff)
    a(f"s_sub_u32 {S(sSpin)}, {S(sSpin)}, 1")
    a(f"s_cbranch_scc1 {name}_to")
    a(f"s_waitcnt vmcnt(0)")
    check8(a, r, tmp)
    a(f"s_cbranch_vccnz {name}")
    a(f"s_branch {name}_ok")
    a(f"{name}_to:")
    a(f"s_mov_b32 {S(sSpin)}, 0")
    a(f"s_waitcnt vmcnt(0)")
    a(f"{name}_ok:")

def weave(a, main, fill, per=1, start=0):
    fill = list(fill)
    for i, m in enumerate(main):
        a(m)
        if i >= start:
            for _ in range(per):
                if fill: a(fill.pop(0))
    for f in fill: a(f)

def rec_loop(a, w, st, prof=False, sto=''):
    P = f"R{w}{'s' if st else 'f'}"
    STN[0] = 0
    own = [2 * w, 2 * w + 1]
    o = [(2 * w + 2 + i) % 8 for i in range(6)]
    s0, s1, s2, s3 = RING
    def rdm(slot, ks): return f"ds_read_b128 {V(slot,4)}, {V(vL16)} offset:{L_M + ks*1024}"
    def QQ(ks, slot): return [smf_s(accQ, slot, qblk(w, ks, 0)), smf_s(accQ + 4, slot, qblk(w, ks, 1))]
    def KK(ks, slot): return [smf_s(accK, slot, kblk(ks, 0)), smf_s(accK + 4, slot, kblk(ks, 1))]
    def VV(ks, slot): return [smf_s(accV, slot, vblk(ks, 0)), smf_s(accV + 4, slot, vblk(ks, 1))]
    stQ = [f"ds_read_b128 {V(X + 8*i + 4*hf, 4)}, {V(vWl)} offset:{i*2048 + hf*1024}" for i in range(NQL) for hf in range(2)]
    stO = [f"ds_read_b128 {V(X + 8*i + 4*hf, 4)}, {V(vWl)} offset:{(NQL + i)*2048 + hf*1024}" for i in range(8) for hf in range(2)]
    def zero(r, n): return [f"v_mov_b64 {V(r+i,2)}, 0" for i in range(0, n, 2)]
    def kvloads():
        a(f"s_mov_b32 m0, {L_KX + w*2048}")
        a(f"buffer_load_dwordx4 {V(vVx,4)}, {V(vL16)}, {S(sSRD,4)}, {S(sVX)} offen")
        a(f"buffer_load_dwordx4 {V(vL16)}, {S(sSRD,4)}, {S(sKX)} offen lds")
        a(f"buffer_load_dwordx4 {V(vVx+4,4)}, {V(vL16)}, {S(sSRD,4)}, {S(sVX)} offen offset:1024")
        a(f"buffer_load_dwordx4 {V(vL16)}, {S(sSRD,4)}, {S(sKX)} offen offset:1024 lds")
    qf, kxf, kmf = X, X + 16, X + 48
    kvm = X + 64
    tmp = X + 68
    sx1, sx2, sm, pf = accQ, accQ + 4, accK, accK + 4
    oacc, of = 48, 56
    def padd(r): return [f"v_add_f32 {V(r)}, {V(r)}, {V(r+2)}", f"v_add_f32 {V(r+1)}, {V(r+1)}, {V(r+3)}"]
    def cvt(d, x, y): return f"v_cvt_pk_bf16_f32 {V(d)}, {V(x)}, {V(y)}"

    kvloads()
    for x in stQ + zero(accQ, 24): a(x)
    poll_issue(a, s0, sM2r)
    poll_finish(a, f"{P}_p0", s0, sM2r, s2, 0)
    a(f"{P}_top:")
    stamp(a, 'p2ok', prof)
    a(f"ds_write_b128 {V(vL16)}, {V(s0,4)} offset:{L_M + own[0]*1024}")
    a(f"ds_write_b128 {V(vL16)}, {V(s1,4)} offset:{L_M + own[1]*1024}")
    a(f"s_waitcnt lgkmcnt(2)")
    weave(a, QQ(own[0], s0) + QQ(own[1], s1),
          [f"v_lshlrev_b32 {V(vWarm)}, 2, {V(vL16)}",
           f"buffer_load_dword {V(vWarm)}, {V(vWarm)}, {S(sSRD,4)}, {S(sWarm)} offen"])
    stamp(a, 'B1pre', prof)
    a("s_waitcnt vmcnt(1) lgkmcnt(0)")
    a("s_barrier")
    stamp(a, 'B1post', prof)
    kxr = [f"ds_read_b128 {V(kxf+16*tj+4*kk,4)}, {V(vL16)} offset:{L_KX + (tj*4+kk)*1024}" for tj in range(2) for kk in range(4)]
    a(rdm(s2, o[0]))
    k0, v0_ = KK(own[0], s0), VV(own[0], s0)
    a(k0[0]); a(rdm(s3, o[1])); a(k0[1]); a(kxr[0]); a(v0_[0]); a(kxr[1]); a(v0_[1]); a(rdm(s0, o[2]))
    k1, v1_ = KK(own[1], s1), VV(own[1], s1)
    a(k1[0]); a(kxr[2]); a(k1[1]); a(kxr[3]); a(v1_[0]); a(v1_[1]); a(rdm(s1, o[3]))
    a("s_waitcnt lgkmcnt(7)")
    x = QQ(o[0], s2) + KK(o[0], s2)
    a(x[0]); a(x[1]); a(kxr[4]); a(x[2]); a(kxr[5]); a(x[3]); a(rdm(s2, o[4]))
    a("s_waitcnt lgkmcnt(9)")
    x = QQ(o[1], s3) + KK(o[1], s3)
    a(x[0]); a(kxr[6]); a(x[1]); a(kxr[7]); a(x[2]); a(x[3]); a(rdm(s3, o[5]))
    a("s_waitcnt lgkmcnt(9)")
    for y in QQ(o[2], s0) + KK(o[2], s0): a(y)
    a("s_waitcnt lgkmcnt(6)")
    for y in QQ(o[3], s1) + KK(o[3], s1): a(y)
    a("s_waitcnt lgkmcnt(3)")
    for y in QQ(o[4], s2): a(y)
    a("s_waitcnt lgkmcnt(0)")
    for y in QQ(o[5], s3): a(y)
    for y in KK(o[4], s2): a(y)
    qe = padd(accQ) + padd(accQ + 4) + [cvt(accQ+2, accQ, accQ+4), cvt(accQ+3, accQ+1, accQ+5),
          f"ds_write2_b32 {V(vQKw)}, {V(accQ+2)}, {V(accQ+3)} offset0:0 offset1:{RS//4}"]
    ke = padd(accK) + padd(accK + 4) + [cvt(kvm, accK, accK+4), cvt(kvm+1, accK+1, accK+5),
          f"ds_write_b32 {V(vQKw)}, {V(kvm)} offset:{L_K - L_Q}", f"ds_write_b32 {V(vQKw)}, {V(kvm+1)} offset:{L_K - L_Q + RS}"]
    x = KK(o[5], s3)
    a(x[0]); a(x[1])
    vq = VV(o[2], s0) + [None] + VV(o[3], s1) + [None] + VV(o[4], s2) + VV(o[5], s3) + VV(o[0], s0) + VV(o[1], s1)
    a(vq[0]); a(qe[0]); a(qe[1]); a(qe[2]); a(qe[3])
    a(vq[1]); a(rdm(s0, o[0])); a(qe[4]); a(qe[5]); a(qe[6])
    for y in ke[0:4]: a(y)
    a(vq[3])
    for y in ke[4:8]: a(y)
    a(vq[4]); a(rdm(s1, o[1]))
    a(vq[6]); a(vq[7]); a(vq[8])
    stamp(a, 'B2pre', prof)
    a("s_waitcnt lgkmcnt(0)")
    a("s_barrier")
    stamp(a, 'B2post', prof)
    rq = [f"ds_read_b128 {V(qf+4*kk,4)}, {V(vQKr)} offset:{64*kk}" for kk in range(4)]
    rk = [f"ds_read_b128 {V(kmf+4*kk,4)}, {V(vQKr)} offset:{L_K - L_Q + 64*kk}" for kk in range(4)]
    a(rq[0]); a(rq[1]); a(vq[9]); a(rq[2]); a(rq[3]); a(vq[10]); a(rk[0]); a(rk[1]); a(vq[11]); a(rk[2]); a(rk[3])
    def SX(kk, tj):
        d = sx1 if tj == 0 else sx2
        c = "0" if kk == 0 else V(d, 4)
        return f"v_mfma_f32_16x16x32_bf16 {V(d,4)}, {V(kxf+16*tj+4*kk,4)}, {V(qf+4*kk,4)}, {c}"
    def SM(kk):
        c = "0" if kk == 0 else V(sm, 4)
        return f"v_mfma_f32_16x16x32_bf16 {V(sm,4)}, {V(kmf+4*kk,4)}, {V(qf+4*kk,4)}, {c}"
    for kk in range(4):
        a(f"s_waitcnt lgkmcnt({7-kk})")
        a(SX(kk, 0)); a(SX(kk, 1))
    a("s_waitcnt lgkmcnt(0)")
    so_a = stO[4:12]; so_b = stO[0:4] + stO[12:16]
    a(SM(0)); a(so_a[0]); a(so_a[1])
    a(SM(1)); a(so_a[2]); a(so_a[3])
    a(SM(2)); a(f"v_max3_f32 {V(tmp)}, {V(sx1)}, {V(sx1+1)}, {V(sx1+2)}"); a(f"v_max3_f32 {V(tmp+1)}, {V(sx1+3)}, {V(sx2)}, {V(sx2+1)}")
    a(SM(3)); a(f"v_max3_f32 {V(tmp)}, {V(tmp)}, {V(sx2+2)}, {V(sx2+3)}"); a(f"v_max_f32 {V(tmp)}, {V(tmp)}, {V(tmp+1)}")
    a(vq[12]); a(so_a[4]); a(vq[13]); a(so_a[5]); a(so_a[6]); a(so_a[7])
    a(f"buffer_store_dwordx4 {V(kmf+4*w,4)}, {V(vL16)}, {S(sSRD,4)}, {S(sKVM)} offen {sto}")
    stamp(a, 'Sdone', prof)
    a(f"v_max3_f32 {V(tmp)}, {V(tmp)}, {V(sm)}, {V(sm+1)}")
    a(f"v_mov_b32 {V(tmp+1)}, {V(tmp)}")
    a(so_b[0]); a(so_b[1])
    a(f"v_permlane16_swap_b32 {V(tmp)}, {V(tmp+1)}")
    a(f"v_max_f32 {V(tmp)}, {V(tmp)}, {V(tmp+1)}")
    a(f"v_mov_b32 {V(tmp+1)}, {V(tmp)}")
    a(so_b[2]); a(so_b[3])
    a(f"v_permlane32_swap_b32 {V(tmp)}, {V(tmp+1)}")
    a(f"v_max_f32 {V(tmp)}, {V(tmp)}, {V(tmp+1)}")
    a(f"v_mul_f32 {V(tmp)}, {S(sC)}, {V(tmp)}")
    ev = [sx1, sx1+1, sx1+2, sx1+3, sx2, sx2+1, sx2+2, sx2+3, sm, sm+1]
    for r in ev[:8]: a(f"v_fma_f32 {V(r)}, {V(r)}, {S(sC)}, -{V(tmp)}")
    for r in ev[:8]: a(f"v_exp_f32 {V(r)}, {V(r)}")
    for r in ev[8:]: a(f"v_fma_f32 {V(r)}, {V(r)}, {S(sC)}, -{V(tmp)}")
    for i in range(4): a(cvt(pf+i, ev[2*i], ev[2*i+1]))
    for r in ev[8:]: a(f"v_exp_f32 {V(r)}, {V(r)}")
    stamp(a, 'smx', prof)
    a(f"v_mfma_f32_16x16x32_bf16 {V(oacc,4)}, {V(vVx,4)}, {V(pf,4)}, 0")
    a(cvt(vB0, sm, sm+1)); a(cvt(vB1+1, sm, sm+1))
    a(f"v_mfma_f32_16x16x32_bf16 {V(oacc+4,4)}, {V(vVx+4,4)}, {V(pf,4)}, 0")
    for y in padd(accV) + padd(accV + 4): a(y)
    a(cvt(kvm+2, accV, accV+1)); a(cvt(kvm+3, accV+4, accV+5))
    a(f"v_add_f32 {V(sx1)}, {V(sx1)}, {V(sx1+1)}")
    a(f"v_add_f32 {V(sx1+2)}, {V(sx1+2)}, {V(sx1+3)}")
    a(f"v_mfma_f32_16x16x16_bf16 {V(oacc,4)}, {V(kvm+2,2)}, {V(vB0,2)}, {V(oacc,4)}")
    a(f"v_add_f32 {V(sx2)}, {V(sx2)}, {V(sx2+1)}")
    a(f"v_add_f32 {V(sx2+2)}, {V(sx2+2)}, {V(sx2+3)}")
    a(f"v_mfma_f32_16x16x16_bf16 {V(oacc+4,4)}, {V(kvm+2,2)}, {V(vB1,2)}, {V(oacc+4,4)}")
    a(f"v_add_f32 {V(sm)}, {V(sm)}, {V(sm+1)}")
    a(f"v_add_f32 {V(sx1)}, {V(sx1)}, {V(sx1+2)}")
    a(f"v_add_f32 {V(sx2)}, {V(sx2)}, {V(sx2+2)}")
    a(f"v_add_f32 {V(sx1)}, {V(sx1)}, {V(sm)}")
    a(f"v_add_f32 {V(tmp)}, {V(sx1)}, {V(sx2)}")
    a(f"v_add_f32 {V(tmp+1)}, {V(sx1)}, {V(sx2)}")
    a(so_b[4]); a(so_b[5])
    a(f"v_permlane16_swap_b32 {V(tmp)}, {V(tmp+1)}")
    a(f"v_add_f32 {V(tmp+2)}, {V(tmp)}, {V(tmp+1)}")
    a(f"v_add_f32 {V(tmp+3)}, {V(tmp)}, {V(tmp+1)}")
    a(f"v_cndmask_b32 {V(oacc)}, {V(oacc)}, {V(oacc+4)}, {S(sPm,2)}")
    a(f"v_cndmask_b32 {V(oacc+1)}, {V(oacc+1)}, {V(oacc+5)}, {S(sPm,2)}")
    a(f"v_permlane32_swap_b32 {V(tmp+2)}, {V(tmp+3)}")
    a(f"v_add_f32 {V(tmp)}, {V(tmp+2)}, {V(tmp+3)}")
    a(f"v_rcp_f32 {V(tmp)}, {V(tmp)}")
    a(f"v_cndmask_b32 {V(oacc+2)}, {V(oacc+2)}, {V(oacc+6)}, {S(sPm,2)}")
    a(f"v_cndmask_b32 {V(oacc+3)}, {V(oacc+3)}, {V(oacc+7)}, {S(sPm,2)}")
    a(f"v_pk_mul_f32 {V(oacc,2)}, {V(oacc,2)}, {V(tmp,2)} op_sel_hi:[1,0]")
    a(f"v_pk_mul_f32 {V(oacc+2,2)}, {V(oacc+2,2)}, {V(tmp,2)} op_sel_hi:[1,0]")
    a(cvt(oacc+4, oacc, oacc+1)); a(cvt(oacc+5, oacc+2, oacc+3))
    a(f"ds_write_b64 {V(vL16)}, {V(oacc+4,2)} offset:{L_O + (w//2)*1024 + (w%2)*8}")
    a(f"s_add_u32 {S(sTmp)}, {S(sKVM)}, 4096")
    a(f"buffer_store_dwordx2 {V(kvm+2,2)}, {V(vL16)}, {S(sSRD,4)}, {S(sTmp)} offen {sto}")
    a(f"s_cmp_eq_u32 {S(sS)}, 63")
    a(f"s_cbranch_scc1 {P}_done")
    for y in zero(accQ, 16): a(y)
    stamp(a, 'B4pre', prof)
    a("s_waitcnt lgkmcnt(0)")
    a("s_barrier")
    stamp(a, 'B4post', prof)
    a(f"ds_read_b128 {V(of,4)}, {V(vL16)} offset:{L_O}")
    a(f"ds_read_b128 {V(of+4,4)}, {V(vL16)} offset:{L_O + 1024}")
    a(so_b[6]); a(so_b[7])
    for y in zero(accQ + 16, 8) + zero(oacc, 8): a(y)
    wacc = [accQ + 4 * i for i in range(6)] + [oacc, oacc + 4]
    a("s_waitcnt lgkmcnt(3)")
    for T in range(4): a(smf_s(wacc[T], of, oblk(T, 0)))
    a("s_waitcnt lgkmcnt(2)")
    for T in range(4): a(smf_s(wacc[T], of + 4, oblk(T, 1)))
    def epi(tt, packed):
        ops = []
        for t in range(4):
            r = wacc[4 * tt + t]
            ops += [f"v_pk_add_f32 {V(r,2)}, {V(r,2)}, {V(r+2,2)}"] if packed else padd(r)
        d = vVx + 4 * tt
        r0, r1, r2, r3 = wacc[4*tt:4*tt+4]
        ops += [cvt(d, r0, r1), cvt(d+1, r0+1, r1+1), cvt(d+2, r2, r3), cvt(d+3, r2+1, r3+1)]
        ops.append(f"buffer_store_dwordx4 {V(d,4)}, {V(vP1st)}, {S(sSRD,4)}, {S(sP1st if tt == 0 else sP1st2)} offen {st}")
        return ops
    e0 = epi(0, False)
    a("s_waitcnt lgkmcnt(0)")
    ms = [smf_s(wacc[T], of + 4 * ko, oblk(T, ko)) for T in range(4, 8) for ko in range(2)]
    weave(a, ms, e0[:8], per=1, start=0)
    e1 = epi(1, False)
    for y in e0[8:] + e1: a(y)
    stamp(a, 'st1', prof)
    poll_issue(a, 56, sP1ld)
    a(f"s_add_u32 {S(sKX)}, {S(sKX)}, {32*8192}")
    a(f"s_add_u32 {S(sVX)}, {S(sVX)}, {32*8192}")
    kvloads()
    for y in stQ[:12]: a(y)
    a(f"s_add_u32 {S(sS)}, {S(sS)}, 1")
    a(f"s_add_u32 {S(sM2r)}, {S(sM2r)}, 8192")
    a(f"s_and_b32 {S(sM2r)}, {S(sM2r)}, {~0x8000 & 0xffffffff:#x}")
    a(f"s_add_u32 {S(sWarm)}, {S(sWarm)}, {32*8192}")
    a(f"s_add_u32 {S(sKVM)}, {S(sKVM)}, {32*8192}")
    a(f"s_xor_b32 {S(sP1st)}, {S(sP1st)}, 262144")
    a(f"s_xor_b32 {S(sP1st2)}, {S(sP1st2)}, 262144")
    a(f"s_xor_b32 {S(sTmp)}, {S(sM2w)}, 16384")
    for i in range(4): a(f"v_mov_b32 {V(52+i)}, -1")
    stamp(a, 'p1beg', prof)
    poll_finish(a, f"{P}_p1", 56, sP1ld, 48, 4)
    a(f"v_mfma_f32_16x16x32_bf16 {V(48,4)}, {V(vSel,4)}, {V(56,4)}, 0")
    a(f"v_mfma_f32_16x16x32_bf16 {V(48,4)}, {V(vSel,4)}, {V(60,4)}, {V(48,4)}")
    stamp(a, 'p1ok', prof)
    for y in stQ[12:]: a(y)
    a(f"v_add_f32_dpp {V(48)}, {V(48)}, {V(48)} row_ror:4 row_mask:0xf bank_mask:0xf")
    a(f"v_add_f32_dpp {V(49)}, {V(49)}, {V(49)} row_ror:4 row_mask:0xf bank_mask:0xf")
    a(f"v_add_f32_dpp {V(48)}, {V(48)}, {V(48)} row_ror:8 row_mask:0xf bank_mask:0xf")
    a(f"v_add_f32_dpp {V(49)}, {V(49)}, {V(49)} row_ror:8 row_mask:0xf bank_mask:0xf")
    a(cvt(48, 48, 49))
    a(f"buffer_store_dword {V(48)}, {V(vM2st)}, {S(sSRD,4)}, {S(sM2w)} offen {st}")
    stamp(a, 'st2', prof)
    poll_issue(a, s0, sM2r)
    a(f"buffer_store_dwordx4 {V(52,4)}, {V(vL16)}, {S(sSRD,4)}, {S(sP1ld)} offen {st}")
    a(f"buffer_store_dwordx4 {V(52,4)}, {V(vL16)}, {S(sSRD,4)}, {S(sP1ld)} offen offset:1024 {st}")
    a(f"buffer_store_dword {V(52)}, {V(vM2st)}, {S(sSRD,4)}, {S(sTmp)} offen {st}")
    if DBG_M:
        a(f"s_lshl_b32 {S(sTmp)}, {S(sS)}, 13")
        a(f"s_and_b32 s63, {S(sM2w)}, 0x1fff")
        a(f"s_add_u32 {S(sTmp)}, {S(sTmp)}, s63")
        a(f"s_add_u32 {S(sTmp)}, {S(sTmp)}, {MDBG}")
        a(f"buffer_store_dword {V(48)}, {V(vM2st)}, {S(sSRD,4)}, {S(sTmp)} offen {st}")
    a(f"s_add_u32 {S(sM2w)}, {S(sM2w)}, 8192")
    a(f"s_and_b32 {S(sM2w)}, {S(sM2w)}, {~0x8000 & 0xffffffff:#x}")
    a(f"s_xor_b32 {S(sP1ld)}, {S(sP1ld)}, 262144")
    for y in zero(accQ, 24): a(y)
    if prof:
        a("s_waitcnt lgkmcnt(0)")
        a(f"s_cmp_eq_u32 {S(sS)}, 41")
        a(f"s_cbranch_scc0 {P}_nd")
        for i in range(NST):
            a(f"s_mov_b32 {S(72 + i)}, {S(sT + 2*i)}")
        a(f"{P}_nd:")
    poll_finish(a, f"{P}_p2", s0, sM2r, 50, 4 if DBG_M else 3)
    a(f"s_branch {P}_top")
    a(f"{P}_done:")

def rec_setup_consts(a, w):
    t0, t1, t2 = 16, 17, 18
    a(f"v_and_b32 {V(t0)}, 15, v0")
    a(f"v_lshrrev_b32 {V(t1)}, 4, v0")
    a(f"v_lshlrev_b32 {V(vL16)}, 4, v0")
    a(f"v_add_u32 {V(vWl)}, {L_W + w*WREG}, {V(vL16)}")
    a(f"v_and_b32 {V(t2)}, 2, {V(t0)}")
    a(f"v_mov_b32 {V(vIdx)}, 0x4444")
    a(f"v_mov_b32 {V(vWarm)}, 0xeeee")
    a(f"v_cmp_eq_u32 vcc, 2, {V(t2)}")
    a(f"v_cndmask_b32 {V(vIdx)}, {V(vIdx)}, {V(vWarm)}, vcc")
    a(f"s_mov_b64 {S(sPm,2)}, vcc")
    a(f"v_mul_u32_u24 {V(vQKw)}, {2*RS}, {V(t1)}")
    a(f"v_lshl_add_u32 {V(vQKw)}, {V(t0)}, 2, {V(vQKw)}")
    a(f"v_add_u32 {V(vQKw)}, {L_Q + 64*w}, {V(vQKw)}")
    a(f"v_lshrrev_b32 {V(t2)}, 2, {V(t0)}")
    a(f"v_lshlrev_b32 {V(t2)}, 1, {V(t2)}")
    a(f"v_and_b32 {V(vQKr)}, 1, {V(t0)}")
    a(f"v_add_u32 {V(t2)}, {V(t2)}, {V(vQKr)}")
    a(f"v_mul_u32_u24 {V(vQKr)}, {RS}, {V(t2)}")
    a(f"v_lshl_add_u32 {V(vQKr)}, {V(t1)}, 4, {V(vQKr)}")
    a(f"v_add_u32 {V(vQKr)}, {L_Q}, {V(vQKr)}")
    a(f"v_lshrrev_b32 {V(t2)}, 2, {V(t0)}")
    a(f"v_lshlrev_b32 {V(vP1st)}, 11, {V(t2)}")
    a(f"v_lshl_add_u32 {V(vP1st)}, {V(t1)}, 13, {V(vP1st)}")
    a(f"v_and_b32 {V(t2)}, 3, {V(t0)}")
    a(f"v_lshl_add_u32 {V(vP1st)}, {V(t2)}, 4, {V(vP1st)}")
    a(f"v_lshlrev_b32 {V(vM2st)}, 4, {V(t1)}")
    a(f"v_lshl_add_u32 {V(vM2st)}, {V(t0)}, 2, {V(vM2st)}")
    a(f"v_mov_b32 {V(vWarm)}, 0x40000000")
    a(f"v_cmp_gt_u32 vcc, 4, {V(t0)}")
    a(f"v_cndmask_b32 {V(vM2st)}, {V(vWarm)}, {V(vM2st)}, vcc")
    for r in range(4):
        a(f"v_mov_b32 {V(vSel+r)}, 0")
        a(f"v_mov_b32 {V(vWarm)}, 0x3f80")
        a(f"v_cmp_eq_u32 vcc, {4*r}, {V(t0)}")
        a(f"v_cndmask_b32 {V(vSel+r)}, {V(vSel+r)}, {V(vWarm)}, vcc")
        a(f"v_mov_b32 {V(vWarm)}, 1.0")
        a(f"v_cmp_eq_u32 vcc, {4*r+1}, {V(t0)}")
        a(f"v_cndmask_b32 {V(vSel+r)}, {V(vSel+r)}, {V(vWarm)}, vcc")
    for r in range(4): a(f"v_mov_b32 {V(vB0+r)}, 0")
    a(f"s_mov_b32 {S(sS)}, 0")
    a(f"s_mov_b32 {S(sM2r)}, {M2B + w*2048}")
    a(f"s_lshl_b32 {S(sTmp)}, {S(sH)}, 13")
    a(f"s_add_u32 {S(sKX)}, {S(sTmp)}, {KXB + w*2048}")
    a(f"s_add_u32 {S(sVX)}, {S(sTmp)}, {VXB + w*2048}")
    a(f"s_add_u32 {S(sWarm)}, {S(sTmp)}, {(KXB if w < 2 else VXB) + (w%2)*4096 + 32*8192}")
    a(f"s_add_u32 {S(sP1ld)}, {S(sTmp)}, {P1B + w*2048}")
    a(f"s_add_u32 {S(sKVM)}, {S(sTmp)}, {KVMB + w*1024}")
    a(f"s_lshr_b32 {S(sTmp)}, {S(sH)}, 4")
    a(f"s_lshl_b32 {S(sP1st)}, {S(sTmp)}, 10")
    a(f"s_and_b32 {S(sTmp)}, {S(sH)}, 3")
    a(f"s_lshl_b32 {S(sTmp)}, {S(sTmp)}, 8")
    a(f"s_add_u32 {S(sP1st)}, {S(sP1st)}, {S(sTmp)}")
    a(f"s_and_b32 {S(sTmp)}, {S(sH)}, 12")
    a(f"s_lshl_b32 {S(sTmp)}, {S(sTmp)}, 4")
    a(f"s_add_u32 {S(sP1st)}, {S(sP1st)}, {S(sTmp)}")
    a(f"s_add_u32 {S(sP1st)}, {S(sP1st)}, {P1B + 8*w*8192}")
    a(f"s_add_u32 {S(sP1st2)}, {S(sP1st)}, 32768")
    a(f"s_lshr_b32 {S(sTmp)}, {S(sH)}, 2")
    a(f"s_lshl_b32 {S(sM2w)}, {S(sTmp)}, 10")
    a(f"s_and_b32 {S(sTmp)}, {S(sH)}, 3")
    a(f"s_lshl_b32 {S(sTmp)}, {S(sTmp)}, 6")
    a(f"s_add_u32 {S(sM2w)}, {S(sM2w)}, {S(sTmp)}")
    a(f"s_add_u32 {S(sM2w)}, {S(sM2w)}, {M2B + 256*w}")
    a(f"s_mov_b32 {S(sSpin)}, {SPIN_MAX}")
    import struct
    c = struct.unpack('<I', struct.pack('<f', 128 ** -0.5 * math.log2(math.e)))[0]
    a(f"s_mov_b32 {S(sC)}, {c:#x}")


def rec_clear(a, w):
    for i in range(4): a(f"v_mov_b32 {V(52+i)}, -1")
    for sl in range(2):
        a(f"s_add_u32 {S(sTmp)}, {S(sP1ld)}, {sl*262144}")
        a(f"buffer_store_dwordx4 {V(52,4)}, {V(vL16)}, {S(sSRD,4)}, {S(sTmp)} offen sc1")
        a(f"buffer_store_dwordx4 {V(52,4)}, {V(vL16)}, {S(sSRD,4)}, {S(sTmp)} offen offset:1024 sc1")
    for sl in range(4):
        a(f"s_add_u32 {S(sTmp)}, {S(sM2w)}, {sl*8192}")
        a(f"buffer_store_dword {V(52)}, {V(vM2st)}, {S(sSRD,4)}, {S(sTmp)} offen sc1")

def rec_load_weights(a, w, sArg, lane):
    sq, sk, sv, so = 32, 36, 40, 44
    a(f"s_load_dwordx2 {S(sq,2)}, {S(sArg,2)}, 16")
    a(f"s_load_dwordx2 {S(sk,2)}, {S(sArg,2)}, 24")
    a(f"s_load_dwordx2 {S(sv,2)}, {S(sArg,2)}, 32")
    a(f"s_load_dwordx2 {S(so,2)}, {S(sArg,2)}, 40")
    for r in (sq, sk, sv, so):
        a(f"s_mov_b32 {S(r+2)}, {4 << 20}")
        a(f"s_mov_b32 {S(r+3)}, 0x20000")
    va, vb, ra, rb, t0, t1 = 16, 17, 18, 19, 21, 22
    base = L_W + w * WREG
    a(f"v_lshrrev_b32 {V(va)}, 2, {V(lane)}")
    a(f"v_lshlrev_b32 {V(va)}, 13, {V(va)}")
    a(f"v_and_b32 {V(t0)}, 3, {V(lane)}")
    a(f"v_lshl_add_u32 {V(va)}, {V(t0)}, 4, {V(va)}")
    a(f"v_lshrrev_b32 {V(vb)}, 3, {V(lane)}")
    a(f"v_lshlrev_b32 {V(vb)}, 10, {V(vb)}")
    a(f"v_and_b32 {V(t1)}, 7, {V(lane)}")
    a(f"v_lshl_add_u32 {V(vb)}, {V(t1)}, 4, {V(vb)}")
    a(f"v_lshlrev_b32 {V(ra)}, 3, {V(t0)}")
    a(f"v_add_u32 {V(ra)}, {base}, {V(ra)}")
    a(f"v_mov_b32 {V(rb)}, {V(ra)}")
    a(f"v_bfe_u32 {V(t1)}, {V(lane)}, 2, 2")
    a(f"v_lshl_add_u32 {V(ra)}, {V(t1)}, 10, {V(ra)}")
    a(f"v_lshrrev_b32 {V(t1)}, 4, {V(lane)}")
    a(f"v_lshl_add_u32 {V(ra)}, {V(t1)}, 7, {V(ra)}")
    for bit, sh in ((4, 12), (3, 11), (5, 9), (2, 7)):
        a(f"v_bfe_u32 {V(t1)}, {V(lane)}, {bit}, 1")
        a(f"v_lshl_add_u32 {V(rb)}, {V(t1)}, {sh}, {V(rb)}")
    s1, s2 = 48, 49
    a(f"s_lshl_b32 {S(s1)}, {S(sH)}, 8")
    a(f"s_add_u32 {S(s1)}, {S(s1)}, {64*w}")
    a(f"s_lshl_b32 {S(s2)}, {S(sH)}, 17")
    a(f"s_add_u32 {S(s2)}, {S(s2)}, {256*w}")
    a("s_waitcnt lgkmcnt(0)")
    HO = [0, 9 * 2048]
    order = [(2 * w + i) % 8 for i in range(8)]
    def dma_qkv(srd, kss, half):
        for n, ks in enumerate(kss):
            for j in range(4):
                a(f"s_mov_b32 m0, {base + HO[half] + n*4096 + j*1024}")
                a(f"s_add_u32 {S(sTmp)}, {S(s1)}, {(64*ks + 16*j) * 8192}")
                a(f"buffer_load_dwordx4 {V(va)}, {S(srd,4)}, {S(sTmp)} offen lds")
    def dma_wo(tt, half):
        for j in range(16):
            a(f"s_mov_b32 m0, {base + HO[half] + j*1024}")
            a(f"s_add_u32 {S(sTmp)}, {S(s2)}, {j*8192 + tt*128}")
            a(f"buffer_load_dwordx4 {V(vb)}, {S(so,4)}, {S(sTmp)} offen lds")
    def sub(blk, p2):
        k, b = blk[0], int(blk[2:].split(':')[0])
        return R(k, b + 2 * p2, 2)
    def rd_qkv(kss, half, dst):
        for n, ks in enumerate(kss):
            for t in range(2):
                for p2 in range(4):
                    a(f"ds_read_b64_tr_b16 {sub(dst(ks, t), p2)}, {V(ra)} offset:{HO[half] + n*4096 + (8*(p2//2) + p2%2)*64 + t*32}")
    def rd_wo(tt, half):
        for tp in range(4):
            for ko in range(2):
                for p2 in range(4):
                    a(f"ds_read_b64_tr_b16 {sub(oblk(4*tt+tp, ko), p2)}, {V(rb)} offset:{HO[half] + (64*ko + 8*(p2//2) + 2*(p2%2))*128 + tp*32}")
    def wb(slot0, x0, n):
        for i in range(n):
            for hf in range(2):
                a(f"ds_write_b128 {V(vWl)}, {V(X + 8*(x0+i) + 4*hf, 4)} offset:{(slot0+i)*2048 + hf*1024}")
    qd = lambda ks, t: qblk(w, ks, t)
    ph = [(lambda: dma_qkv(sk, [0,1,2,3], 0), lambda: rd_qkv([0,1,2,3], 0, kblk)),
          (lambda: dma_qkv(sk, [4,5,6,7], 1), lambda: rd_qkv([4,5,6,7], 1, kblk)),
          (lambda: dma_qkv(sv, [0,1,2,3], 0), lambda: rd_qkv([0,1,2,3], 0, vblk)),
          (lambda: dma_qkv(sv, [4,5,6,7], 1), lambda: rd_qkv([4,5,6,7], 1, vblk)),
          (lambda: dma_wo(0, 0), lambda: rd_wo(0, 0)),
          (lambda: dma_qkv(sq, order[4:], 1), lambda: rd_qkv(order[4:], 1, qd)),
          (lambda: dma_qkv(sq, order[:4], 0), lambda: rd_qkv(order[:4], 0, qd)),
          (lambda: dma_wo(1, 1), lambda: rd_wo(1, 1))]
    ph[0][0](); ph[1][0]()
    for i in range(8):
        a(f"s_waitcnt vmcnt({16 if i < 7 else 0})")
        ph[i][1]()
        a("s_waitcnt lgkmcnt(0)")
        if i == 5: wb(8, 8, 1)
        if i == 6: wb(0, 0, 8); a("s_waitcnt lgkmcnt(0)")
        if i == 7: wb(9, 0, 8); a("s_waitcnt lgkmcnt(0)")
        if i + 2 < 8: ph[i + 2][0]()

def rec_publish_m0(a, w, sMem, lane, st):
    a(f"v_and_b32 v21, 3, {V(lane)}")
    a(f"v_lshrrev_b32 v22, 4, {V(lane)}")
    a("v_and_b32 v23, 1, v22")
    a("v_lshlrev_b32 v23, 10, v23")
    a("v_lshrrev_b32 v22, 1, v22")
    a("v_lshl_add_u32 v23, v22, 6, v23")
    a("v_lshl_add_u32 v23, v21, 1, v23")
    a(f"s_and_b32 {S(sTmp)}, {S(sH)}, 3")
    a(f"s_lshl_b32 {S(sTmp)}, {S(sTmp)}, 11")
    a(f"s_lshr_b32 s48, {S(sH)}, 2")
    a(f"s_lshl_b32 s48, s48, 7")
    a(f"s_add_u32 {S(sTmp)}, {S(sTmp)}, s48")
    a(f"s_add_u32 {S(sTmp)}, {S(sTmp)}, {8*w}")
    a(f"v_add_u32 v23, {S(sTmp)}, v23")
    a(f"global_load_ushort v21, v23, {S(sMem,2)}")
    a(f"global_load_ushort v22, v23, {S(sMem,2)} offset:32")
    a("s_waitcnt vmcnt(0)")
    a("v_lshl_or_b32 v21, v22, 16, v21")
    a(f"buffer_store_dword v21, {V(vM2st)}, {S(sSRD,4)}, {S(sM2w)} offen {st}")
    a(f"s_add_u32 {S(sM2w)}, {S(sM2w)}, 8192")

def rec_role(a, sArg, sDbg, sW, sXcc, end, prof=False):
    L = a.newlabel("RR")
    sMem = 50
    a(f"s_load_dwordx2 {S(sMem,2)}, {S(sArg,2)}, 8")
    for w in range(1, 4):
        a(f"s_cmp_eq_u32 {S(sW)}, {w}")
        a(f"s_cbranch_scc1 {L}_w{w}")
    for w in range(4):
        a(f"{L}_w{w}:")
        a("v_mov_b32 v20, v0")
        rec_setup_consts(a, w)
        rec_clear(a, w)
        a("s_waitcnt vmcnt(0)")
        a("s_barrier")
        if w == 0:
            a(f"s_cmp_lg_u32 {S(sXcc)}, 0")
            a(f"s_cselect_b32 {S(sTmp)}, 0x10001, 1")
            a(f"v_mov_b32 v21, {S(sTmp)}")
            a("v_mov_b32 v22, 64")
            a("s_mov_b64 exec, 1")
            a(f"global_atomic_add v22, v21, {S(sDbg,2)}")
            a("s_mov_b64 exec, -1")
            a("s_waitcnt vmcnt(0)")
        rec_load_weights(a, w, sArg, 20)
        a("v_mov_b32 v22, 64")
        a(f"{L}_c{w}:")
        a(f"global_load_dword v21, v22, {S(sDbg,2)} sc1")
        a(f"s_sub_u32 {S(sSpin)}, {S(sSpin)}, 1")
        a(f"s_cbranch_scc1 {end}")
        a("s_waitcnt vmcnt(0)")
        a(f"v_readfirstlane_b32 {S(sTmp)}, v21")
        a(f"s_and_b32 s48, {S(sTmp)}, 0xffff")
        a(f"s_cmp_lt_u32 s48, 32")
        a(f"s_cbranch_scc1 {L}_c{w}")
        a(f"s_cmp_gt_u32 {S(sTmp)}, 0xffff")
        a(f"s_cbranch_scc1 {L}_s{w}")
        rec_publish_m0(a, w, sMem, 20, '')
        rec_loop(a, w, '', prof)
        a(f"s_branch {end}")
        a(f"{L}_s{w}:")
        rec_publish_m0(a, w, sMem, 20, 'sc1')
        rec_loop(a, w, 'sc1', prof)
        a(f"s_branch {end}")
```

```python
from asm import *
from layout import *
import struct, math
def f32bits(x): return struct.unpack('<I', struct.pack('<f', x))[0]
sWS = 4

def xlane_reduce16_32(a, op, r, t):
    for sw in ('v_permlane16_swap_b32', 'v_permlane32_swap_b32'):
        a(f"v_mov_b32 {V(t)}, {V(r)}")
        a(f"{sw} {V(r)}, {V(t)}")
        a(f"{op} {V(r)}, {V(r)}, {V(t)}")

def gate_role(a, sArg, sBlk, sW, st=''):
    L = a.newlabel("GT")
    sX, sG, sOff, sJ = 8, 12, 16, 17
    a(f"s_load_dwordx2 {S(sX,2)}, {S(sArg,2)}, 0")
    a(f"s_load_dwordx2 {S(sG,2)}, {S(sArg,2)}, 80")
    a(f"s_mov_b32 {S(sX+2)}, {2048*1024}")
    a(f"s_mov_b32 {S(sX+3)}, 0x20000")
    a(f"v_lshlrev_b32 v1, 4, v0")
    a(f"s_lshl_b32 {S(sOff)}, {S(sBlk)}, 2")
    a(f"s_add_u32 {S(sOff)}, {S(sOff)}, {S(sW)}")
    a(f"s_lshl_b32 s18, {S(sOff)}, 9")
    a(f"s_lshl_b32 {S(sOff)}, {S(sOff)}, 16")
    a("s_waitcnt lgkmcnt(0)")
    a(f"global_load_dwordx4 v[4:7], v1, {S(sG,2)}")
    a("s_waitcnt vmcnt(0)")
    for i in range(4):
        a(f"v_lshlrev_b32 {V(8+2*i)}, 16, {V(4+i)}")
        a(f"v_and_b32 {V(9+2*i)}, 0xffff0000, {V(4+i)}")
    a("v_mov_b32 v2, 0")
    a(f"s_mov_b32 {S(sJ)}, 0")
    a(f"{L}_loop:")
    for j in range(4):
        a(f"buffer_load_dwordx4 {V(32+4*j,4)}, v1, {S(sX,4)}, {S(sOff)} offen offset:{j*1024}")
    for j in range(4):
        a(f"s_waitcnt vmcnt({3-j})")
        for i in range(4):
            x = 32 + 4*j + i
            a(f"v_lshlrev_b32 v16, 16, {V(x)}")
            a(f"v_and_b32 v17, 0xffff0000, {V(x)}")
            a(f"v_mul_f32 v16, v16, {V(8+2*i)}")
            a(f"v_mul_f32 v17, v17, {V(9+2*i)}")
            a(f"v_cvt_pk_bf16_f32 v18, v16, v17")
            a(f"v_lshlrev_b32 v16, 16, v18")
            a(f"v_and_b32 v17, 0xffff0000, v18")
            if i == 0: a("v_add_f32 v19, v16, v17")
            else:
                a("v_add_f32 v19, v19, v16"); a("v_add_f32 v19, v19, v17")
        for ror in (1, 2, 4, 8):
            a(f"v_add_f32_dpp v19, v19, v19 row_ror:{ror} row_mask:0xf bank_mask:0xf")
        xlane_reduce16_32(a, "v_add_f32", 19, 20)
        a(f"v_cmp_eq_u32 vcc, {S(sJ)}, v0")
        a(f"v_cndmask_b32 v2, v2, v19, vcc")
        a(f"s_add_u32 {S(sJ)}, {S(sJ)}, 1")
    a(f"s_add_u32 {S(sOff)}, {S(sOff)}, 4096")
    a(f"s_cmp_lt_u32 {S(sJ)}, 64")
    a(f"s_cbranch_scc1 {L}_loop")
    a("v_cvt_pk_bf16_f32 v2, v2, v2")
    a("v_lshlrev_b32 v2, 16, v2")
    a(f"v_mul_f32 v2, {f32bits(-math.log2(math.e)):#x}, v2")
    a("v_exp_f32 v2, v2")
    a("v_add_f32 v2, 1.0, v2")
    a("v_rcp_f32 v2, v2")
    a("v_cvt_pk_bf16_f32 v2, v2, v2")
    a("v_lshlrev_b32 v2, 16, v2")
    a("v_sub_f32 v3, 1.0, v2")
    a("v_cvt_pk_bf16_f32 v3, v3, v3")
    a("v_lshlrev_b32 v3, 16, v3")
    a("v_lshlrev_b32 v1, 3, v0")
    a(f"s_add_u32 s18, s18, {GB}")
    a(f"buffer_store_dwordx2 v[2:3], v1, {S(sWS,4)}, s18 offen {st}")
    a("s_waitcnt vmcnt(0)")

def battn_role(a, sH, sPart, sW, ld='', st=''):
    L = a.newlabel("BA")
    NU = 3
    sT0, sMask, sI, sSeg = 16, 18, 20, 21
    vL16, vKa, vVa, vT = 1, 2, 3, 4
    Q = 8; KF = 20; VF = 28; PB = 44; NM = 64; OA = 112; SB = 160; MX = 208; GG = 216
    a(f"v_lshlrev_b32 {V(vL16)}, 4, v0")
    a(f"s_lshl_b32 {S(sT0)}, {S(sH)}, 16")
    a(f"s_lshl_b32 {S(sT0+1)}, {S(sW)}, 14")
    a(f"s_add_u32 {S(sT0)}, {S(sT0)}, {S(sT0+1)}")
    for m, base in ((0, KBB), (1, VBB)):
        for j in range(4):
            a(f"s_add_u32 m0, {S(sT0+1)}, {m*65536 + j*4096}")
            a(f"s_add_u32 {S(sI)}, {S(sT0)}, {base + j*4096}")
            for i in range(4):
                a(f"buffer_load_dwordx4 {V(vL16)}, {S(sWS,4)}, {S(sI)} offen offset:{i*1024} lds {ld}")
        if m == 0:
            a(f"s_mul_i32 {S(sSeg)}, {S(sPart)}, 12")
            a(f"s_mul_i32 {S(sI)}, {S(sW)}, 3")
            a(f"s_add_u32 {S(sSeg)}, {S(sSeg)}, {S(sI)}")
            a(f"v_and_b32 {V(vT)}, 31, v0")
            a(f"v_lshlrev_b32 {V(vT)}, 3, {V(vT)}")
            for u in (2, 1, 0):
                a(f"s_add_u32 {S(sSeg+u)}, {S(sSeg)}, {u}")
                a(f"s_min_u32 {S(sSeg+u)}, {S(sSeg+u)}, 63")
            for u in range(NU):
                a(f"s_lshl_b32 {S(sI)}, {S(sH)}, 6")
                a(f"s_add_u32 {S(sI)}, {S(sI)}, {S(sSeg+u)}")
                a(f"s_lshl_b32 {S(sI)}, {S(sI)}, 10")
                a(f"s_add_u32 {S(sI)}, {S(sI)}, {QBB}")
                a(f"buffer_load_dwordx4 {V(Q+4*u,4)}, {V(vL16)}, {S(sWS,4)}, {S(sI)} offen {ld}")
                a(f"s_lshl_b32 {S(sI)}, {S(sSeg+u)}, 8")
                a(f"s_add_u32 {S(sI)}, {S(sI)}, {GB}")
                a(f"buffer_load_dword {V(GG+u)}, {V(vT)}, {S(sWS,4)}, {S(sI)} offen offset:4 {ld}")
    a(f"s_mov_b32 {S(sMask)}, 0xffff")
    a(f"s_mov_b32 {S(sMask+1)}, 0xffff")
    a(f"v_lshrrev_b32 {V(vVa)}, 5, v0")
    a(f"v_lshlrev_b32 {V(vVa)}, 8, {V(vVa)}")
    a(f"v_and_b32 {V(vT)}, 15, v0")
    a(f"v_lshl_add_u32 {V(vVa)}, {V(vT)}, 4, {V(vVa)}")
    a(f"v_add_u32 {V(vVa)}, 65536, {V(vVa)}")
    for i in range(16): a(f"v_mov_b32 {V(VF+i)}, 0x3f803f80")
    for u in range(NU):
        a(f"v_mov_b32 {V(MX+2*u)}, 0xff800000"); a(f"v_mov_b32 {V(MX+2*u+1)}, 0xff800000")
        for i in range(0, 16, 2): a(f"v_mov_b64 {V(OA+16*u+i,2)}, 0")
    a("s_waitcnt vmcnt(16)")
    a("s_barrier")
    a(f"v_mov_b32 {V(vKa)}, {V(vL16)}")
    a(f"ds_read_b128 {V(KF,4)}, {V(vKa)}")
    a(f"ds_read_b128 {V(KF+4,4)}, {V(vKa)} offset:1024")
    a(f"s_mov_b32 {S(sI)}, 0")
    def smf(u, kf, c): return f"v_mfma_f32_32x32x16_bf16 {V(SB+16*u,16)}, {V(kf,4)}, {V(Q+4*u,4)}, {c}"
    def mx(u):
        b = SB + 16 * u
        return [f"v_max3_f32 {V(MX+2*u+(i%2))}, {V(MX+2*u+(i%2))}, {V(b+2*i)}, {V(b+2*i+1)}" for i in range(8)]
    a("s_waitcnt lgkmcnt(1)")
    a(smf(0, KF, "0")); a(smf(1, KF, "0"))
    a(f"{L}_p1:")
    for par in range(2):
        kc, kn = KF + 4 * par, KF + 4 * (1 - par)
        a(smf(2, kc, "0"))
        a(f"ds_read_b128 {V(kc,4)}, {V(vKa)} offset:{2048 + 1024*par}")
        for x in mx(0): a(x)
        a("s_waitcnt lgkmcnt(1)")
        a(smf(0, kn, "0"))
        for x in mx(1): a(x)
        a(smf(1, kn, "0"))
        for x in mx(2): a(x)
    a(f"v_add_u32 {V(vKa)}, 2048, {V(vKa)}")
    a(f"s_add_u32 {S(sI)}, {S(sI)}, 2")
    a(f"s_cmp_lt_u32 {S(sI)}, 64")
    a(f"s_cbranch_scc1 {L}_p1")
    for u in range(NU):
        a(f"v_max_f32 {V(MX+2*u)}, {V(MX+2*u)}, {V(MX+2*u+1)}")
        a(f"v_mov_b32 {V(MX+2*u+1)}, {V(MX+2*u)}")
        a(f"v_permlane32_swap_b32 {V(MX+2*u)}, {V(MX+2*u+1)}")
        a(f"v_max_f32 {V(MX+2*u)}, {V(MX+2*u)}, {V(MX+2*u+1)}")
        for i in range(16): a(f"v_sub_f32 {V(NM+16*u+i)}, 0, {V(MX+2*u)}")
    a("s_waitcnt vmcnt(0) lgkmcnt(0)")
    a("s_barrier")
    def rdV(par, off):
        return [f"s_mov_b64 exec, {S(sMask,2)}",
                f"ds_read_b128 {V(VF+8*par,4)}, {V(vVa)} offset:{off}",
                f"ds_read_b128 {V(VF+8*par+4,4)}, {V(vVa)} offset:{off+512}",
                "s_mov_b64 exec, -1"]
    a(f"v_mov_b32 {V(vKa)}, {V(vL16)}")
    a(f"ds_read_b128 {V(KF,4)}, {V(vKa)}")
    a(f"ds_read_b128 {V(KF+4,4)}, {V(vKa)} offset:1024")
    for x in rdV(0, 0): a(x)
    for i in range(8): a(f"v_mov_b32 {V(PB+8+i)}, 0")
    a(f"s_mov_b32 {S(sI)}, 0")
    a("s_waitcnt lgkmcnt(0)")
    def smf2(u, kf): return smf(u, kf, V(NM+16*u, 16))
    def pv(u, vpar, pb, h): return f"v_mfma_f32_32x32x16_bf16 {V(OA+16*u,16)}, {V(VF+8*vpar+4*h,4)}, {V(PB+8*pb+4*h,4)}, {V(OA+16*u,16)}"
    a(smf2(0, KF)); a(smf2(1, KF))
    a(f"{L}_p2:")
    n = 0
    for par in range(2):
        kc, kn = KF + 4 * par, KF + 4 * (1 - par)
        for u in range(NU):
            b = SB + 16 * u
            pb = n % 2
            pu = (u - 1) % NU
            pvpar = par if u > 0 else 1 - par
            if u == 0: a(smf2(2, kc)); a(f"ds_read_b128 {V(kc,4)}, {V(vKa)} offset:{2048 + 1024*par}")
            elif u == 1: a("s_waitcnt lgkmcnt(3)"); a(smf2(0, kn))
            else: a(smf2(1, kn))
            for i in range(16):
                a(f"v_exp_f32 {V(b+i)}, {V(b+i)}")
                if i == 4: a(pv(pu, pvpar, 1 - pb, 0))
                if i == 9:
                    a(pv(pu, pvpar, 1 - pb, 1))
                    if u == 0:
                        for x in rdV(1 - par, 1024 + 1024 * par): a(x)
                if i >= 3 and i % 2 == 1: a(f"v_cvt_pk_bf16_f32 {V(PB+8*pb+(i-3)//2)}, {V(b+i-3)}, {V(b+i-2)}")
            a(f"v_cvt_pk_bf16_f32 {V(PB+8*pb+7)}, {V(b+14)}, {V(b+15)}")
            n += 1
    a(f"v_add_u32 {V(vKa)}, 2048, {V(vKa)}")
    a(f"v_add_u32 {V(vVa)}, 2048, {V(vVa)}")
    a(f"s_add_u32 {S(sI)}, {S(sI)}, 2")
    a(f"s_cmp_lt_u32 {S(sI)}, 64")
    a(f"s_cbranch_scc1 {L}_p2")
    a(pv(2, 1, 1, 0)); a(pv(2, 1, 1, 1))
    for u in range(NU):
        o = OA + 16 * u
        a(f"v_rcp_f32 {V(vT)}, {V(o+8)}")
        a(f"v_mul_f32 {V(vT)}, {V(vT)}, {V(GG+u)}")
        for i in range(8): a(f"v_mul_f32 {V(o+i)}, {V(o+i)}, {V(vT)}")
        for i in range(4): a(f"v_cvt_pk_bf16_f32 {V(o+8+i)}, {V(o+2*i)}, {V(o+2*i+1)}")
        a(f"s_mul_i32 {S(sI)}, {S(sSeg+u)}, 288")
        a(f"s_add_u32 {S(sI)}, {S(sI)}, {S(sH)}")
        a(f"s_lshl_b32 {S(sI)}, {S(sI)}, 10")
        a(f"s_add_u32 {S(sI)}, {S(sI)}, {OXB + 256*1024}")
        a(f"buffer_store_dwordx4 {V(o+8,4)}, {V(vL16)}, {S(sWS,4)}, {S(sI)} offen {st}")
    a("s_waitcnt vmcnt(0) lgkmcnt(0)")

T5_MASK = 24
def t5_setup(a):
    a("v_lshlrev_b32 v1, 4, v0")
    a("v_lshlrev_b32 v2, 3, v0")
    a("v_and_b32 v5, 15, v0")
    a("v_lshlrev_b32 v3, 3, v5")
    a("v_lshrrev_b32 v6, 4, v0")
    a("v_lshlrev_b32 v4, 9, v6")
    a("v_lshl_add_u32 v4, v5, 4, v4")
    for r in range(4):
        a(f"v_lshl_add_u32 v7, v6, 2, {r}")
        a(f"v_cmp_le_u32 {S(T5_MASK+2*r,2)}, v7, v5")
    a(f"s_mov_b32 s22, {f32bits(128 ** -0.5 * math.log2(math.e)):#x}")
    a("v_mov_b32 v5, 0xf149f2ca")
    a("v_mov_b32 v9, 0"); a("v_mov_b32 v10, 0")

def t5_loads_a(a, sS, sH, ld=''):
    Q, K, VV_, KM, VM, G = 16, 48, 80, 112, 128, 136
    a(f"s_lshl_b32 s16, {S(sS)}, 5")
    a(f"s_add_u32 s16, s16, {S(sH)}")
    a(f"s_lshl_b32 s17, s16, 13")
    for base, reg in ((QXB, Q), (KXB, K), (VXB, VV_)):
        for half in range(2):
            a(f"s_add_u32 s18, s17, {base + half*4096}")
            for i in range(4):
                a(f"buffer_load_dwordx4 {V(reg+16*half+4*i,4)}, v1, {S(sWS,4)}, s18 offen offset:{i*1024} {ld}")
    a(f"s_lshl_b32 s18, {S(sS)}, 8")
    a(f"s_add_u32 s18, s18, {GB}")
    a(f"buffer_load_dword {V(G)}, v3, {S(sWS,4)}, s18 offen {ld}")
    a(f"buffer_load_dword {V(G+1)}, v3, {S(sWS,4)}, s18 offen offset:128 {ld}")

def t5_loads_b(a, ld=''):
    KM, VM = 112, 128
    a(f"s_add_u32 s18, s17, {KVMB}")
    for i in range(4):
        a(f"buffer_load_dwordx4 {V(KM+4*i,4)}, v1, {S(sWS,4)}, s18 offen offset:{i*1024} {ld}")
    a(f"s_add_u32 s18, s18, 4096")
    for i in range(4):
        a(f"buffer_load_dwordx2 {V(VM+2*i,2)}, v1, {S(sWS,4)}, s18 offen offset:{i*1024} {ld}")

def t5_compute(a, sS, sH, st=''):
    Q, K, VV_, KM, VM, G = 16, 48, 80, 112, 128, 136
    Sm, S0, S1, PF, T, O = 140, 144, 148, 152, 156, 160
    B0, B1 = 8, 10
    a(f"s_mul_i32 s18, {S(sS)}, 288")
    a(f"s_lshl_b32 s19, {S(sH)}, 3")
    a(f"s_add_u32 s18, s18, s19")
    a(f"s_lshl_b32 s18, s18, 10")
    a(f"s_add_u32 s18, s18, {OXB}")
    a(f"s_add_u32 s19, s18, 4096")
    a("s_waitcnt vmcnt(0)")
    def mf(d, x, y, first): return f"v_mfma_f32_16x16x32_bf16 {V(d,4)}, {V(x,4)}, {V(y,4)}, {'0' if first else V(d,4)}"
    for qt in range(2):
        for kk in range(4):
            q = Q + 16 * qt + 4 * kk
            a(mf(Sm, KM + 4*kk, q, kk == 0))
            a(mf(S0, K + 4*kk, q, kk == 0))
            if qt == 1: a(mf(S1, K + 16 + 4*kk, q, kk == 0))
        dg = S0 if qt == 0 else S1
        for r in range(4):
            a(f"v_cndmask_b32 {V(dg+r)}, v5, {V(dg+r)}, {S(T5_MASK+2*r,2)}")
        ev = [Sm, Sm+1, S0, S0+1, S0+2, S0+3] + ([S1, S1+1, S1+2, S1+3] if qt else [])
        a(f"v_max3_f32 {V(T)}, {V(Sm)}, {V(Sm+1)}, {V(S0)}")
        a(f"v_max3_f32 {V(T)}, {V(T)}, {V(S0+1)}, {V(S0+2)}")
        if qt:
            a(f"v_max3_f32 {V(T)}, {V(T)}, {V(S0+3)}, {V(S1)}")
            a(f"v_max3_f32 {V(T)}, {V(T)}, {V(S1+1)}, {V(S1+2)}")
            a(f"v_max_f32 {V(T)}, {V(T)}, {V(S1+3)}")
        else:
            a(f"v_max_f32 {V(T)}, {V(T)}, {V(S0+3)}")
        xlane_reduce16_32(a, "v_max_f32", T, T+1)
        a(f"v_mul_f32 {V(T)}, s22, {V(T)}")
        for r in ev: a(f"v_fma_f32 {V(r)}, {V(r)}, s22, -{V(T)}")
        for r in ev: a(f"v_exp_f32 {V(r)}, {V(r)}")
        a(f"v_cvt_pk_bf16_f32 {V(B0)}, {V(Sm)}, {V(Sm+1)}")
        a(f"v_cvt_pk_bf16_f32 {V(B1+1)}, {V(Sm)}, {V(Sm+1)}")
        a(f"v_cvt_pk_bf16_f32 {V(PF)}, {V(S0)}, {V(S0+1)}")
        a(f"v_cvt_pk_bf16_f32 {V(PF+1)}, {V(S0+2)}, {V(S0+3)}")
        if qt:
            a(f"v_cvt_pk_bf16_f32 {V(PF+2)}, {V(S1)}, {V(S1+1)}")
            a(f"v_cvt_pk_bf16_f32 {V(PF+3)}, {V(S1+2)}, {V(S1+3)}")
        else:
            a(f"v_mov_b64 {V(PF+2,2)}, 0")
        for e in range(8):
            a(mf(O + 4*e, VV_ + 4*e, PF, True))
        for e in range(8):
            a(f"v_mfma_f32_16x16x16_bf16 {V(O+4*e,4)}, {V(VM+2*(e//2),2)}, {V(B0 if e%2==0 else B1,2)}, {V(O+4*e,4)}")
        a(f"v_add_f32 {V(T)}, {V(ev[0])}, {V(ev[1])}")
        for r in ev[2:]: a(f"v_add_f32 {V(T)}, {V(T)}, {V(r)}")
        xlane_reduce16_32(a, "v_add_f32", T, T+1)
        a(f"v_rcp_f32 {V(T)}, {V(T)}")
        a(f"v_mul_f32 {V(T)}, {V(T)}, {V(G+qt)}")
        for u in range(4):
            o = O + 8 * u
            for i in range(8): a(f"v_mul_f32 {V(o+i)}, {V(o+i)}, {V(T)}")
            d = 192 + 4 * u + 16 * qt
            for i in range(4): a(f"v_cvt_pk_bf16_f32 {V(d+i)}, {V(o+2*i)}, {V(o+2*i+1)}")
            a(f"buffer_store_dwordx4 {V(d,4)}, v4, {S(sWS,4)}, {'s18' if u < 2 else 's19'} offen offset:{(u%2)*2048 + qt*256} {st}")

def t6_wreg(i): return A(4*i, 4) if i < 64 else V(224 + 4*(i-64), 4)
def t6_wreg2(i, hf): return A(4*i + 2*hf, 2) if i < 64 else V(224 + 4*(i-64) + 2*hf, 2)
def t6_setup(a, sArg, sN, sW):
    L = a.newlabel("T6")
    a(f"s_load_dwordx2 s[8:9], {S(sArg,2)}, 40")
    a(f"s_load_dwordx2 s[12:13], {S(sArg,2)}, 72")
    a(f"s_mov_b32 s10, {4096*1024}\ns_mov_b32 s11, 0x20000\ns_mov_b32 s14, {512*1024}\ns_mov_b32 s15, 0x20000")
    a("v_lshlrev_b32 v1, 4, v0")
    a("v_lshrrev_b32 v2, 2, v0\nv_lshlrev_b32 v2, 10, v2\nv_and_b32 v3, 3, v0\nv_lshl_add_u32 v2, v3, 4, v2")
    a(f"s_lshl_b32 s16, {S(sN)}, 6")
    a("v_add_u32 v2, s16, v2")
    a(f"s_mul_i32 s17, {S(sW)}, 36864")
    a("v_lshrrev_b32 v4, 5, v0\nv_lshlrev_b32 v4, 8, v4\nv_bfe_u32 v5, v0, 2, 2\nv_lshl_add_u32 v4, v5, 6, v4")
    a("v_bfe_u32 v5, v0, 4, 1\nv_lshl_add_u32 v4, v5, 5, v4\nv_lshl_add_u32 v4, v3, 3, v4\nv_add_u32 v4, s17, v4")
    a(f"s_mul_i32 s18, {S(sW)}, {1152*1024}")
    a("s_waitcnt lgkmcnt(0)")
    def body(w3):
        for ch in range(2):
            for j in range(36):
                i = ch * 36 + j
                a(f"s_add_u32 m0, s17, {j*1024}")
                if w3 and i >= 40:
                    a(f"s_mov_b32 s19, {(i-40)*16384}")
                    a("buffer_load_dwordx4 v2, s[12:15], s19 offen lds")
                else:
                    a(f"s_add_u32 s19, s18, {i*16384}")
                    a("buffer_load_dwordx4 v2, s[8:11], s19 offen lds")
            a("s_waitcnt vmcnt(0)")
            for j in range(36):
                i = ch * 36 + j
                for hf in range(2):
                    if w3 and i >= 40: row0 = 16 * j + 8 * hf
                    else: row0 = 32 * (j // 2) + 8 * (j % 2) + 16 * hf
                    a(f"ds_read_b64_tr_b16 {t6_wreg2(i, hf)}, v4 offset:{row0*64}")
            a("s_waitcnt lgkmcnt(0)")
    a(f"s_cmp_eq_u32 {S(sW)}, 3")
    a(f"s_cbranch_scc1 {L}_w3")
    body(False)
    a(f"s_branch {L}_e")
    a(f"{L}_w3:")
    body(True)
    a(f"{L}_e:")
    a(f"s_load_dwordx2 s[12:13], {S(sArg,2)}, 88")
    a(f"s_mov_b32 s14, {2048*1024}")
    a("v_and_b32 v2, 31, v0\nv_lshlrev_b32 v2, 10, v2\nv_lshrrev_b32 v3, 5, v0\nv_lshl_add_u32 v2, v3, 3, v2")
    a(f"s_lshl_b32 s19, {S(sW)}, 4")
    a("s_add_u32 s19, s19, s16")
    a("v_add_u32 v2, s19, v2")
    a(f"s_lshl_b32 s19, {S(sW)}, 12\nv_add_u32 v3, s19, v1")
    a(f"s_lshl_b32 s19, {S(sW)}, 10\nv_add_u32 v4, s19, v1")
    a(f"s_mul_i32 s17, {S(sW)}, {72*1024}")
    a(f"s_add_u32 s17, s17, {OXB}")
    a("s_waitcnt lgkmcnt(0)")
    a("s_barrier")

def t6_unit(a, sS, ld=''):
    NB = 48
    FR, ACC = 32, 8
    a(f"s_mul_i32 s18, {S(sS)}, {288*1024}")
    a("s_add_u32 s18, s18, s17")
    def ldf(i):
        ops = []
        if i % 4 == 0 and i: ops.append("s_add_u32 s18, s18, 4096")
        ops.append(f"buffer_load_dwordx4 {V(FR + 4*(i % NB), 4)}, v1, {S(sWS,4)}, s18 offen offset:{(i%4)*1024} {ld}")
        return ops
    for i in range(NB):
        for x in ldf(i): a(x)
    for i in range(72):
        out = min(72, i + NB) - i - 1
        a(f"s_waitcnt vmcnt({out})")
        a(f"v_mfma_f32_32x32x16_bf16 {V(ACC,16)}, {t6_wreg(i)}, {V(FR + 4*(i % NB), 4)}, {'0' if i == 0 else V(ACC,16)}")
        if i + NB < 72:
            for x in ldf(i + NB): a(x)
    for q in range(4):
        a(f"ds_write_b128 v3, {V(ACC+4*q,4)} offset:{q*1024}")
    a("s_waitcnt lgkmcnt(0)")
    a("s_barrier")
    for q in range(4):
        a(f"ds_read_b128 {V(ACC+4*q,4)}, v4 offset:{q*4096}")
    a(f"s_lshl_b32 s18, {S(sS)}, 15")
    a("s_waitcnt lgkmcnt(0)")
    a("s_barrier")
    for i in range(4):
        a(f"v_add_f32 {V(ACC+i)}, {V(ACC+i)}, {V(ACC+4+i)}")
        a(f"v_add_f32 {V(ACC+8+i)}, {V(ACC+8+i)}, {V(ACC+12+i)}")
        a(f"v_add_f32 {V(ACC+i)}, {V(ACC+i)}, {V(ACC+8+i)}")
    a(f"v_cvt_pk_bf16_f32 v24, {V(ACC)}, {V(ACC+1)}")
    a(f"v_cvt_pk_bf16_f32 v25, {V(ACC+2)}, {V(ACC+3)}")
    a("buffer_store_dwordx2 v[24:25], v2, s[12:15], s18 offen")
```

```python
from asm import *
from layout import *
import proj, roles, rec
import sys
NAME = "gated_mix__memory_aug_recurrent_mem_tr__softmax_full_mha__prompt"
hdr = open(f"cdna_kernels/{NAME}.s.ref").read().split("; Override launch")[0]
a = Asm()
a.raw(hdr.rstrip())
a.raw("; @launch kernel=proj_kernel grid=(224,1,1) block=(256,1,1) lds=163840")
a.raw("; @launch kernel=main_kernel grid=(256,1,1) block=(256,1,1) lds=163840")
a.raw("; @launch kernel=att_kernel grid=(512,1,1) block=(256,1,1) lds=0")
a.raw("; @launch kernel=fin_kernel grid=(256,1,1) block=(256,1,1) lds=147456")
a.raw('.amdgcn_target "amdgcn-amd-amdhsa--gfx950"\n.text')
def begin(name, nwg):
    a.raw(f".globl {name}\n.p2align 8\n.type {name},@function")
    a(f"{name}:")
    a(f"s_cmp_ge_u32 s2, {nwg}")
    a(f"s_cbranch_scc1 {name}_end")
    a("s_load_dwordx4 s[64:67], s[0:1], 96")
    a("v_lshrrev_b32 v1, 6, v0")
    a("v_readfirstlane_b32 s62, v1")
    a("v_and_b32 v0, 63, v0")
    a("s_waitcnt lgkmcnt(0)")
    a(f"s_mov_b32 s4, s66\ns_mov_b32 s5, s67\ns_mov_b32 s6, {WS_BYTES}\ns_mov_b32 s7, 0x20000")
def end(name):
    a(f"{name}_end:")
    a("s_endpgm")

begin("proj_kernel", 224)
a("s_cmp_ge_u32 s2, 216")
a("s_cbranch_scc0 K1_p")
a("s_sub_u32 s60, s2, 216")
roles.gate_role(a, 0, 60, 62)
a("s_branch proj_kernel_end")
a("K1_p:")
a("s_and_b32 s60, s2, 7\ns_lshr_b32 s61, s2, 3\ns_mul_i32 s60, s60, 27\ns_add_u32 s60, s60, s61")
a(f"s_lshr_b32 {S(proj.sCB)}, s60, 2\ns_and_b32 {S(proj.sR)}, s60, 3\ns_mov_b32 {S(proj.sW)}, s62")
proj.proj_role(a, 0)
end("proj_kernel")

begin("main_kernel", 256)
a("s_getreg_b32 s63, hwreg(HW_REG_XCC_ID)")
a("s_and_b32 s63, s63, 7")
a("s_cmp_eq_u32 s62, 0")
a("s_cbranch_scc0 K2_tk")
a("s_mov_b32 s60, s63")
a("s_mov_b64 exec, 1")
a("v_mov_b32 v2, 1")
a("K2_try:")
a("s_lshl_b32 s61, s60, 2")
a("v_mov_b32 v1, s61")
a("global_atomic_add v3, v1, v2, s[64:65] sc0")
a("s_waitcnt vmcnt(0)")
a("v_readfirstlane_b32 s61, v3")
a("s_cmp_lt_u32 s61, 32")
a("s_cbranch_scc1 K2_got")
a("s_add_u32 s60, s60, 1")
a("s_and_b32 s60, s60, 7")
a("s_cmp_lg_u32 s60, s63")
a("s_cbranch_scc1 K2_try")
a("s_mov_b32 s60, 8")
a("K2_got:")
a("s_lshl_b32 s60, s60, 5")
a("s_add_u32 s60, s60, s61")
a("v_mov_b32 v3, s60")
a("v_mov_b32 v1, 0")
a("ds_write_b32 v1, v3")
a("s_mov_b64 exec, -1")
a("s_waitcnt lgkmcnt(0)")
a("K2_tk:")
a("s_barrier")
a("v_mov_b32 v1, 0")
a("ds_read_b32 v3, v1")
a("s_waitcnt lgkmcnt(0)")
a("v_readfirstlane_b32 s60, v3")
a("s_barrier")
a("s_cmp_lt_u32 s60, 32")
a("s_cbranch_scc1 K2_rec")
a("s_sub_u32 s60, s60, 32")
a("s_cmp_ge_u32 s60, 192")
a("s_cbranch_scc1 main_kernel_end")
a("s_mul_i32 s61, s60, 43691\ns_lshr_b32 s61, s61, 18")
a("s_mul_i32 s59, s61, 6\ns_sub_u32 s59, s60, s59")
roles.battn_role(a, 61, 59, 62)
a("s_branch main_kernel_end")
a("K2_rec:")
a(f"s_mov_b32 {S(rec.sH)}, s60")
rec.rec_role(a, 0, 64, 62, 63, "main_kernel_end")
end("main_kernel")

begin("att_kernel", 512)
a("s_lshr_b32 s60, s2, 3")
a("s_and_b32 s61, s2, 7\ns_lshl_b32 s61, s61, 2\ns_add_u32 s61, s61, s62")
roles.t5_setup(a)
roles.t5_loads_a(a, 60, 61)
roles.t5_loads_b(a)
roles.t5_compute(a, 60, 61)
end("att_kernel")

begin("fin_kernel", 256)
a("s_lshr_b32 s61, s2, 3\ns_and_b32 s60, s61, 15")
a("s_lshr_b32 s61, s61, 4\ns_lshl_b32 s61, s61, 3\ns_and_b32 s59, s2, 7\ns_add_u32 s59, s59, s61")
roles.t6_setup(a, 0, 60, 62)
a("K4_loop:")
roles.t6_unit(a, 59)
a("s_add_u32 s59, s59, 16")
a("s_cmp_lt_u32 s59, 64")
a("s_cbranch_scc1 K4_loop")
end("fin_kernel")

a.raw('.section .rodata,"a"')
a.raw(kernel_desc("proj_kernel"))
a.raw(kernel_desc("main_kernel"))
a.raw(kernel_desc("att_kernel", 256, 102, 256))
a.raw(kernel_desc("fin_kernel"))
out = sys.argv[1] if len(sys.argv) > 1 else f"cdna_kernels/{NAME}.s"
open(out, "w").write(a.finalize(True))
```

```python
import re

REG_RE = re.compile(r'\b([vas])(\d+)\b|\b([vas])\[(\d+):(\d+)\]|\b(vcc_lo|vcc_hi|vcc|exec_lo|exec_hi|exec|m0)\b')

def R(kind, base, n=1):
    if n == 1:
        return f"{kind}{base}"
    return f"{kind}[{base}:{base+n-1}]"
def V(b, n=1): return R('v', b, n)
def A(b, n=1): return R('a', b, n)
def S(b, n=1): return R('s', b, n)

def regs_of(op):
    out = set()
    for m in REG_RE.finditer(op):
        if m.group(1):
            out.add((m.group(1), int(m.group(2))))
        elif m.group(3):
            for i in range(int(m.group(4)), int(m.group(5)) + 1):
                out.add((m.group(3), i))
        else:
            t = m.group(6)
            if t == 'vcc': out |= {('vcc', 0), ('vcc', 1)}
            elif t == 'vcc_lo': out.add(('vcc', 0))
            elif t == 'vcc_hi': out.add(('vcc', 1))
            elif t == 'exec': out |= {('exec', 0), ('exec', 1)}
            elif t == 'exec_lo': out.add(('exec', 0))
            elif t == 'exec_hi': out.add(('exec', 1))
            else: out.add(('m0', 0))
    return out

def split_ops(s):
    ops, depth, cur = [], 0, ''
    for ch in s:
        if ch in '[(': depth += 1
        if ch in '])': depth -= 1
        if ch == ',' and depth == 0:
            ops.append(cur.strip()); cur = ''
        else:
            cur += ch
    if cur.strip(): ops.append(cur.strip())
    return ops

TRANS = ('v_exp_f32', 'v_log_f32', 'v_rcp_f32', 'v_rsq_f32', 'v_sqrt_f32', 'v_sin_f32', 'v_cos_f32', 'v_rcp_iflag_f32')

class Ins:
    def __init__(self, text):
        self.text = text
        code = text.split(';')[0].strip()
        parts = code.split(None, 1)
        self.mn = mn = parts[0]
        rest = parts[1] if len(parts) > 1 else ''
        ops = split_ops(rest)
        self.mods = ''
        if ops:
            last = ops[-1]
            depth = 0
            for i, ch in enumerate(last):
                if ch in '[(': depth += 1
                if ch in '])': depth -= 1
                if ch == ' ' and depth == 0:
                    self.mods = last[i:]
                    ops[-1] = last[:i]
                    break
        self.ops = ops
        self.kind = 'other'
        self.w = set(); self.r = set()
        self.srcC = set(); self.srcAB = set(); self.passes = 0
        self.states = 1
        self.target = None
        self.store_data = set()
        rs = [regs_of(o) for o in ops]
        def U(l):
            s = set()
            for x in l: s |= x
            return s
        if mn.startswith('v_mfma') or mn.startswith('v_smfmac'):
            self.kind = 'mfma'
            self.w = rs[0]
            if mn.startswith('v_smfmac'):
                self.srcC = rs[0]; self.srcAB = U(rs[1:4])
            else:
                self.srcC = rs[3]; self.srcAB = U(rs[1:3])
            self.r = self.srcC | self.srcAB
            if '32x32' in mn: self.passes = 8
            elif '16x16' in mn: self.passes = 4
            else: raise ValueError(mn)
            assert '_f32_' in mn and ('bf16' in mn or 'f16' in mn), mn
        elif mn.startswith('v_'):
            self.kind = 'valu'
            if mn.startswith('v_cmpx'): raise ValueError('no cmpx')
            if mn.startswith('v_permlane') and 'swap' in mn:
                self.w = rs[0] | rs[1]; self.r = rs[0] | rs[1]
            elif re.match(r'v_(add|sub|subrev)_co_u32', mn) or re.match(r'v_(addc|subb)_co_u32', mn):
                self.w = rs[0] | rs[1]; self.r = U(rs[2:])
            elif mn == 'v_nop':
                pass
            else:
                self.w = rs[0]; self.r = U(rs[1:])
                if mn.startswith('v_fmac') or mn.startswith('v_pk_fmac') or mn.startswith('v_dot2c') or mn.startswith('v_writelane'):
                    self.r |= rs[0]
                if mn.startswith('v_cndmask') and len(ops) == 3:
                    self.r |= {('vcc', 0), ('vcc', 1)}
            self.dpp = bool(re.search(r'row_|quad_perm|wave_|_dpp', code))
            if self.dpp: self.r |= rs[0]
            self.trans = any(mn.startswith(t) for t in TRANS)
            self.perml = mn.startswith('v_permlane')
            self.rdlane = mn.startswith('v_readlane') or mn.startswith('v_readfirstlane')
        elif mn.startswith('buffer_') or mn.startswith('global_'):
            self.kind = 'vmem'
            self.ldsdma = (' lds' in self.mods + ' ') or mn.startswith('global_load_lds')
            if mn in ('buffer_wbl2', 'buffer_inv'):
                pass
            elif 'load' in mn and not self.ldsdma:
                self.w = rs[0]; self.r = U(rs[1:])
                if 'd16' in mn: self.r |= rs[0]
            elif 'atomic' in mn:
                if mn.startswith('global_') and len(ops) == 4:
                    self.w = rs[0]; self.r = U(rs[1:])
                elif mn.startswith('buffer_') and 'sc0' in self.mods:
                    self.w = rs[0]; self.r = U(rs)
                else:
                    self.r = U(rs)
            else:
                self.r = U(rs)
                if 'store' in mn and ('x4' in mn or 'x3' in mn):
                    self.store_data = rs[0] if mn.startswith('buffer_') else rs[1]
            if self.ldsdma: self.r.add(('m0', 0))
        elif mn.startswith('ds_'):
            self.kind = 'ds'
            if mn.startswith('ds_read') or mn.startswith('ds_bpermute') or mn.startswith('ds_permute') or mn.startswith('ds_swizzle') or '_rtn' in mn:
                self.w = rs[0]; self.r = U(rs[1:])
            else:
                self.r = U(rs)
        elif mn.startswith('s_'):
            self.kind = 'salu'
            if mn == 's_nop':
                self.states = int(ops[0], 0) + 1
            elif mn.startswith('s_cbranch') or mn == 's_branch':
                self.kind = 'branch'; self.target = ops[0]
            elif mn.startswith('s_cmp') or mn.startswith('s_bitcmp') or mn in ('s_waitcnt', 's_barrier', 's_endpgm', 's_sleep', 's_setprio'):
                self.r = U(rs)
            else:
                self.w = rs[0] if rs else set(); self.r = U(rs[1:])
                if 'saveexec' in mn: self.w |= {('exec', 0), ('exec', 1)}
        else:
            raise ValueError("unknown instr: " + text)

def is_vec(r): return r[0] in ('v', 'a')
def is_sca(r): return r[0] in ('s', 'vcc')

def required(p, c):
    n = 0
    if p.kind == 'mfma':
        big = {4: 8, 8: 12}[p.passes]
        if c.kind == 'mfma':
            if p.w & c.srcAB: n = max(n, big)
            if p.w & c.srcC:
                if p.w == c.srcC and p.passes == c.passes: pass
                else: n = max(n, big - 2)
            elif p.w & c.w:
                n = max(n, big - 2)
        elif c.kind in ('valu', 'vmem', 'ds'):
            if p.w & (c.r | c.w): n = max(n, big)
        if c.kind == 'valu' and (p.srcC & c.w):
            n = max(n, {4: 3, 8: 7}[p.passes])
    elif p.kind == 'valu':
        pv = {r for r in p.w if is_vec(r)}
        ps = {r for r in p.w if is_sca(r)}
        if c.kind == 'mfma' and pv & c.r: n = max(n, 2)
        if c.kind == 'vmem' and ps & c.r: n = max(n, 5)
        if c.kind == 'valu':
            if ps & c.r: n = max(n, 4 if (c.rdlane or c.mn.startswith('v_writelane')) else 2)
            if pv & c.r:
                if c.dpp or c.perml: n = max(n, 2)
                if c.rdlane: n = max(n, 1)
                if p.trans and not c.trans: n = max(n, 1)
    elif p.kind == 'vmem':
        if p.store_data & c.w:
            n = max(n, 2 if c.kind == 'valu' else 1)
    elif p.kind == 'salu':
        if ('m0', 0) in p.w and c.kind in ('vmem', 'ds') and ('m0', 0) in c.r: n = max(n, 1)
    return n

MAXD = 12

class Asm:
    def __init__(self):
        self.items = []
        self.uid = 0
    def __call__(self, text):
        for line in text.split('\n'):
            t = line.strip()
            if not t: continue
            if t.startswith(';'):
                self.items.append(('raw', '    ' + t)); continue
            if t.endswith(':'):
                self.items.append(('label', t[:-1])); continue
            if t.startswith('.'):
                self.items.append(('raw', t)); continue
            self.items.append(Ins(t))
    def label(self, n): self.items.append(('label', n))
    def raw(self, t): self.items.append(('raw', t))
    def newlabel(self, p='L'):
        self.uid += 1
        return f"{p}_{self.uid}"
    def finalize(self, verbose=False):
        items = self.items
        ins_idx = [i for i, x in enumerate(items) if isinstance(x, Ins)]
        pos = {i: k for k, i in enumerate(ins_idx)}
        ins = [items[i] for i in ins_idx]
        lab = {}
        k = 0
        for i, x in enumerate(items):
            if isinstance(x, Ins): k = pos[i] + 1
            elif x[0] == 'label': lab[x[1]] = k
        preds = [[] for _ in ins]
        for k, x in enumerate(ins):
            if k + 1 < len(ins) and x.mn not in ('s_branch', 's_endpgm'):
                preds[k + 1].append(k)
            if x.kind == 'branch':
                t = lab[x.target]
                if t < len(ins): preds[t].append(k)
        pad = [0] * len(ins)
        total = 0
        def elapsed(path, k):
            t = 0; lm = None
            seq = path + [k]
            for j, q in enumerate(seq):
                if j > 0:
                    t += ins[seq[j-1]].states + (pad[q] if q != k or j < len(seq) - 1 else 0)
                if ins[q].kind == 'mfma':
                    if lm is not None and j < len(seq) - 1: t = max(t, lm)
                    lm = t + ins[q].passes
            return t - ins[path[0]].states
        for k, c in enumerate(ins):
            need = 0
            stack = [([p], 0) for p in preds[k]]
            while stack:
                path, d = stack.pop()
                p = path[0]
                req = required(ins[p], c)
                if req > d:
                    e = elapsed(path, k) if ins[p].kind == 'mfma' else d
                    if req > e: need = max(need, req - e)
                nd = d + ins[p].states + pad[p]
                if nd < MAXD:
                    for q in preds[p]: stack.append(([q] + path, nd))
            pad[k] = need
            total += need
        out = []
        for i, x in enumerate(items):
            if isinstance(x, Ins):
                n = pad[pos[i]]
                while n > 0:
                    m = min(n, 16)
                    out.append(f"    s_nop {m-1}")
                    n -= m
                out.append("    " + x.text)
            elif x[0] == 'label': out.append(x[1] + ":")
            else: out.append(x[1])
        if verbose: print("inserted wait states:", total)
        return "\n".join(out) + "\n"

def kernel_desc(name, vgpr=512, sgpr=102, accum=256):
    return f""".p2align 6
.amdhsa_kernel {name}
  .amdhsa_next_free_vgpr {vgpr}
  .amdhsa_next_free_sgpr {sgpr}
  .amdhsa_accum_offset {accum}
  .amdhsa_group_segment_fixed_size 0
  .amdhsa_kernarg_size 112
  .amdhsa_user_sgpr_count 2
  .amdhsa_user_sgpr_kernarg_segment_ptr 1
  .amdhsa_system_sgpr_workgroup_id_x 1
.end_amdhsa_kernel
"""
```

```python
from asm import *
import math

from layout import *

L_M, L_KX, L_Q, L_K, L_O, L_W = 0, 8192, 16384, 16384 + 256, 20992, 24576
RS = 544
WREG = 17 * 2048

vL16, vIdx, vWl, vQKw, vQKr, vP1st, vM2st, vWarm = range(8)
vSel = 8
vB0, vB1 = 12, 14
accQ, accK, accV = 16, 24, 32
vVx = 40
RING = [56, 60, 48, 52]
X = 64
RES = 136
sSRD = 4
sH, sS, sM2r, sKX, sVX, sWarm, sP1st, sP1st2, sP1ld, sM2w, sMG, sSpin, sTmp = range(8, 21)
sReady, sFlag = 96, 98
vPub = 15
sC = 56
sOne = 58
sTag, sTag2, sClr = 21, 60, 61
sPm = 22
DBG_M = False
sT = 24
SPIN_MAX = 1 << 20
NST = 16

NQL = 9
def korder(w):
    ev = [(2 * w + 2 * i) % 8 for i in range(4)]
    return ev + [k + 1 for k in ev]
def qidx(w, ks, t): return korder(w).index(ks) * 2 + t
def qblk(w, ks, t):
    i = qidx(w, ks, t)
    return V(X + 8 * i, 8) if i < NQL else V(RES + 8 * (i - NQL), 8)
def kblk(ks, t): return A(8 * (ks * 2 + t), 8)
def vblk(ks, t): return A(128 + 8 * (ks * 2 + t), 8)
def oblk(T, ko):
    i = T * 2 + ko
    return V(RES + 56 + 8 * i, 8) if i < 8 else V(X + 8 * (i - 8), 8)

def smf_s(acc, areg, b):
    return f"v_smfmac_f32_16x16x64_bf16 {V(acc,4)}, {V(areg,4)}, {b}, {V(vIdx)}"

STN = [0]
STNAMES = []
STSEL = [None]
def stamp(a, n, prof):
    if prof and (STSEL[0] is None or n in STSEL[0]):
        k = STN[0]; STN[0] += 1
        if len(STNAMES) <= k: STNAMES.append(str(n))
        assert k < NST
        a(f"s_memtime {S(sT + 2*k, 2)}")

def chk_ops(r, n, tmp):
    if n == 8:
        o = [f"v_max3_u32 {V(tmp)}, {V(r)}, {V(r+1)}, {V(r+2)}",
             f"v_max3_u32 {V(tmp+1)}, {V(r+3)}, {V(r+4)}, {V(r+5)}",
             f"v_max3_u32 {V(tmp)}, {V(tmp)}, {V(r+6)}, {V(r+7)}",
             f"v_max_u32 {V(tmp)}, {V(tmp)}, {V(tmp+1)}"]
    else:
        o = [f"v_max3_u32 {V(tmp)}, {V(r)}, {V(r+1)}, {V(r+2)}",
             f"v_max_u32 {V(tmp)}, {V(tmp)}, {V(r+3)}"]
    return o + [f"v_cmp_eq_u32 vcc, -1, {V(tmp)}"]

def poll_ops(r, n, soff, off=0):
    return [f"buffer_load_dwordx4 {V(r+4*i,4)}, {V(vL16)}, {S(sSRD,4)}, {S(soff)} offen offset:{off + 1024*i} sc1" for i in range(n // 4)]

def poll_retry(tail, name, r, n, soff, off, tmp, redo=()):
    tail.append(f"{name}:")
    tail += poll_ops(r, n, soff, off)
    tail.append(f"s_sub_u32 {S(sSpin)}, {S(sSpin)}, 1")
    tail.append(f"s_cbranch_scc1 {name}_to")
    tail.append("s_waitcnt vmcnt(0)")
    tail += list(redo)
    tail += chk_ops(r, n, tmp)
    tail.append(f"s_cbranch_vccnz {name}")
    tail.append(f"s_branch {name}_ok")
    tail.append(f"{name}_to:")
    tail.append(f"s_mov_b32 {S(sSpin)}, 0")
    tail.append("s_waitcnt vmcnt(0)")
    tail += list(redo)
    tail.append(f"s_branch {name}_ok")

def ready_wait(name, ok):
    t, u = 100, 101
    o = [f"v_mov_b32 {V(vWarm)}, 0",
         f"global_load_dword {V(vWarm)}, {V(vWarm)}, {S(sFlag,2)} sc1",
         f"s_sub_u32 {S(sSpin)}, {S(sSpin)}, 1", f"s_cbranch_scc1 {name}_to",
         "s_waitcnt vmcnt(0)",
         f"v_readfirstlane_b32 {S(t)}, {V(vWarm)}"]
    for r in range(4):
        o += [f"s_bfe_u32 {S(u)}, {S(t)}, {(8 << 16) | (8 * r):#x}", f"s_lshl_b32 {S(u)}, {S(u)}, 2", f"s_add_u32 {S(u)}, {S(u)}, {r}"]
        o += [f"s_mov_b32 {S(sReady)}, {S(u)}"] if r == 0 else [f"s_min_u32 {S(sReady)}, {S(sReady)}, {S(u)}"]
    o += [f"s_cmp_ge_u32 {S(sReady)}, 64", f"s_cselect_b32 {S(sReady)}, 128, {S(sReady)}",
          f"s_cmp_lt_u32 {S(sTmp)}, {S(sReady)}", f"s_cbranch_scc1 {ok}", "s_sleep 4", f"s_branch {name}",
          f"{name}_to:", f"s_mov_b32 {S(sSpin)}, 0", f"s_mov_b32 {S(sReady)}, 128", "s_waitcnt vmcnt(0)", f"s_branch {ok}"]
    return o

def weave(a, main, fill, per=1, start=0):
    fill = list(fill)
    for i, m in enumerate(main):
        a(m)
        if i >= start:
            for _ in range(per):
                if fill: a(fill.pop(0))
    for f in fill: a(f)

def rec_loop(a, w, st, prof=False, sto='', cfg={}):
    P = f"R{w}{'s' if st else 'f'}"
    STN[0] = 0
    STSEL[0] = cfg.get('stamps')
    if cfg.get('free'):
        a0 = a
        def a(t):
            if t.startswith('s_cbranch_vcc'): return
            if t.startswith('s_waitcnt vmcnt'):
                t = 's_waitcnt lgkmcnt(0)' if 'lgkm' in t else 's_waitcnt vmcnt(40)'
            a0(t)
    tail = []
    sto = cfg.get('sto', sto); ldk = cfg.get('ldk', 'nt'); ldw = cfg.get('ldw', '')
    Ee, e1, e2, e3, Oo, o1, o2, o3 = korder(w)
    s0, s1, s2, s3 = RING
    def rdm(slot, ks): return f"ds_read_b128 {V(slot,4)}, {V(vL16)} offset:{L_M + ks*1024}"
    def wrm(slot, ks): return f"ds_write_b128 {V(vL16)}, {V(slot,4)} offset:{L_M + ks*1024}"
    def QQ(ks, slot): return [smf_s(accQ, slot, qblk(w, ks, 0)), smf_s(accQ + 4, slot, qblk(w, ks, 1))]
    def KK(ks, slot): return [smf_s(accK, slot, kblk(ks, 0)), smf_s(accK + 4, slot, kblk(ks, 1))]
    def VV(ks, slot): return [smf_s(accV, slot, vblk(ks, 0)), smf_s(accV + 4, slot, vblk(ks, 1))]
    stQ = [f"ds_read_b128 {V(X + 8*i + 4*hf, 4)}, {V(vWl)} offset:{i*2048 + hf*1024}" for i in range(NQL) for hf in range(2)]
    stO = [f"ds_read_b128 {V(X + 8*i + 4*hf, 4)}, {V(vWl)} offset:{(NQL + i)*2048 + hf*1024}" for i in range(8) for hf in range(2)]
    def zero(r, n): return [f"v_mov_b64 {V(r+i,2)}, 0" for i in range(0, n, 2)]
    kxl = [f"buffer_load_dwordx4 {V(vL16)}, {S(sSRD,4)}, {S(sKX)} offen offset:{1024*i} {ldk} lds" for i in range(2)]
    vxl = [f"buffer_load_dwordx4 {V(vVx+4*i,4)}, {V(vL16)}, {S(sSRD,4)}, {S(sVX)} offen offset:{1024*i} {ldk}" for i in range(2)]
    qf, kxf, kmf = X, X + 16, X + 48
    kvm = X + 64
    tmp = X + 68
    sx1, sx2, sm, pf = accQ, accQ + 4, accK, accK + 4
    oacc, of = 48, 56
    ones, lacc = 56, 60
    def padd(r): return [f"v_add_f32 {V(r)}, {V(r)}, {V(r+2)}", f"v_add_f32 {V(r+1)}, {V(r+1)}, {V(r+3)}"]
    def cvt(d, x, y): return f"v_cvt_pk_bf16_f32 {V(d)}, {V(x)}, {V(y)}"
    def lg(n): return f"s_waitcnt lgkmcnt({n})"
    def vm(n): return f"s_waitcnt vmcnt({n})"
    def seq(*xs):
        for x in xs:
            if isinstance(x, (list, tuple)):
                for y in x: a(y)
            else: a(x)
    spin = lambda to: [f"s_sub_u32 {S(sSpin)}, {S(sSpin)}, 1", f"s_cbranch_scc1 {to}"]
    peA, peB, po = poll_ops(s0, 4, sM2r), poll_ops(s3, 4, sM2r), poll_ops(s1, 4, sM2r, 1024)

    a(f"s_mov_b32 {S(sTmp)}, 1")
    a(f"{P}_r0:")
    seq(ready_wait(f"{P}_r0", f"{P}_r0_ok"))
    a(f"{P}_r0_ok:")
    a(f"s_mov_b32 m0, {L_KX + w*2048}")
    seq(kxl, stQ, zero(accQ, 24))
    a(f"s_add_u32 {S(sKX)}, {S(sKX)}, {32*8192}")
    peC = poll_ops(s1, 4, sM2r)
    seq(peA, peB, peC, vm(2))
    a(f"{P}_top:")
    a(f"s_waitcnt vmcnt({2 if w < 2 else 3}) lgkmcnt(0)")
    stamp(a, 'peA', prof)
    ck = chk_ops(s0, 4, vWarm)
    seq(wrm(s0, Ee), ck)
    a(f"s_cbranch_vccnz {P}_pe")
    a(f"{P}_pe_go:")
    stamp(a, 'peok', prof)
    x = QQ(Ee, s0) + KK(Ee, s0)
    seq(x[0], po, x[1], x[2], x[3])
    cb, cc = chk_ops(s3, 4, vWarm), chk_ops(s1, 4, vWarm)
    def mv(r): return [f"v_mov_b64 {V(s0,2)}, {V(r,2)}", f"v_mov_b64 {V(s0+2,2)}, {V(r+2,2)}"]
    slp = ["s_nop 7"] * cfg.get('slp', 1)
    tail += [f"{P}_pe:"] + peA + [vm(2), wrm(s3, Ee)] + cb + [f"s_cbranch_vccz {P}_peb"]
    tail += slp + peB + [vm(2), wrm(s1, Ee)] + cc + [f"s_cbranch_vccz {P}_pec"]
    tail += spin(f"{P}_pe_to") + slp + peC + [vm(2), wrm(s0, Ee)] + ck + [f"s_cbranch_vccz {P}_pe_go"] + slp + [f"s_branch {P}_pe"]
    tail += [f"{P}_peb:"] + mv(s3) + [f"s_branch {P}_pe_go"]
    tail += [f"{P}_pec:"] + mv(s1) + [f"s_branch {P}_pe_go"]
    tail += [f"{P}_pe_to:", f"s_mov_b32 {S(sSpin)}, 0", f"s_branch {P}_pe_go"]
    seq(lg(0), "s_barrier")
    stamp(a, 'B1a', prof)
    kxr = [f"ds_read_b128 {V(kxf+16*tj+4*kk,4)}, {V(vL16)} offset:{L_KX + (tj*4+kk)*1024}" for tj in range(2) for kk in range(4)]
    x = VV(Ee, s0)
    seq(rdm(s2, e1), x[0], x[1], vm(1), rdm(s0, e2), rdm(s3, e3), lg(2))
    x = QQ(e1, s2) + KK(e1, s2)
    seq(x[0], x[1], kxr[0], kxr[1], x[2], kxr[2], kxr[3], x[3], lg(5), f"v_mov_b32 {V(vB0)}, -1")
    x = QQ(e2, s0) + KK(e2, s0)
    seq(x[0], x[1], kxr[4], kxr[5], x[2], kxr[6], kxr[7], x[3], vm(0))
    stamp(a, 'pook', prof)
    ck = chk_ops(s1, 4, vWarm)
    x = QQ(e3, s3) + KK(e3, s3)
    seq(wrm(s1, Oo), lg(9), x[0], vxl[0], vxl[1], ck[0], x[1],
        f"buffer_store_dword {V(vB0)}, {V(vM2st)}, {S(sSRD,4)}, {S(sClr)} offen {st}", ck[1], x[2], ck[2], x[3])
    a(f"s_cbranch_vccnz {P}_po")
    a(f"{P}_po_ok:")
    poll_retry(tail, f"{P}_po", s1, 4, sM2r, 1024, vWarm, redo=[wrm(s1, Oo)])
    seq(lg(0), "s_barrier")
    stamp(a, 'B1b', prof)
    x = QQ(Oo, s1) + KK(Oo, s1)
    seq(rdm(s2, o1), x[0], rdm(s0, o2), rdm(s3, o3), x[1], f"s_add_u32 {S(sTmp)}, {S(sS)}, 2", f"s_cmp_lt_u32 {S(sTmp)}, {S(sReady)}",
        x[2], f"s_cbranch_scc0 {P}_rd")
    a(f"{P}_rd_ok:")
    tail += [f"{P}_rd:"] + ready_wait(f"{P}_rd", f"{P}_rd_ok")
    seq(f"buffer_store_dword {V(vPub)}, {V(vM2st)}, {S(sSRD,4)}, {S(sMG)} offen sc1", f"v_lshlrev_b32 {V(vWarm)}, 2, {V(vL16)}", x[3], lg(2))
    x = QQ(o1, s2) + QQ(o2, s0) + QQ(o3, s3)
    seq(x[0], f"buffer_load_dword {V(vWarm)}, {V(vWarm)}, {S(sSRD,4)}, {S(sWarm)} offen {ldw}", x[1], lg(1), x[2], x[3], lg(0), x[4], x[5])
    qe = padd(accQ) + padd(accQ + 4) + [cvt(accQ+2, accQ, accQ+4), cvt(accQ+3, accQ+1, accQ+5),
          f"ds_write2_b32 {V(vQKw)}, {V(accQ+2)}, {V(accQ+3)} offset0:0 offset1:{RS//4}"]
    ke = padd(accK) + padd(accK + 4) + [cvt(kvm, accK, accK+4), cvt(kvm+1, accK+1, accK+5),
          f"ds_write2_b32 {V(vQKw)}, {V(kvm)}, {V(kvm+1)} offset0:64 offset1:{64 + RS//4}"]
    k6 = KK(o1, s2) + KK(o2, s0) + KK(o3, s3)
    vq = VV(Oo, s1) + VV(o2, s0) + VV(o1, s2) + VV(o3, s3) + VV(e1, s1) + VV(e2, s2) + VV(e3, s3)
    seq(k6[0], k6[1], qe[0], k6[2], qe[1], k6[3], qe[2], k6[4], qe[3], k6[5], qe[4])
    seq(vq[0], qe[5], vq[1], qe[6], rdm(s1, e1), ke[0:6], vq[2], ke[6])
    seq(vq[3], vq[4], vq[5], rdm(s2, e2), vq[6], lg(1), "s_barrier")
    stamp(a, 'B2', prof)
    rq = [f"ds_read_b128 {V(qf+4*kk,4)}, {V(vQKr)} offset:{64*kk}" for kk in range(4)]
    rk = [f"ds_read_b128 {V(kmf+4*kk,4)}, {V(vQKr)} offset:{L_K - L_Q + 64*kk}" for kk in range(4)]
    seq(rq[0], vq[7], rq[1], rq[2], vq[8], rq[3], rk[0], vq[9], rk[1], rk[2], lg(6))
    def SX(kk, tj):
        d = sx1 if tj == 0 else sx2
        c = "0" if kk == 0 else V(d, 4)
        return f"v_mfma_f32_16x16x32_bf16 {V(d,4)}, {V(kxf+16*tj+4*kk,4)}, {V(qf+4*kk,4)}, {c}"
    def SM(kk):
        c = "0" if kk == 0 else V(sm, 4)
        return f"v_mfma_f32_16x16x32_bf16 {V(sm,4)}, {V(kmf+4*kk,4)}, {V(qf+4*kk,4)}, {c}"
    seq(SX(0, 0), rk[3], rdm(s3, e3), SX(0, 1), kxl[0], lg(7))
    seq(SX(1, 0), kxl[1], SX(1, 1), lg(6))
    seq(SX(2, 0), SX(2, 1), lg(5))
    seq(SX(3, 0), SX(3, 1), lg(1))
    seq(SM(0), stO[4], f"v_mov_b64 {V(ones,2)}, {S(sOne,2)}")
    seq(SM(1), stO[5])
    seq(SM(2), stO[6], f"v_max3_f32 {V(tmp)}, {V(sx1)}, {V(sx1+1)}, {V(sx1+2)}", f"v_max3_f32 {V(tmp+1)}, {V(sx1+3)}, {V(sx2)}, {V(sx2+1)}")
    seq(SM(3), stO[7], f"v_max3_f32 {V(tmp)}, {V(tmp)}, {V(sx2+2)}, {V(sx2+3)}", f"v_mov_b64 {V(ones+2,2)}, {S(sOne,2)}")
    seq(vq[10], stO[0], stO[1], f"v_max_f32 {V(tmp)}, {V(tmp)}, {V(tmp+1)}", vq[11], stO[2], lg(7))
    stamp(a, 'Sdone', prof)
    a(f"v_max3_f32 {V(tmp)}, {V(tmp)}, {V(sm)}, {V(sm+1)}")
    a(f"v_max3_f32 {V(tmp+1)}, {V(tmp)}, {V(sm)}, {V(sm+1)}")
    seq(vq[12], stO[3], stO[8])
    a(f"v_permlane16_swap_b32 {V(tmp)}, {V(tmp+1)}")
    a(f"v_max_f32 {V(tmp+2)}, {V(tmp)}, {V(tmp+1)}")
    a(f"v_max_f32 {V(tmp+3)}, {V(tmp)}, {V(tmp+1)}")
    seq(vq[13], stO[9], stO[10])
    a(f"v_permlane32_swap_b32 {V(tmp+2)}, {V(tmp+3)}")
    a(f"v_max_f32 {V(tmp)}, {V(tmp+2)}, {V(tmp+3)}")
    a(f"v_mul_f32 {V(tmp)}, {S(sC)}, {V(tmp)}")
    for r in (sx1, sx1+2, sx2, sx2+2, sm):
        a(f"v_pk_fma_f32 {V(r,2)}, {V(r,2)}, {S(sC,2)}, {V(tmp,2)} op_sel_hi:[1,1,0] neg_lo:[0,0,1] neg_hi:[0,0,1]")
    def ex(r): return f"v_exp_f32 {V(r)}, {V(r)}"
    seq([ex(sx1+i) for i in range(8)])
    seq(cvt(pf, sx1, sx1+1), cvt(pf+1, sx1+2, sx1+3), cvt(pf+2, sx2, sx2+1), cvt(pf+3, sx2+2, sx2+3), ex(sm), vm(5))
    stamp(a, 'smx', prof)
    ve = padd(accV) + padd(accV + 4) + [cvt(kvm+2, accV, accV+1), cvt(kvm+3, accV+4, accV+5)]
    seq(f"v_mfma_f32_16x16x32_bf16 {V(lacc,4)}, {V(ones,4)}, {V(pf,4)}, 0", stO[11], ex(sm+1))
    seq(f"v_mfma_f32_16x16x32_bf16 {V(oacc,4)}, {V(vVx,4)}, {V(pf,4)}, 0", cvt(vB0, sm, sm+1), ve[0])
    seq(f"v_mfma_f32_16x16x32_bf16 {V(oacc+4,4)}, {V(vVx+4,4)}, {V(pf,4)}, 0", ve[1], ve[2])
    seq(f"v_mfma_f32_16x16x16_bf16 {V(lacc,4)}, {V(ones,2)}, {V(vB0,2)}, {V(lacc,4)}", ve[3], ve[4], ve[5], cvt(vB1+1, sm, sm+1))
    seq(f"v_mfma_f32_16x16x16_bf16 {V(oacc,4)}, {V(kvm+2,2)}, {V(vB0,2)}, {V(oacc,4)}")
    seq(f"v_mfma_f32_16x16x16_bf16 {V(oacc+4,4)}, {V(kvm+2,2)}, {V(vB1,2)}, {V(oacc+4,4)}")
    z = zero(accQ, 24)
    seq(f"v_rcp_f32 {V(tmp)}, {V(lacc)}", z[0:6])
    for i in range(4):
        a(f"v_cndmask_b32 {V(oacc+i)}, {V(oacc+i)}, {V(oacc+4+i)}, {S(sPm,2)}")
    a(f"v_pk_mul_f32 {V(oacc,2)}, {V(oacc,2)}, {V(tmp,2)} op_sel_hi:[1,0]")
    a(f"v_pk_mul_f32 {V(oacc+2,2)}, {V(oacc+2,2)}, {V(tmp,2)} op_sel_hi:[1,0]")
    seq(cvt(tmp+2, oacc, oacc+1), cvt(tmp+3, oacc+2, oacc+3))
    a(f"ds_write_b64 {V(vL16)}, {V(tmp+2,2)} offset:{L_O + (w//2)*1024 + (w%2)*8}")
    seq(z[6:], zero(oacc, 8), lg(0))
    if prof:
        a(f"s_cmp_eq_u32 {S(sS)}, {cfg.get('snap', 41)}")
        a(f"s_cbranch_scc0 {P}_nd")
        for i in range(NST):
            a(f"s_mov_b32 {S(72 + i)}, {S(sT + 2*i)}")
        a(f"{P}_nd:")
    a("s_barrier")
    stamp(a, 'B4', prof)
    a(f"ds_read_b128 {V(of,4)}, {V(vL16)} offset:{L_O}")
    a(f"ds_read_b128 {V(of+4,4)}, {V(vL16)} offset:{L_O + 1024}")
    kvs = 0 if cfg.get('samekv') else 32*8192
    sal = [f"s_add_u32 {S(sKX)}, {S(sKX)}, {kvs}",
           f"s_add_u32 {S(sVX)}, {S(sVX)}, {kvs}",
           f"s_add_u32 {S(sS)}, {S(sS)}, 1",
           f"s_add_u32 {S(sM2r)}, {S(sM2r)}, 8192",
           f"s_and_b32 {S(sM2r)}, {S(sM2r)}, {~0x8000 & 0xffffffff:#x}",
           f"s_add_u32 {S(sWarm)}, {S(sWarm)}, {kvs}",
           f"s_add_u32 {S(sMG)}, {S(sMG)}, 8192",
           f"s_xor_b32 {S(sClr)}, {S(sM2w)}, 16384"]
    seq(stO[12:16], sal)
    wacc = [accQ + 4 * i for i in range(6)] + [oacc, oacc + 4]
    ms = [smf_s(wacc[T], of + 4 * ko, oblk(T, ko)) for T in range(8) for ko in range(2)]
    def ad(T): return padd(wacc[T])
    def pk(tt):
        r0, r1, r2, r3 = wacc[4*tt:4*tt+4]
        return [cvt(r0, r0, r1), f"v_bfi_b32 {V(r0)}, 1, {S(sTag)}, {V(r0)}", cvt(r0+1, r0+1, r1+1), cvt(r0+2, r2, r3), cvt(r0+3, r2+1, r3+1),
                f"buffer_store_dwordx4 {V(r0,4)}, {V(vP1st)}, {S(sSRD,4)}, {S(sP1st if tt == 0 else sP1st2)} offen {st}"]
    p0, p1 = pk(0), pk(1)
    seq(lg(5), ms[0], ms[2], lg(4), ms[1], ms[3], ms[4], ad(0)[0], ms[5], ad(1)[0], ms[6], ad(0)[1], ms[7], ad(1)[1])
    seq(ms[8], p0[0], ad(2)[0], ms[9], ad(2)[1], ad(3), p0[1:5], ms[10], p0[5])
    stamp(a, 'st0', prof)
    seq(ms[11], ad(4)[0], ms[12], ad(4)[1], ms[13], lg(0), ad(5)[0], ms[14], ad(5)[1], ms[15], p1[0:3], ad(6), ad(7), p1[3:6])
    stamp(a, 'st1', prof)
    fillers = stQ + zero(accQ, 24) + [f"s_xor_b32 {S(sP1st)}, {S(sP1st)}, 262144", f"s_xor_b32 {S(sP1st2)}, {S(sP1st2)}, 262144"]
    early = w < 2
    cuts = list(cfg.get('e', [0, 10, 18, 32, 32]) if early else cfg.get('l', [16, 24, 32, 32, 32]))
    pads = list(cfg.get('pe', [8, 0, 4, 4, 4]) if early else cfg.get('pl', [14, 0, 0, 0, 4]))
    def pad(n): return ["s_nop 3"] * n
    pA, pB = poll_ops(56, 8, sP1ld), poll_ops(vVx, 8, sP1ld)
    seq(fillers[:cuts[0]], pad(pads[0]), pA, fillers[cuts[0]:cuts[1]], pad(pads[1]), pB, fillers[cuts[1]:cuts[2]])
    stamp(a, 'p1beg', prof)
    def red(r): return [f"v_mfma_f32_16x16x32_bf16 {V(48,4)}, {V(vSel,4)}, {V(r,4)}, 0",
                        f"v_mfma_f32_16x16x32_bf16 {V(48,4)}, {V(vSel,4)}, {V(r+4,4)}, {V(48,4)}"]
    def tck(r): return [f"v_and_b32 {V(vWarm)}, 1, {V(r)}", f"v_and_b32 {V(vB0)}, 1, {V(r+4)}",
                        f"v_add_u32 {V(vWarm)}, {V(vWarm)}, {V(vB0)}", f"v_cmp_ne_u32 vcc, {S(sTag2)}, {V(vWarm)}"]
    seq(vm(3), red(56)[0], vm(2), red(56)[1])
    stamp(a, 'p1A', prof)
    seq(tck(56))
    a(f"s_cbranch_vccnz {P}_p1")
    a(f"{P}_p1_ok:")
    tail += [f"{P}_p1:"] + pA + [vm(2)] + red(vVx) + tck(vVx) + [f"s_cbranch_vccz {P}_p1_ok"]
    tail += [f"{P}_p1l:"] + spin(f"{P}_p1_to") + slp + pB + [vm(2)] + red(56) + tck(56) + [f"s_cbranch_vccz {P}_p1_ok"]
    tail += slp + pA + [vm(2)] + red(vVx) + tck(vVx) + [f"s_cbranch_vccnz {P}_p1l", f"s_branch {P}_p1_ok"]
    tail += [f"{P}_p1_to:", f"s_mov_b32 {S(sSpin)}, 0", f"s_branch {P}_p1_ok"]
    stamp(a, 'p1ok', prof)
    fin = [f"v_add_f32_dpp {V(48)}, {V(48)}, {V(48)} row_ror:4 row_mask:0xf bank_mask:0xf",
           f"v_add_f32_dpp {V(49)}, {V(49)}, {V(49)} row_ror:4 row_mask:0xf bank_mask:0xf",
           f"v_add_f32_dpp {V(48)}, {V(48)}, {V(48)} row_ror:8 row_mask:0xf bank_mask:0xf",
           f"v_add_f32_dpp {V(49)}, {V(49)}, {V(49)} row_ror:8 row_mask:0xf bank_mask:0xf",
           cvt(vPub, 48, 49)]
    seq(f"s_cmp_eq_u32 {S(sS)}, 63", f"s_cbranch_scc1 {P}_fin")
    if not early: seq(peA)
    seq(fin)
    a(f"buffer_store_dword {V(vPub)}, {V(vM2st)}, {S(sSRD,4)}, {S(sM2w)} offen {st}")
    stamp(a, 'st2', prof)
    post = [f"s_add_u32 {S(sM2w)}, {S(sM2w)}, 8192", f"s_and_b32 {S(sM2w)}, {S(sM2w)}, {~0x8000 & 0xffffffff:#x}",
            f"s_xor_b32 {S(sP1ld)}, {S(sP1ld)}, 262144", f"s_and_b32 {S(sTag2)}, {S(sS)}, 2", f"s_lshr_b32 {S(sTag)}, {S(sTag2)}, 1"]
    seq(fillers[cuts[2]:cuts[3]], post, pad(pads[2]))
    if early: seq(peA)
    seq(fillers[cuts[3]:cuts[4]], pad(pads[3]), peB, fillers[cuts[4]:], pad(pads[4]), peC)
    a(f"s_branch {P}_top")
    seq(tail)
    a(f"{P}_fin:")
    seq(fin)
    a(f"buffer_store_dword {V(vPub)}, {V(vM2st)}, {S(sSRD,4)}, {S(sMG)} offen sc1")

def rec_setup_consts(a, w):
    t0, t1, t2 = 16, 17, 18
    a(f"v_and_b32 {V(t0)}, 15, v0")
    a(f"v_lshrrev_b32 {V(t1)}, 4, v0")
    a(f"v_lshlrev_b32 {V(vL16)}, 4, v0")
    a(f"v_add_u32 {V(vWl)}, {L_W + w*WREG}, {V(vL16)}")
    a(f"v_and_b32 {V(t2)}, 2, {V(t0)}")
    a(f"v_mov_b32 {V(vIdx)}, 0x4444")
    a(f"v_mov_b32 {V(vWarm)}, 0xeeee")
    a(f"v_cmp_eq_u32 vcc, 2, {V(t2)}")
    a(f"v_cndmask_b32 {V(vIdx)}, {V(vIdx)}, {V(vWarm)}, vcc")
    a(f"s_mov_b64 {S(sPm,2)}, vcc")
    a(f"v_mul_u32_u24 {V(vQKw)}, {2*RS}, {V(t1)}")
    a(f"v_lshl_add_u32 {V(vQKw)}, {V(t0)}, 2, {V(vQKw)}")
    a(f"v_add_u32 {V(vQKw)}, {L_Q + 64*w}, {V(vQKw)}")
    a(f"v_lshrrev_b32 {V(t2)}, 2, {V(t0)}")
    a(f"v_lshlrev_b32 {V(t2)}, 1, {V(t2)}")
    a(f"v_and_b32 {V(vQKr)}, 1, {V(t0)}")
    a(f"v_add_u32 {V(t2)}, {V(t2)}, {V(vQKr)}")
    a(f"v_mul_u32_u24 {V(vQKr)}, {RS}, {V(t2)}")
    a(f"v_lshl_add_u32 {V(vQKr)}, {V(t1)}, 4, {V(vQKr)}")
    a(f"v_add_u32 {V(vQKr)}, {L_Q}, {V(vQKr)}")
    a(f"v_lshlrev_b32 {V(vP1st)}, 14, {V(t1)}")
    a(f"v_lshrrev_b32 {V(t2)}, 3, {V(t0)}")
    a(f"v_lshl_add_u32 {V(vP1st)}, {V(t2)}, 13, {V(vP1st)}")
    a(f"v_bfe_u32 {V(t2)}, {V(t0)}, 2, 1")
    a(f"v_lshl_add_u32 {V(vP1st)}, {V(t2)}, 11, {V(vP1st)}")
    a(f"v_and_b32 {V(t2)}, 3, {V(t0)}")
    a(f"v_lshl_add_u32 {V(vP1st)}, {V(t2)}, 4, {V(vP1st)}")
    a(f"v_lshlrev_b32 {V(vM2st)}, 4, {V(t1)}")
    a(f"v_lshl_add_u32 {V(vM2st)}, {V(t0)}, 2, {V(vM2st)}")
    a(f"v_mov_b32 {V(vWarm)}, 0x40000000")
    a(f"v_cmp_gt_u32 vcc, 4, {V(t0)}")
    a(f"v_cndmask_b32 {V(vM2st)}, {V(vWarm)}, {V(vM2st)}, vcc")
    for r in range(4):
        a(f"v_mov_b32 {V(vSel+r)}, 0")
        a(f"v_mov_b32 {V(vWarm)}, 0x3f80")
        a(f"v_cmp_eq_u32 vcc, {4*r}, {V(t0)}")
        a(f"v_cndmask_b32 {V(vSel+r)}, {V(vSel+r)}, {V(vWarm)}, vcc")
        a(f"v_mov_b32 {V(vWarm)}, 1.0")
        a(f"v_cmp_eq_u32 vcc, {4*r+1}, {V(t0)}")
        a(f"v_cndmask_b32 {V(vSel+r)}, {V(vSel+r)}, {V(vWarm)}, vcc")
    for r in range(4): a(f"v_mov_b32 {V(vB0+r)}, 0")
    a(f"s_mov_b32 {S(sS)}, 0")
    a(f"s_mov_b32 {S(sM2r)}, {M2B + w*2048}")
    a(f"s_lshl_b32 {S(sTmp)}, {S(sH)}, 13")
    a(f"s_add_u32 {S(sKX)}, {S(sTmp)}, {KXB + w*2048}")
    a(f"s_add_u32 {S(sVX)}, {S(sTmp)}, {VXB + w*2048}")
    a(f"s_add_u32 {S(sWarm)}, {S(sTmp)}, {(KXB if w < 2 else VXB) + (w%2)*4096 + (2 if w < 2 else 1)*32*8192}")
    a(f"s_add_u32 {S(sP1ld)}, {S(sTmp)}, {P1B + w*2048}")
    a(f"s_lshr_b32 {S(sTmp)}, {S(sH)}, 4")
    a(f"s_lshl_b32 {S(sP1st)}, {S(sTmp)}, 10")
    a(f"s_and_b32 {S(sTmp)}, {S(sH)}, 3")
    a(f"s_lshl_b32 {S(sTmp)}, {S(sTmp)}, 8")
    a(f"s_add_u32 {S(sP1st)}, {S(sP1st)}, {S(sTmp)}")
    a(f"s_and_b32 {S(sTmp)}, {S(sH)}, 12")
    a(f"s_lshl_b32 {S(sTmp)}, {S(sTmp)}, 4")
    a(f"s_add_u32 {S(sP1st)}, {S(sP1st)}, {S(sTmp)}")
    a(f"s_add_u32 {S(sP1st)}, {S(sP1st)}, {P1B + 8*w*8192}")
    a(f"s_add_u32 {S(sP1st2)}, {S(sP1st)}, 4096")
    a(f"s_lshr_b32 {S(sTmp)}, {S(sH)}, 3")
    a(f"s_lshl_b32 {S(sM2w)}, {S(sTmp)}, 11")
    a(f"s_and_b32 {S(sTmp)}, {S(sH)}, 6")
    a(f"s_lshl_b32 {S(sTmp)}, {S(sTmp)}, 5")
    a(f"s_add_u32 {S(sM2w)}, {S(sM2w)}, {S(sTmp)}")
    a(f"s_and_b32 {S(sTmp)}, {S(sH)}, 1")
    a(f"s_lshl_b32 {S(sTmp)}, {S(sTmp)}, 9")
    a(f"s_add_u32 {S(sM2w)}, {S(sM2w)}, {S(sTmp)}")
    a(f"s_add_u32 {S(sM2w)}, {S(sM2w)}, {M2B + 1024*(w//2) + 256*(w%2)}")
    a(f"s_mov_b32 {S(sSpin)}, {SPIN_MAX}")
    a(f"s_mov_b32 {S(sTag)}, 0")
    a(f"s_mov_b32 {S(sTag2)}, 0")
    a(f"s_add_u32 {S(sClr)}, {S(sM2w)}, 16384")
    a(f"s_add_u32 {S(sMG)}, {S(sM2w)}, {MGB - M2B}")
    a(f"s_mov_b32 {S(sReady)}, 0")
    import struct
    c = struct.unpack('<I', struct.pack('<f', 128 ** -0.5 * math.log2(math.e)))[0]
    a(f"s_mov_b32 {S(sC)}, {c:#x}")
    a(f"s_mov_b32 {S(sC+1)}, {c:#x}")
    a(f"s_mov_b32 {S(sOne)}, 0x3f803f80")
    a(f"s_mov_b32 {S(sOne+1)}, 0x3f803f80")


def rec_clear(a, w):
    for i in range(4): a(f"v_mov_b32 {V(52+i)}, -1")
    for sl in range(2):
        a(f"s_add_u32 {S(sTmp)}, {S(sP1ld)}, {sl*262144}")
        a(f"buffer_store_dwordx4 {V(52,4)}, {V(vL16)}, {S(sSRD,4)}, {S(sTmp)} offen sc1")
        a(f"buffer_store_dwordx4 {V(52,4)}, {V(vL16)}, {S(sSRD,4)}, {S(sTmp)} offen offset:1024 sc1")
    a(f"s_lshl_b32 {S(sTmp)}, {S(sH)}, 14")
    a(f"s_add_u32 {S(sTmp)}, {S(sTmp)}, {MGB + w*4096}")
    for i in range(4):
        a(f"buffer_store_dwordx4 {V(52,4)}, {V(vL16)}, {S(sSRD,4)}, {S(sTmp)} offen offset:{1024*i} sc1")
    for sl in range(4):
        a(f"s_add_u32 {S(sTmp)}, {S(sM2w)}, {sl*8192}")
        a(f"buffer_store_dword {V(52)}, {V(vM2st)}, {S(sSRD,4)}, {S(sTmp)} offen sc1")

def rec_load_weights(a, w, sArg, lane):
    sq, sk, sv, so = 32, 36, 40, 44
    a(f"s_load_dwordx2 {S(sq,2)}, {S(sArg,2)}, 16")
    a(f"s_load_dwordx2 {S(sk,2)}, {S(sArg,2)}, 24")
    a(f"s_load_dwordx2 {S(sv,2)}, {S(sArg,2)}, 32")
    a(f"s_load_dwordx2 {S(so,2)}, {S(sArg,2)}, 40")
    for r in (sq, sk, sv, so):
        a(f"s_mov_b32 {S(r+2)}, {4 << 20}")
        a(f"s_mov_b32 {S(r+3)}, 0x20000")
    va, vb, ra, rb, t0, t1 = 16, 17, 18, 19, 21, 22
    base = L_W + w * WREG
    a(f"v_lshrrev_b32 {V(va)}, 2, {V(lane)}")
    a(f"v_lshlrev_b32 {V(va)}, 13, {V(va)}")
    a(f"v_and_b32 {V(t0)}, 3, {V(lane)}")
    a(f"v_lshl_add_u32 {V(va)}, {V(t0)}, 4, {V(va)}")
    a(f"v_lshrrev_b32 {V(vb)}, 3, {V(lane)}")
    a(f"v_lshlrev_b32 {V(vb)}, 10, {V(vb)}")
    a(f"v_and_b32 {V(t1)}, 7, {V(lane)}")
    a(f"v_lshl_add_u32 {V(vb)}, {V(t1)}, 4, {V(vb)}")
    a(f"v_lshlrev_b32 {V(ra)}, 3, {V(t0)}")
    a(f"v_add_u32 {V(ra)}, {base}, {V(ra)}")
    a(f"v_mov_b32 {V(rb)}, {V(ra)}")
    a(f"v_bfe_u32 {V(t1)}, {V(lane)}, 2, 2")
    a(f"v_lshl_add_u32 {V(ra)}, {V(t1)}, 10, {V(ra)}")
    a(f"v_lshrrev_b32 {V(t1)}, 4, {V(lane)}")
    a(f"v_lshl_add_u32 {V(ra)}, {V(t1)}, 7, {V(ra)}")
    for bit, sh in ((4, 12), (3, 11), (5, 9), (2, 7)):
        a(f"v_bfe_u32 {V(t1)}, {V(lane)}, {bit}, 1")
        a(f"v_lshl_add_u32 {V(rb)}, {V(t1)}, {sh}, {V(rb)}")
    s1, s2 = 48, 49
    a(f"s_lshl_b32 {S(s1)}, {S(sH)}, 8")
    a(f"s_add_u32 {S(s1)}, {S(s1)}, {64*w}")
    a(f"s_lshl_b32 {S(s2)}, {S(sH)}, 17")
    a(f"s_add_u32 {S(s2)}, {S(s2)}, {256*w}")
    a("s_waitcnt lgkmcnt(0)")
    HO = [0, 9 * 2048]
    order = korder(w)
    def dma_qkv(srd, kss, half):
        for n, ks in enumerate(kss):
            for j in range(4):
                a(f"s_mov_b32 m0, {base + HO[half] + n*4096 + j*1024}")
                a(f"s_add_u32 {S(sTmp)}, {S(s1)}, {(64*ks + 16*j) * 8192}")
                a(f"buffer_load_dwordx4 {V(va)}, {S(srd,4)}, {S(sTmp)} offen lds")
    def dma_wo(tt, half):
        for j in range(16):
            a(f"s_mov_b32 m0, {base + HO[half] + j*1024}")
            a(f"s_add_u32 {S(sTmp)}, {S(s2)}, {j*8192 + tt*128}")
            a(f"buffer_load_dwordx4 {V(vb)}, {S(so,4)}, {S(sTmp)} offen lds")
    def sub(blk, p2):
        k, b = blk[0], int(blk[2:].split(':')[0])
        return R(k, b + 2 * p2, 2)
    def rd_qkv(kss, half, dst):
        for n, ks in enumerate(kss):
            for t in range(2):
                for p2 in range(4):
                    a(f"ds_read_b64_tr_b16 {sub(dst(ks, t), p2)}, {V(ra)} offset:{HO[half] + n*4096 + (8*(p2//2) + p2%2)*64 + t*32}")
    def rd_wo(tt, half):
        for tp in range(4):
            for ko in range(2):
                for p2 in range(4):
                    a(f"ds_read_b64_tr_b16 {sub(oblk(4*tt+tp, ko), p2)}, {V(rb)} offset:{HO[half] + (64*ko + 8*(p2//2) + 2*(p2%2))*128 + tp*32}")
    def wb(slot0, x0, n):
        for i in range(n):
            for hf in range(2):
                a(f"ds_write_b128 {V(vWl)}, {V(X + 8*(x0+i) + 4*hf, 4)} offset:{(slot0+i)*2048 + hf*1024}")
    qd = lambda ks, t: qblk(w, ks, t)
    ph = [(lambda: dma_qkv(sk, [0,1,2,3], 0), lambda: rd_qkv([0,1,2,3], 0, kblk)),
          (lambda: dma_qkv(sk, [4,5,6,7], 1), lambda: rd_qkv([4,5,6,7], 1, kblk)),
          (lambda: dma_qkv(sv, [0,1,2,3], 0), lambda: rd_qkv([0,1,2,3], 0, vblk)),
          (lambda: dma_qkv(sv, [4,5,6,7], 1), lambda: rd_qkv([4,5,6,7], 1, vblk)),
          (lambda: dma_wo(0, 0), lambda: rd_wo(0, 0)),
          (lambda: dma_qkv(sq, order[4:], 1), lambda: rd_qkv(order[4:], 1, qd)),
          (lambda: dma_qkv(sq, order[:4], 0), lambda: rd_qkv(order[:4], 0, qd)),
          (lambda: dma_wo(1, 1), lambda: rd_wo(1, 1))]
    ph[0][0](); ph[1][0]()
    for i in range(8):
        a(f"s_waitcnt vmcnt({16 if i < 7 else 0})")
        ph[i][1]()
        a("s_waitcnt lgkmcnt(0)")
        if i == 5: wb(8, 8, 1)
        if i == 6: wb(0, 0, 8); a("s_waitcnt lgkmcnt(0)")
        if i == 7: wb(9, 0, 8); a("s_waitcnt lgkmcnt(0)")
        if i + 2 < 8: ph[i + 2][0]()

def rec_publish_m0(a, w, sMem, lane, st):
    a(f"v_and_b32 v21, 3, {V(lane)}")
    a(f"v_lshrrev_b32 v22, 4, {V(lane)}")
    a("v_and_b32 v23, 1, v22")
    a("v_lshlrev_b32 v23, 10, v23")
    a("v_lshrrev_b32 v22, 1, v22")
    a("v_lshl_add_u32 v23, v22, 6, v23")
    a("v_lshl_add_u32 v23, v21, 1, v23")
    a(f"s_and_b32 {S(sTmp)}, {S(sH)}, 6")
    a(f"s_lshl_b32 {S(sTmp)}, {S(sTmp)}, 10")
    a(f"s_lshr_b32 s48, {S(sH)}, 3")
    a(f"s_lshl_b32 s48, s48, 8")
    a(f"s_add_u32 {S(sTmp)}, {S(sTmp)}, s48")
    a(f"s_and_b32 s48, {S(sH)}, 1")
    a(f"s_lshl_b32 s48, s48, 4")
    a(f"s_add_u32 {S(sTmp)}, {S(sTmp)}, s48")
    a(f"s_add_u32 {S(sTmp)}, {S(sTmp)}, {128*(w//2) + 8*(w%2)}")
    a(f"v_add_u32 v23, {S(sTmp)}, v23")
    a(f"global_load_ushort v21, v23, {S(sMem,2)}")
    a(f"global_load_ushort v22, v23, {S(sMem,2)} offset:32")
    a("s_waitcnt vmcnt(0)")
    a(f"v_lshl_or_b32 {V(vPub)}, v22, 16, v21")
    a(f"buffer_store_dword {V(vPub)}, {V(vM2st)}, {S(sSRD,4)}, {S(sM2w)} offen {st}")
    a(f"s_add_u32 {S(sM2w)}, {S(sM2w)}, 8192")

def rec_role(a, sArg, sDbg, sW, sXcc, end, prof=0, cfg={}):
    L = a.newlabel("RR")
    sMem = 50
    if prof: a("s_memrealtime s[90:91]")
    a(f"s_load_dwordx2 {S(sMem,2)}, {S(sArg,2)}, 8")
    a(f"s_lshl_b32 {S(sTmp)}, {S(sH)}, 2")
    a(f"s_add_u32 {S(sTmp)}, {S(sTmp)}, {4*D_KV}")
    a(f"s_add_u32 {S(sFlag)}, {S(sDbg)}, {S(sTmp)}")
    a(f"s_addc_u32 {S(sFlag+1)}, {S(sDbg+1)}, 0")
    for w in range(1, 4):
        a(f"s_cmp_eq_u32 {S(sW)}, {w}")
        a(f"s_cbranch_scc1 {L}_w{w}")
    for w in range(4):
        a(f"{L}_w{w}:")
        a("v_mov_b32 v20, v0")
        rec_setup_consts(a, w)
        rec_clear(a, w)
        a("s_waitcnt vmcnt(0)")
        a("s_barrier")
        if w == 0:
            a(f"s_cmp_lg_u32 {S(sXcc)}, 0")
            a(f"s_cselect_b32 {S(sTmp)}, 0x10001, 1")
            a(f"v_mov_b32 v21, {S(sTmp)}")
            a(f"v_mov_b32 v22, {4*D_REC}")
            a("s_mov_b64 exec, 1")
            a(f"global_atomic_add v22, v21, {S(sDbg,2)}")
            a("s_mov_b64 exec, -1")
            a("s_waitcnt vmcnt(0)")
        rec_load_weights(a, w, sArg, 20)
        a(f"v_mov_b32 v22, {4*D_REC}")
        a(f"{L}_c{w}:")
        a(f"global_load_dword v21, v22, {S(sDbg,2)} sc1")
        a(f"s_sub_u32 {S(sSpin)}, {S(sSpin)}, 1")
        a(f"s_cbranch_scc1 {end}")
        a("s_waitcnt vmcnt(0)")
        a(f"v_readfirstlane_b32 {S(sTmp)}, v21")
        a(f"s_and_b32 s48, {S(sTmp)}, 0xffff")
        a(f"s_cmp_lt_u32 s48, 32")
        a(f"s_cbranch_scc1 {L}_c{w}")
        a(f"s_cmp_gt_u32 {S(sTmp)}, 0xffff")
        a(f"s_cbranch_scc1 {L}_s{w}")
        rec_publish_m0(a, w, sMem, 20, '')
        if prof:
            a("s_memtime s[68:69]\ns_memrealtime s[92:93]\ns_waitcnt lgkmcnt(0)")
        rec_loop(a, w, '', prof > 1, cfg=cfg)
        if prof:
            a("s_memtime s[70:71]\ns_memrealtime s[94:95]\ns_waitcnt lgkmcnt(0)")
            a("s_sub_u32 s88, s70, s68\ns_sub_u32 s89, s94, s92\ns_sub_u32 s90, s92, s90")
            a(f"s_mov_b32 s91, {S(sSpin)}")
            a(f"s_lshl_b32 s63, {S(sH)}, 9")
            a(f"s_add_u32 s63, s63, {PROFB + w*128}")
            a("v_mov_b32 v1, 0")
            a("s_mov_b32 s93, s68")
            for i in range(22):
                a(f"v_mov_b32 v2, {S(72+i)}")
                a(f"buffer_store_dword v2, v1, {S(sSRD,4)}, s63 offen offset:{4*i}")
        a(f"s_branch {end}")
        a(f"{L}_s{w}:")
        rec_publish_m0(a, w, sMem, 20, 'sc1')
        rec_loop(a, w, 'sc1', False, cfg=cfg)
        a(f"s_branch {end}")
```

```python
from asm import *
from layout import *
import struct, math
def f32bits(x): return struct.unpack('<I', struct.pack('<f', x))[0]
sWS = 4

def xlane_reduce16_32(a, op, r, t):
    for sw in ('v_permlane16_swap_b32', 'v_permlane32_swap_b32'):
        a(f"v_mov_b32 {V(t)}, {V(r)}")
        a(f"{sw} {V(r)}, {V(t)}")
        a(f"{op} {V(r)}, {V(r)}, {V(t)}")

def gate_role(a, sArg, sBlk, sW, st=''):
    L = a.newlabel("GT")
    sX, sG, sOff, sJ = 8, 12, 16, 17
    a(f"s_load_dwordx2 {S(sX,2)}, {S(sArg,2)}, 0")
    a(f"s_load_dwordx2 {S(sG,2)}, {S(sArg,2)}, 80")
    a(f"s_mov_b32 {S(sX+2)}, {2048*1024}")
    a(f"s_mov_b32 {S(sX+3)}, 0x20000")
    a(f"v_lshlrev_b32 v1, 4, v0")
    a(f"s_lshl_b32 {S(sOff)}, {S(sBlk)}, 2")
    a(f"s_add_u32 {S(sOff)}, {S(sOff)}, {S(sW)}")
    a(f"s_lshl_b32 s18, {S(sOff)}, 9")
    a(f"s_lshl_b32 {S(sOff)}, {S(sOff)}, 16")
    a("s_waitcnt lgkmcnt(0)")
    a(f"global_load_dwordx4 v[4:7], v1, {S(sG,2)}")
    a("s_waitcnt vmcnt(0)")
    for i in range(4):
        a(f"v_lshlrev_b32 {V(8+2*i)}, 16, {V(4+i)}")
        a(f"v_and_b32 {V(9+2*i)}, 0xffff0000, {V(4+i)}")
    a("v_mov_b32 v2, 0")
    a(f"s_mov_b32 {S(sJ)}, 0")
    a(f"{L}_loop:")
    for j in range(4):
        a(f"buffer_load_dwordx4 {V(32+4*j,4)}, v1, {S(sX,4)}, {S(sOff)} offen offset:{j*1024}")
    for j in range(4):
        a(f"s_waitcnt vmcnt({3-j})")
        for i in range(4):
            x = 32 + 4*j + i
            a(f"v_lshlrev_b32 v16, 16, {V(x)}")
            a(f"v_and_b32 v17, 0xffff0000, {V(x)}")
            a(f"v_mul_f32 v16, v16, {V(8+2*i)}")
            a(f"v_mul_f32 v17, v17, {V(9+2*i)}")
            a(f"v_cvt_pk_bf16_f32 v18, v16, v17")
            a(f"v_lshlrev_b32 v16, 16, v18")
            a(f"v_and_b32 v17, 0xffff0000, v18")
            if i == 0: a("v_add_f32 v19, v16, v17")
            else:
                a("v_add_f32 v19, v19, v16"); a("v_add_f32 v19, v19, v17")
        for ror in (1, 2, 4, 8):
            a(f"v_add_f32_dpp v19, v19, v19 row_ror:{ror} row_mask:0xf bank_mask:0xf")
        xlane_reduce16_32(a, "v_add_f32", 19, 20)
        a(f"v_cmp_eq_u32 vcc, {S(sJ)}, v0")
        a(f"v_cndmask_b32 v2, v2, v19, vcc")
        a(f"s_add_u32 {S(sJ)}, {S(sJ)}, 1")
    a(f"s_add_u32 {S(sOff)}, {S(sOff)}, 4096")
    a(f"s_cmp_lt_u32 {S(sJ)}, 64")
    a(f"s_cbranch_scc1 {L}_loop")
    a("v_cvt_pk_bf16_f32 v2, v2, v2")
    a("v_lshlrev_b32 v2, 16, v2")
    a(f"v_mul_f32 v2, {f32bits(-math.log2(math.e)):#x}, v2")
    a("v_exp_f32 v2, v2")
    a("v_add_f32 v2, 1.0, v2")
    a("v_rcp_f32 v2, v2")
    a("v_cvt_pk_bf16_f32 v2, v2, v2")
    a("v_lshlrev_b32 v2, 16, v2")
    a("v_sub_f32 v3, 1.0, v2")
    a("v_cvt_pk_bf16_f32 v3, v3, v3")
    a("v_lshlrev_b32 v3, 16, v3")
    a("v_lshlrev_b32 v1, 3, v0")
    a(f"s_add_u32 s18, s18, {GB}")
    a(f"buffer_store_dwordx2 v[2:3], v1, {S(sWS,4)}, s18 offen {st}")
    a("s_waitcnt vmcnt(0)")

def battn_role(a, sH, sPart, sW, ld='', st=''):
    L = a.newlabel("BA")
    NU = 3
    sT0, sMask, sI, sSeg = 16, 18, 20, 21
    vL16, vKa, vVa, vT = 1, 2, 3, 4
    Q = 8; KF = 20; VF = 28; PB = 44; NM = 64; OA = 112; SB = 160; MX = 208; GG = 216
    a(f"v_lshlrev_b32 {V(vL16)}, 4, v0")
    a(f"s_lshl_b32 {S(sT0)}, {S(sH)}, 16")
    a(f"s_lshl_b32 {S(sT0+1)}, {S(sW)}, 14")
    a(f"s_add_u32 {S(sT0)}, {S(sT0)}, {S(sT0+1)}")
    for m, base in ((0, KBB), (1, VBB)):
        for j in range(4):
            a(f"s_add_u32 m0, {S(sT0+1)}, {m*65536 + j*4096}")
            a(f"s_add_u32 {S(sI)}, {S(sT0)}, {base + j*4096}")
            for i in range(4):
                a(f"buffer_load_dwordx4 {V(vL16)}, {S(sWS,4)}, {S(sI)} offen offset:{i*1024} {ld} lds")
        if m == 0:
            a(f"s_mul_i32 {S(sSeg)}, {S(sPart)}, 12")
            a(f"s_mul_i32 {S(sI)}, {S(sW)}, 3")
            a(f"s_add_u32 {S(sSeg)}, {S(sSeg)}, {S(sI)}")
            a(f"v_and_b32 {V(vT)}, 31, v0")
            a(f"v_lshlrev_b32 {V(vT)}, 3, {V(vT)}")
            for u in (2, 1, 0):
                a(f"s_add_u32 {S(sSeg+u)}, {S(sSeg)}, {u}")
                a(f"s_min_u32 {S(sSeg+u)}, {S(sSeg+u)}, 63")
            for u in range(NU):
                a(f"s_lshl_b32 {S(sI)}, {S(sH)}, 6")
                a(f"s_add_u32 {S(sI)}, {S(sI)}, {S(sSeg+u)}")
                a(f"s_lshl_b32 {S(sI)}, {S(sI)}, 10")
                a(f"s_add_u32 {S(sI)}, {S(sI)}, {QBB}")
                a(f"buffer_load_dwordx4 {V(Q+4*u,4)}, {V(vL16)}, {S(sWS,4)}, {S(sI)} offen {ld}")
                a(f"s_lshl_b32 {S(sI)}, {S(sSeg+u)}, 8")
                a(f"s_add_u32 {S(sI)}, {S(sI)}, {GB}")
                a(f"buffer_load_dword {V(GG+u)}, {V(vT)}, {S(sWS,4)}, {S(sI)} offen offset:4 {ld}")
    a(f"s_mov_b32 {S(sMask)}, 0xffff")
    a(f"s_mov_b32 {S(sMask+1)}, 0xffff")
    a(f"v_lshrrev_b32 {V(vVa)}, 5, v0")
    a(f"v_lshlrev_b32 {V(vVa)}, 8, {V(vVa)}")
    a(f"v_and_b32 {V(vT)}, 15, v0")
    a(f"v_lshl_add_u32 {V(vVa)}, {V(vT)}, 4, {V(vVa)}")
    a(f"v_add_u32 {V(vVa)}, 65536, {V(vVa)}")
    for i in range(16): a(f"v_mov_b32 {V(VF+i)}, 0x3f803f80")
    for u in range(NU):
        a(f"v_mov_b32 {V(MX+2*u)}, 0xff800000"); a(f"v_mov_b32 {V(MX+2*u+1)}, 0xff800000")
        for i in range(0, 16, 2): a(f"v_mov_b64 {V(OA+16*u+i,2)}, 0")
    a("s_waitcnt vmcnt(16)")
    a("s_barrier")
    a(f"v_mov_b32 {V(vKa)}, {V(vL16)}")
    a(f"ds_read_b128 {V(KF,4)}, {V(vKa)}")
    a(f"ds_read_b128 {V(KF+4,4)}, {V(vKa)} offset:1024")
    a(f"s_mov_b32 {S(sI)}, 0")
    def smf(u, kf, c): return f"v_mfma_f32_32x32x16_bf16 {V(SB+16*u,16)}, {V(kf,4)}, {V(Q+4*u,4)}, {c}"
    def mx(u):
        b = SB + 16 * u
        return [f"v_max3_f32 {V(MX+2*u+(i%2))}, {V(MX+2*u+(i%2))}, {V(b+2*i)}, {V(b+2*i+1)}" for i in range(8)]
    a("s_waitcnt lgkmcnt(1)")
    a(smf(0, KF, "0")); a(smf(1, KF, "0"))
    a(f"{L}_p1:")
    for par in range(2):
        kc, kn = KF + 4 * par, KF + 4 * (1 - par)
        a(smf(2, kc, "0"))
        a(f"ds_read_b128 {V(kc,4)}, {V(vKa)} offset:{2048 + 1024*par}")
        for x in mx(0): a(x)
        a("s_waitcnt lgkmcnt(1)")
        a(smf(0, kn, "0"))
        for x in mx(1): a(x)
        a(smf(1, kn, "0"))
        for x in mx(2): a(x)
    a(f"v_add_u32 {V(vKa)}, 2048, {V(vKa)}")
    a(f"s_add_u32 {S(sI)}, {S(sI)}, 2")
    a(f"s_cmp_lt_u32 {S(sI)}, 64")
    a(f"s_cbranch_scc1 {L}_p1")
    for u in range(NU):
        a(f"v_max_f32 {V(MX+2*u)}, {V(MX+2*u)}, {V(MX+2*u+1)}")
        a(f"v_mov_b32 {V(MX+2*u+1)}, {V(MX+2*u)}")
        a(f"v_permlane32_swap_b32 {V(MX+2*u)}, {V(MX+2*u+1)}")
        a(f"v_max_f32 {V(MX+2*u)}, {V(MX+2*u)}, {V(MX+2*u+1)}")
        for i in range(16): a(f"v_sub_f32 {V(NM+16*u+i)}, 0, {V(MX+2*u)}")
    a("s_waitcnt vmcnt(0) lgkmcnt(0)")
    a("s_barrier")
    def rdV(par, off):
        return [f"s_mov_b64 exec, {S(sMask,2)}",
                f"ds_read_b128 {V(VF+8*par,4)}, {V(vVa)} offset:{off}",
                f"ds_read_b128 {V(VF+8*par+4,4)}, {V(vVa)} offset:{off+512}",
                "s_mov_b64 exec, -1"]
    a(f"v_mov_b32 {V(vKa)}, {V(vL16)}")
    a(f"ds_read_b128 {V(KF,4)}, {V(vKa)}")
    a(f"ds_read_b128 {V(KF+4,4)}, {V(vKa)} offset:1024")
    for x in rdV(0, 0): a(x)
    for i in range(8): a(f"v_mov_b32 {V(PB+8+i)}, 0")
    a(f"s_mov_b32 {S(sI)}, 0")
    a("s_waitcnt lgkmcnt(0)")
    def smf2(u, kf): return smf(u, kf, V(NM+16*u, 16))
    def pv(u, vpar, pb, h): return f"v_mfma_f32_32x32x16_bf16 {V(OA+16*u,16)}, {V(VF+8*vpar+4*h,4)}, {V(PB+8*pb+4*h,4)}, {V(OA+16*u,16)}"
    a(smf2(0, KF)); a(smf2(1, KF))
    a(f"{L}_p2:")
    n = 0
    for par in range(2):
        kc, kn = KF + 4 * par, KF + 4 * (1 - par)
        for u in range(NU):
            b = SB + 16 * u
            pb = n % 2
            pu = (u - 1) % NU
            pvpar = par if u > 0 else 1 - par
            if u == 0: a(smf2(2, kc)); a(f"ds_read_b128 {V(kc,4)}, {V(vKa)} offset:{2048 + 1024*par}")
            elif u == 1: a("s_waitcnt lgkmcnt(3)"); a(smf2(0, kn))
            else: a(smf2(1, kn))
            for i in range(16):
                a(f"v_exp_f32 {V(b+i)}, {V(b+i)}")
                if i == 4: a(pv(pu, pvpar, 1 - pb, 0))
                if i == 9:
                    a(pv(pu, pvpar, 1 - pb, 1))
                    if u == 0:
                        for x in rdV(1 - par, 1024 + 1024 * par): a(x)
                if i >= 3 and i % 2 == 1: a(f"v_cvt_pk_bf16_f32 {V(PB+8*pb+(i-3)//2)}, {V(b+i-3)}, {V(b+i-2)}")
            a(f"v_cvt_pk_bf16_f32 {V(PB+8*pb+7)}, {V(b+14)}, {V(b+15)}")
            n += 1
    a(f"v_add_u32 {V(vKa)}, 2048, {V(vKa)}")
    a(f"v_add_u32 {V(vVa)}, 2048, {V(vVa)}")
    a(f"s_add_u32 {S(sI)}, {S(sI)}, 2")
    a(f"s_cmp_lt_u32 {S(sI)}, 64")
    a(f"s_cbranch_scc1 {L}_p2")
    a(pv(2, 1, 1, 0)); a(pv(2, 1, 1, 1))
    for u in range(NU):
        o = OA + 16 * u
        a(f"v_rcp_f32 {V(vT)}, {V(o+8)}")
        a(f"v_mul_f32 {V(vT)}, {V(vT)}, {V(GG+u)}")
        for i in range(8): a(f"v_mul_f32 {V(o+i)}, {V(o+i)}, {V(vT)}")
        for i in range(4): a(f"v_cvt_pk_bf16_f32 {V(o+8+i)}, {V(o+2*i)}, {V(o+2*i+1)}")
        a(f"s_mul_i32 {S(sI)}, {S(sSeg+u)}, 288")
        a(f"s_add_u32 {S(sI)}, {S(sI)}, {S(sH)}")
        a(f"s_lshl_b32 {S(sI)}, {S(sI)}, 10")
        a(f"s_add_u32 {S(sI)}, {S(sI)}, {OXB + 256*1024}")
        a(f"buffer_store_dwordx4 {V(o+8,4)}, {V(vL16)}, {S(sWS,4)}, {S(sI)} offen {st}")
    a("s_waitcnt vmcnt(0) lgkmcnt(0)")

T5_MASK = 24
def t5_setup(a):
    a("v_lshlrev_b32 v1, 4, v0")
    a("v_lshlrev_b32 v2, 3, v0")
    a("v_and_b32 v5, 15, v0")
    a("v_lshlrev_b32 v3, 3, v5")
    a("v_lshrrev_b32 v6, 4, v0")
    a("v_lshlrev_b32 v4, 9, v6")
    a("v_lshl_add_u32 v4, v5, 4, v4")
    for r in range(4):
        a(f"v_lshl_add_u32 v7, v6, 2, {r}")
        a(f"v_cmp_le_u32 {S(T5_MASK+2*r,2)}, v7, v5")
    a(f"s_mov_b32 s22, {f32bits(128 ** -0.5 * math.log2(math.e)):#x}")
    a("v_mov_b32 v5, 0xf149f2ca")
    a("v_mov_b32 v9, 0"); a("v_mov_b32 v10, 0")

def t5_loads_a(a, sS, sH, ld=''):
    Q, K, VV_, KM, VM, G = 16, 48, 80, 112, 128, 136
    a(f"s_lshl_b32 s16, {S(sS)}, 5")
    a(f"s_add_u32 s16, s16, {S(sH)}")
    a(f"s_lshl_b32 s17, s16, 13")
    for base, reg in ((QXB, Q), (KXB, K), (VXB, VV_)):
        for half in range(2):
            a(f"s_add_u32 s18, s17, {base + half*4096}")
            for i in range(4):
                a(f"buffer_load_dwordx4 {V(reg+16*half+4*i,4)}, v1, {S(sWS,4)}, s18 offen offset:{i*1024} {ld}")
    a(f"s_lshl_b32 s18, {S(sS)}, 8")
    a(f"s_add_u32 s18, s18, {GB}")
    a(f"buffer_load_dword {V(G)}, v3, {S(sWS,4)}, s18 offen {ld}")
    a(f"buffer_load_dword {V(G+1)}, v3, {S(sWS,4)}, s18 offen offset:128 {ld}")

def t5_loads_b(a, ld=''):
    KM, VM = 112, 128
    a(f"s_add_u32 s18, s17, {KVMB}")
    for i in range(4):
        a(f"buffer_load_dwordx4 {V(KM+4*i,4)}, v1, {S(sWS,4)}, s18 offen offset:{i*1024} {ld}")
    a(f"s_add_u32 s18, s18, 4096")
    for i in range(4):
        a(f"buffer_load_dwordx2 {V(VM+2*i,2)}, v1, {S(sWS,4)}, s18 offen offset:{i*1024} {ld}")

def t5_compute(a, sS, sH, st=''):
    Q, K, VV_, KM, VM, G = 16, 48, 80, 112, 128, 136
    Sm, S0, S1, PF, T, O = 140, 144, 148, 152, 156, 160
    B0, B1 = 8, 10
    a(f"s_mul_i32 s18, {S(sS)}, 288")
    a(f"s_lshl_b32 s19, {S(sH)}, 3")
    a(f"s_add_u32 s18, s18, s19")
    a(f"s_lshl_b32 s18, s18, 10")
    a(f"s_add_u32 s18, s18, {OXB}")
    a(f"s_add_u32 s19, s18, 4096")
    a("s_waitcnt vmcnt(0)")
    def mf(d, x, y, first): return f"v_mfma_f32_16x16x32_bf16 {V(d,4)}, {V(x,4)}, {V(y,4)}, {'0' if first else V(d,4)}"
    for qt in range(2):
        for kk in range(4):
            q = Q + 16 * qt + 4 * kk
            a(mf(Sm, KM + 4*kk, q, kk == 0))
            a(mf(S0, K + 4*kk, q, kk == 0))
            if qt == 1: a(mf(S1, K + 16 + 4*kk, q, kk == 0))
        dg = S0 if qt == 0 else S1
        for r in range(4):
            a(f"v_cndmask_b32 {V(dg+r)}, v5, {V(dg+r)}, {S(T5_MASK+2*r,2)}")
        ev = [Sm, Sm+1, S0, S0+1, S0+2, S0+3] + ([S1, S1+1, S1+2, S1+3] if qt else [])
        a(f"v_max3_f32 {V(T)}, {V(Sm)}, {V(Sm+1)}, {V(S0)}")
        a(f"v_max3_f32 {V(T)}, {V(T)}, {V(S0+1)}, {V(S0+2)}")
        if qt:
            a(f"v_max3_f32 {V(T)}, {V(T)}, {V(S0+3)}, {V(S1)}")
            a(f"v_max3_f32 {V(T)}, {V(T)}, {V(S1+1)}, {V(S1+2)}")
            a(f"v_max_f32 {V(T)}, {V(T)}, {V(S1+3)}")
        else:
            a(f"v_max_f32 {V(T)}, {V(T)}, {V(S0+3)}")
        xlane_reduce16_32(a, "v_max_f32", T, T+1)
        a(f"v_mul_f32 {V(T)}, s22, {V(T)}")
        for r in ev: a(f"v_fma_f32 {V(r)}, {V(r)}, s22, -{V(T)}")
        for r in ev: a(f"v_exp_f32 {V(r)}, {V(r)}")
        a(f"v_cvt_pk_bf16_f32 {V(B0)}, {V(Sm)}, {V(Sm+1)}")
        a(f"v_cvt_pk_bf16_f32 {V(B1+1)}, {V(Sm)}, {V(Sm+1)}")
        a(f"v_cvt_pk_bf16_f32 {V(PF)}, {V(S0)}, {V(S0+1)}")
        a(f"v_cvt_pk_bf16_f32 {V(PF+1)}, {V(S0+2)}, {V(S0+3)}")
        if qt:
            a(f"v_cvt_pk_bf16_f32 {V(PF+2)}, {V(S1)}, {V(S1+1)}")
            a(f"v_cvt_pk_bf16_f32 {V(PF+3)}, {V(S1+2)}, {V(S1+3)}")
        else:
            a(f"v_mov_b64 {V(PF+2,2)}, 0")
        for e in range(8):
            a(mf(O + 4*e, VV_ + 4*e, PF, True))
        for e in range(8):
            a(f"v_mfma_f32_16x16x16_bf16 {V(O+4*e,4)}, {V(VM+2*(e//2),2)}, {V(B0 if e%2==0 else B1,2)}, {V(O+4*e,4)}")
        a(f"v_add_f32 {V(T)}, {V(ev[0])}, {V(ev[1])}")
        for r in ev[2:]: a(f"v_add_f32 {V(T)}, {V(T)}, {V(r)}")
        xlane_reduce16_32(a, "v_add_f32", T, T+1)
        a(f"v_rcp_f32 {V(T)}, {V(T)}")
        a(f"v_mul_f32 {V(T)}, {V(T)}, {V(G+qt)}")
        for u in range(4):
            o = O + 8 * u
            for i in range(8): a(f"v_mul_f32 {V(o+i)}, {V(o+i)}, {V(T)}")
            d = 192 + 4 * u + 16 * qt
            for i in range(4): a(f"v_cvt_pk_bf16_f32 {V(d+i)}, {V(o+2*i)}, {V(o+2*i+1)}")
            a(f"buffer_store_dwordx4 {V(d,4)}, v4, {S(sWS,4)}, {'s18' if u < 2 else 's19'} offen offset:{(u%2)*2048 + qt*256} {st}")

def t6_wreg(i): return A(4*i, 4) if i < 64 else V(224 + 4*(i-64), 4)
def t6_wreg2(i, hf): return A(4*i + 2*hf, 2) if i < 64 else V(224 + 4*(i-64) + 2*hf, 2)
def t6_setup(a, sArg, sN, sW):
    L = a.newlabel("T6")
    a(f"s_load_dwordx2 s[8:9], {S(sArg,2)}, 40")
    a(f"s_load_dwordx2 s[12:13], {S(sArg,2)}, 72")
    a(f"s_mov_b32 s10, {4096*1024}\ns_mov_b32 s11, 0x20000\ns_mov_b32 s14, {512*1024}\ns_mov_b32 s15, 0x20000")
    a("v_lshlrev_b32 v1, 4, v0")
    a("v_lshrrev_b32 v2, 2, v0\nv_lshlrev_b32 v2, 10, v2\nv_and_b32 v3, 3, v0\nv_lshl_add_u32 v2, v3, 4, v2")
    a(f"s_lshl_b32 s16, {S(sN)}, 6")
    a("v_add_u32 v2, s16, v2")
    a(f"s_mul_i32 s17, {S(sW)}, 36864")
    a("v_lshrrev_b32 v4, 5, v0\nv_lshlrev_b32 v4, 8, v4\nv_bfe_u32 v5, v0, 2, 2\nv_lshl_add_u32 v4, v5, 6, v4")
    a("v_bfe_u32 v5, v0, 4, 1\nv_lshl_add_u32 v4, v5, 5, v4\nv_lshl_add_u32 v4, v3, 3, v4\nv_add_u32 v4, s17, v4")
    a(f"s_mul_i32 s18, {S(sW)}, {1152*1024}")
    a("s_waitcnt lgkmcnt(0)")
    def body(w3):
        for ch in range(2):
            for j in range(36):
                i = ch * 36 + j
                a(f"s_add_u32 m0, s17, {j*1024}")
                if w3 and i >= 40:
                    a(f"s_mov_b32 s19, {(i-40)*16384}")
                    a("buffer_load_dwordx4 v2, s[12:15], s19 offen lds")
                else:
                    a(f"s_add_u32 s19, s18, {i*16384}")
                    a("buffer_load_dwordx4 v2, s[8:11], s19 offen lds")
            a("s_waitcnt vmcnt(0)")
            for j in range(36):
                i = ch * 36 + j
                for hf in range(2):
                    if w3 and i >= 40: row0 = 16 * j + 8 * hf
                    else: row0 = 32 * (j // 2) + 8 * (j % 2) + 16 * hf
                    a(f"ds_read_b64_tr_b16 {t6_wreg2(i, hf)}, v4 offset:{row0*64}")
            a("s_waitcnt lgkmcnt(0)")
    a(f"s_cmp_eq_u32 {S(sW)}, 3")
    a(f"s_cbranch_scc1 {L}_w3")
    body(False)
    a(f"s_branch {L}_e")
    a(f"{L}_w3:")
    body(True)
    a(f"{L}_e:")
    a(f"s_load_dwordx2 s[12:13], {S(sArg,2)}, 88")
    a(f"s_mov_b32 s14, {2048*1024}")
    a("v_and_b32 v2, 31, v0\nv_lshlrev_b32 v2, 10, v2\nv_lshrrev_b32 v3, 5, v0\nv_lshl_add_u32 v2, v3, 3, v2")
    a(f"s_lshl_b32 s19, {S(sW)}, 4")
    a("s_add_u32 s19, s19, s16")
    a("v_add_u32 v2, s19, v2")
    a(f"s_lshl_b32 s19, {S(sW)}, 12\nv_add_u32 v3, s19, v1")
    a(f"s_lshl_b32 s19, {S(sW)}, 10\nv_add_u32 v4, s19, v1")
    a(f"s_mul_i32 s17, {S(sW)}, {72*1024}")
    a(f"s_add_u32 s17, s17, {OXB}")
    a("s_waitcnt lgkmcnt(0)")
    a("s_barrier")

def t6_unit(a, sS, ld=''):
    NB = 48
    FR, ACC = 32, 8
    a(f"s_mul_i32 s18, {S(sS)}, {288*1024}")
    a("s_add_u32 s18, s18, s17")
    def ldf(i):
        ops = []
        if i % 4 == 0 and i: ops.append("s_add_u32 s18, s18, 4096")
        ops.append(f"buffer_load_dwordx4 {V(FR + 4*(i % NB), 4)}, v1, {S(sWS,4)}, s18 offen offset:{(i%4)*1024} {ld}")
        return ops
    for i in range(NB):
        for x in ldf(i): a(x)
    for i in range(72):
        out = min(72, i + NB) - i - 1
        a(f"s_waitcnt vmcnt({out})")
        a(f"v_mfma_f32_32x32x16_bf16 {V(ACC,16)}, {t6_wreg(i)}, {V(FR + 4*(i % NB), 4)}, {'0' if i == 0 else V(ACC,16)}")
        if i + NB < 72:
            for x in ldf(i + NB): a(x)
    for q in range(4):
        a(f"ds_write_b128 v3, {V(ACC+4*q,4)} offset:{q*1024}")
    a("s_waitcnt lgkmcnt(0)")
    a("s_barrier")
    for q in range(4):
        a(f"ds_read_b128 {V(ACC+4*q,4)}, v4 offset:{q*4096}")
    a(f"s_lshl_b32 s18, {S(sS)}, 15")
    a("s_waitcnt lgkmcnt(0)")
    a("s_barrier")
    for i in range(4):
        a(f"v_add_f32 {V(ACC+i)}, {V(ACC+i)}, {V(ACC+4+i)}")
        a(f"v_add_f32 {V(ACC+8+i)}, {V(ACC+8+i)}, {V(ACC+12+i)}")
        a(f"v_add_f32 {V(ACC+i)}, {V(ACC+i)}, {V(ACC+8+i)}")
    a(f"v_cvt_pk_bf16_f32 v24, {V(ACC)}, {V(ACC+1)}")
    a(f"v_cvt_pk_bf16_f32 v25, {V(ACC+2)}, {V(ACC+3)}")
    a("buffer_store_dwordx2 v[24:25], v2, s[12:15], s18 offen")


sDBG = 64
VW = [254]
def wait_word(a, off, cond, sW, sSpin=70):
    L = a.newlabel("WW")
    a(f"s_cmp_eq_u32 {S(sW)}, 0")
    a(f"s_cbranch_scc0 {L}_ok")
    a(f"{L}:")
    a(f"v_mov_b32 {V(VW[0])}, {off}")
    a(f"global_load_dword {V(VW[0]+1)}, {V(VW[0])}, {S(sDBG,2)} sc1")
    a(f"s_sub_u32 {S(sSpin)}, {S(sSpin)}, 1")
    a(f"s_cbranch_scc1 {L}_to")
    a("s_waitcnt vmcnt(0)")
    a(f"v_readfirstlane_b32 s71, {V(VW[0]+1)}")
    cond(71)
    a(f"s_cbranch_scc1 {L}_ok")
    a("s_sleep 8")
    a(f"s_branch {L}")
    a(f"{L}_to:")
    a(f"s_mov_b32 {S(sSpin)}, 0")
    a("s_waitcnt vmcnt(0)")
    a(f"{L}_ok:")
    a("s_barrier")

def signal_add(a, off, val, sW, va=254):
    L = a.newlabel("SG")
    a("s_waitcnt vmcnt(0) lgkmcnt(0)")
    a("s_barrier")
    a(f"s_cmp_eq_u32 {S(sW)}, 0")
    a(f"s_cbranch_scc0 {L}")
    a(f"v_mov_b32 {V(va)}, {off}")
    a(f"v_mov_b32 {V(va+1)}, {val}")
    a("s_mov_b64 exec, 1")
    a(f"global_atomic_add {V(va)}, {V(va+1)}, {S(sDBG,2)}")
    a("s_mov_b64 exec, -1")
    a(f"{L}:")

def t5p_role(a, sH, sS, sW, sSpin=70):
    L = a.newlabel("T5")
    XROW = 1040
    L_KM, L_VM = 16384, 20480
    vL, vG, vO, vNeg, vMw, vMr, vEw, vL8 = 1, 3, 4, 5, 6, 7, 12, 2
    B0, B1 = 8, 10
    Q, K, VV_, KM, VM, G = 16, 32, 64, 80, 96, 100
    Sm, S0, S1, PF, T, O = 104, 108, 112, 116, 120, 124
    MB, MP, FR, ACC, PKD = 144, 152, 160, 192, 224
    t5_setup(a)
    a("v_and_b32 v13, 15, v0\nv_lshrrev_b32 v14, 4, v0")
    a("v_lshrrev_b32 v15, 2, v13\nv_lshlrev_b32 v15, 1, v15\nv_and_b32 v6, 1, v13\nv_add_u32 v15, v15, v6")
    a(f"v_mul_u32_u24 v15, {XROW}, v15")
    a(f"v_bfe_u32 {V(vMw)}, v13, 1, 1\nv_lshlrev_b32 {V(vMw)}, 6, {V(vMw)}\nv_lshl_add_u32 {V(vMw)}, v14, 3, {V(vMw)}\nv_add_u32 {V(vMw)}, {V(vMw)}, v15")
    a(f"s_lshl_b32 s16, {S(sW)}, 8\nv_add_u32 {V(vMw)}, s16, {V(vMw)}")
    a(f"v_lshrrev_b32 {V(vMr)}, 5, v0\nv_lshl_add_u32 {V(vMr)}, {V(vMr)}, 4, v15")
    a("s_mov_b32 s20, 0x05040100\ns_mov_b32 s21, 0x07060302")
    a(f"s_and_b32 s23, {S(sW)}, 1")
    a(f"s_cmp_ge_u32 {S(sW)}, 2")
    a(f"s_cbranch_scc1 {L}_v")
    for qt in range(2):
        if qt == 1: a(f"{L}_v:")
        P = f"{L}_{qt}"
        a("v_lshrrev_b32 v15, 5, v0")
        if qt == 0:
            a(f"v_lshlrev_b32 {V(vEw)}, 8, v15\nv_lshl_add_u32 {V(vEw)}, v13, 4, {V(vEw)}")
            a(f"s_lshl_b32 s16, s23, 11\ns_add_u32 s16, s16, {L_KM}")
        else:
            a(f"v_lshlrev_b32 {V(vEw)}, 7, v15\nv_lshl_add_u32 {V(vEw)}, v13, 3, {V(vEw)}")
            a(f"v_bfe_u32 v15, v0, 4, 1\nv_lshl_add_u32 {V(vEw)}, v15, 2, {V(vEw)}")
            a(f"s_lshl_b32 s16, s23, 10\ns_add_u32 s16, s16, {L_VM}")
        a(f"v_add_u32 {V(vEw)}, s16, {V(vEw)}")
        a(f"s_lshl_b32 s16, s23, 10\nv_add_u32 {V(vL8)}, s16, {V(vL8)}")
        a(f"{P}_loop:")
        a(f"s_lshl_b32 s16, {S(sS)}, 5\ns_add_u32 s16, s16, {S(sH)}\ns_lshl_b32 s17, s16, 13")
        a(f"s_add_u32 s18, s17, {QXB + qt*4096}")
        for i in range(4): a(f"buffer_load_dwordx4 {V(Q+4*i,4)}, {V(vL)}, {S(sWS,4)}, s18 offen offset:{i*1024} sc1")
        for tj in range(qt + 1):
            a(f"s_add_u32 s18, s17, {KXB + tj*4096}")
            for i in range(4): a(f"buffer_load_dwordx4 {V(K+16*tj+4*i,4)}, {V(vL)}, {S(sWS,4)}, s18 offen offset:{i*1024} sc1")
        a(f"s_lshl_b32 s18, s23, 12\ns_add_u32 s18, s18, s17\ns_add_u32 s18, s18, {VXB}")
        for i in range(4): a(f"buffer_load_dwordx4 {V(VV_+4*i,4)}, {V(vL)}, {S(sWS,4)}, s18 offen offset:{i*1024} sc1")
        a(f"s_lshl_b32 s18, {S(sS)}, 8\ns_add_u32 s18, s18, {GB}")
        a(f"buffer_load_dword {V(G)}, {V(vG)}, {S(sWS,4)}, s18 offen offset:{128*qt} sc1")
        a(f"s_lshl_b32 s18, {S(sS)}, 13\ns_lshl_b32 s19, {S(sW)}, 11\ns_add_u32 s18, s18, s19\ns_add_u32 s18, s18, {MGB}")
        a(f"{P}_poll:")
        for i in range(2): a(f"buffer_load_dwordx4 {V(MB+4*i,4)}, {V(vL)}, {S(sWS,4)}, s18 offen offset:{i*1024} sc1")
        a(f"s_sub_u32 {S(sSpin)}, {S(sSpin)}, 1\ns_cbranch_scc1 {P}_to\ns_waitcnt vmcnt(0)")
        a(f"v_max3_u32 {V(T)}, {V(MB)}, {V(MB+1)}, {V(MB+2)}\nv_max3_u32 {V(T+1)}, {V(MB+3)}, {V(MB+4)}, {V(MB+5)}")
        a(f"v_max3_u32 {V(T)}, {V(T)}, {V(MB+6)}, {V(MB+7)}\nv_max_u32 {V(T)}, {V(T)}, {V(T+1)}\nv_cmp_eq_u32 vcc, -1, {V(T)}")
        a(f"s_cbranch_vccz {P}_ok\ns_sleep 4\ns_branch {P}_poll")
        a(f"{P}_to:\ns_mov_b32 {S(sSpin)}, 0\ns_waitcnt vmcnt(0)")
        a(f"{P}_ok:")
        for b in range(2):
            r = MB + 4 * b; d = MP + 4 * b
            a(f"v_perm_b32 {V(d)}, {V(r+1)}, {V(r)}, s20\nv_perm_b32 {V(d+1)}, {V(r+3)}, {V(r+2)}, s20")
            a(f"v_perm_b32 {V(d+2)}, {V(r+1)}, {V(r)}, s21\nv_perm_b32 {V(d+3)}, {V(r+3)}, {V(r+2)}, s21")
        for b in range(2):
            a(f"ds_write2_b64 {V(vMw)}, {V(MP+4*b,2)}, {V(MP+4*b+2,2)} offset0:{16*b} offset1:{16*b+4}")
        a("s_waitcnt lgkmcnt(0)\ns_barrier")
        def rdf(kk): return f"ds_read_b128 {V(FR + 4*(kk % 8), 4)}, {V(vMr)} offset:{32*kk}"
        for kk in range(6): a(rdf(kk))
        for kk in range(32):
            a(f"s_waitcnt lgkmcnt({min(5, 31-kk)})")
            for Tt in range(2):
                wreg = A((Tt*32+kk)*4, 4); x = V(FR + 4*(kk % 8), 4); d = V(ACC + 16*Tt, 16)
                c = "0" if kk == 0 else d
                a(f"v_mfma_f32_32x32x16_bf16 {d}, {wreg}, {x}, {c}" if qt == 0 else f"v_mfma_f32_32x32x16_bf16 {d}, {x}, {wreg}, {c}")
            if kk + 6 < 32: a(rdf(kk + 6))
        for Tt in range(2):
            b = ACC + 16 * Tt
            for q in range(2):
                if qt == 0:
                    d = PKD + 8 * Tt + 4 * q
                    for x in range(4): a(f"v_cvt_pk_bf16_f32 {V(d+x)}, {V(b+4*q+x)}, {V(b+4*(q+2)+x)}")
                    a(f"ds_write_b128 {V(vEw)}, {V(d,4)} offset:{Tt*1024 + q*512}")
                else:
                    d = PKD + 2 * Tt + q
                    a(f"v_cvt_pk_bf16_f32 {V(d)}, {V(b+4*q)}, {V(b+4*q+1)}")
                    a(f"ds_write_b32 {V(vEw)}, {V(d)} offset:{Tt*512 + q*256}")
        a("s_waitcnt lgkmcnt(0)\ns_barrier")
        for i in range(4): a(f"ds_read_b128 {V(KM+4*i,4)}, {V(vL)} offset:{L_KM + i*1024}")
        for i in range(2): a(f"ds_read_b64 {V(VM+2*i,2)}, {V(vL8)} offset:{L_VM + i*512}")
        def mf(d, x, y, first): return f"v_mfma_f32_16x16x32_bf16 {V(d,4)}, {V(x,4)}, {V(y,4)}, {'0' if first else V(d,4)}"
        for kk in range(4):
            a(mf(S0, K + 4*kk, Q + 4*kk, kk == 0))
            if qt == 1: a(mf(S1, K + 16 + 4*kk, Q + 4*kk, kk == 0))
        a(f"s_mul_i32 s18, {S(sS)}, 288\ns_lshl_b32 s19, {S(sH)}, 3\ns_add_u32 s18, s18, s19\ns_lshl_b32 s18, s18, 10")
        a(f"s_lshl_b32 s19, s23, 12\ns_add_u32 s18, s18, s19\ns_add_u32 s18, s18, {OXB}")
        a("s_waitcnt lgkmcnt(0)")
        for kk in range(4): a(mf(Sm, KM + 4*kk, Q + 4*kk, kk == 0))
        dg = S0 if qt == 0 else S1
        for r in range(4): a(f"v_cndmask_b32 {V(dg+r)}, {V(vNeg)}, {V(dg+r)}, {S(T5_MASK+2*r,2)}")
        ev = [S0, S0+1, S0+2, S0+3] + ([S1, S1+1, S1+2, S1+3] if qt else []) + [Sm, Sm+1]
        a(f"v_max3_f32 {V(T)}, {V(S0)}, {V(S0+1)}, {V(S0+2)}")
        if qt:
            a(f"v_max3_f32 {V(T)}, {V(T)}, {V(S1)}, {V(S1+1)}\nv_max3_f32 {V(T)}, {V(T)}, {V(S1+2)}, {V(S1+3)}")
        a(f"v_max_f32 {V(T)}, {V(T)}, {V(S0+3)}")
        a(f"v_max3_f32 {V(T)}, {V(T)}, {V(Sm)}, {V(Sm+1)}")
        xlane_reduce16_32(a, "v_max_f32", T, T+1)
        a(f"v_mul_f32 {V(T)}, s22, {V(T)}")
        for r in ev: a(f"v_fma_f32 {V(r)}, {V(r)}, s22, -{V(T)}")
        for r in ev: a(f"v_exp_f32 {V(r)}, {V(r)}")
        a(f"v_cvt_pk_bf16_f32 {V(PF)}, {V(S0)}, {V(S0+1)}\nv_cvt_pk_bf16_f32 {V(PF+1)}, {V(S0+2)}, {V(S0+3)}")
        if qt: a(f"v_cvt_pk_bf16_f32 {V(PF+2)}, {V(S1)}, {V(S1+1)}\nv_cvt_pk_bf16_f32 {V(PF+3)}, {V(S1+2)}, {V(S1+3)}")
        else: a(f"v_mov_b64 {V(PF+2,2)}, 0")
        a(f"v_cvt_pk_bf16_f32 {V(B0)}, {V(Sm)}, {V(Sm+1)}\nv_cvt_pk_bf16_f32 {V(B1+1)}, {V(Sm)}, {V(Sm+1)}")
        for e in range(4): a(mf(O + 4*e, VV_ + 4*e, PF, True))
        for e in range(4):
            a(f"v_mfma_f32_16x16x16_bf16 {V(O+4*e,4)}, {V(VM+2*(e//2),2)}, {V(B0 if e%2==0 else B1,2)}, {V(O+4*e,4)}")
        a(f"v_add_f32 {V(T)}, {V(ev[0])}, {V(ev[1])}")
        for r in ev[2:]: a(f"v_add_f32 {V(T)}, {V(T)}, {V(r)}")
        xlane_reduce16_32(a, "v_add_f32", T, T+1)
        a(f"v_rcp_f32 {V(T)}, {V(T)}")
        a(f"v_mul_f32 {V(T)}, {V(T)}, {V(G)}")
        for u in range(2):
            o = O + 8 * u
            for i in range(8): a(f"v_mul_f32 {V(o+i)}, {V(o+i)}, {V(T)}")
            d = PKD + 16 + 4 * u
            for i in range(4): a(f"v_cvt_pk_bf16_f32 {V(d+i)}, {V(o+2*i)}, {V(o+2*i+1)}")
            a(f"buffer_store_dwordx4 {V(d,4)}, {V(vO)}, {S(sWS,4)}, s18 offen offset:{u*2048 + qt*256} sc1")
        a(f"s_and_b32 s18, {S(sS)}, 60\ns_add_u32 s18, s18, {4*D_SEG}")
        a(f"s_and_b32 s19, {S(sS)}, 3\ns_lshl_b32 s19, s19, 3\ns_lshl_b32 s19, 1, s19")
        signal_add(a, "s18", "s19", sW)
        a(f"s_add_u32 {S(sS)}, {S(sS)}, 4\ns_cmp_lt_u32 {S(sS)}, 64\ns_cbranch_scc1 {P}_loop")
        if qt == 0: a(f"s_branch {L}_end")
    a(f"{L}_end:")
```

```python
from asm import *
from layout import *
import proj, roles, rec
import sys, json
NAME = "gated_mix__memory_aug_recurrent_mem_tr__softmax_full_mha__prompt"
PROF = int(sys.argv[2]) if len(sys.argv) > 2 else 0
CFG = json.loads(sys.argv[3]) if len(sys.argv) > 3 else {}
hdr = open(f"cdna_kernels/{NAME}.s.ref").read().split("; Override launch")[0]
KN = NAME + "_kernel"
a = Asm()
a.raw(hdr.rstrip())
if CFG.get('list'): a.raw(f"; @launch kernel={KN} grid=(256,1,1) block=(256,1,1) lds=163840")
else: a.raw("; @launch grid=(256,1,1) block=(256,1,1) lds=163840")
a.raw('.amdgcn_target "amdgcn-amd-amdhsa--gfx950"\n.text')
a.raw(f".globl {KN}\n.p2align 8\n.type {KN},@function")
a(f"{KN}:")
a("s_cmp_ge_u32 s2, 256")
a("s_cbranch_scc1 L_end")
a("s_load_dwordx4 s[64:67], s[0:1], 96")
if PROF: a("s_memrealtime s[80:81]")
a("v_lshrrev_b32 v1, 6, v0")
a("v_readfirstlane_b32 s62, v1")
a("v_and_b32 v0, 63, v0")
a("s_getreg_b32 s63, hwreg(HW_REG_XCC_ID)")
a("s_and_b32 s63, s63, 7")
a("s_waitcnt lgkmcnt(0)")
a(f"s_mov_b32 s4, s66\ns_mov_b32 s5, s67\ns_mov_b32 s6, {WS_BYTES}\ns_mov_b32 s7, 0x20000")
a("s_cmp_eq_u32 s62, 0")
a("s_cbranch_scc0 L_tk")
a("s_mov_b32 s60, s63")
a("s_mov_b64 exec, 1")
a("v_mov_b32 v2, 1")
a("L_try:")
a("s_lshl_b32 s61, s60, 2")
a("v_mov_b32 v1, s61")
a("global_atomic_add v3, v1, v2, s[64:65] sc0")
a("s_waitcnt vmcnt(0)")
a("v_readfirstlane_b32 s61, v3")
a("s_cmp_lt_u32 s61, 32")
a("s_cbranch_scc1 L_got")
a("s_add_u32 s60, s60, 1")
a("s_and_b32 s60, s60, 7")
a("s_cmp_lg_u32 s60, s63")
a("s_cbranch_scc1 L_try")
a("s_mov_b32 s60, 8")
a("L_got:")
a("s_lshl_b32 s60, s60, 5")
a("s_add_u32 s60, s60, s61")
a("v_mov_b32 v3, s60")
a("v_mov_b32 v1, 0")
a("ds_write_b32 v1, v3")
a("s_mov_b64 exec, -1")
a("s_waitcnt lgkmcnt(0)")
a("L_tk:")
a("s_barrier")
a("v_mov_b32 v1, 0")
a("ds_read_b32 v3, v1")
a("s_waitcnt lgkmcnt(0)")
a("v_readfirstlane_b32 s60, v3")
a("s_barrier")
a("s_cmp_lt_u32 s60, 32")
a("s_cbranch_scc1 L_rec")
a("s_cmp_ge_u32 s60, 256")
a("s_cbranch_scc1 L_end")
a("s_sub_u32 s60, s60, 32")
a(f"s_mov_b32 s70, {1 << 20}")
def wstamp(i):
    if PROF: a(f"s_memrealtime s[{82+2*i}:{83+2*i}]")
a("s_cmp_ge_u32 s60, 216")
a("s_cbranch_scc0 L_proj")
a("s_sub_u32 s59, s60, 216")
roles.gate_role(a, 0, 59, 62, 'sc1')
a("s_branch L_p1done")
a("L_proj:")
a(f"s_lshr_b32 {S(proj.sCB)}, s60, 2\ns_and_b32 {S(proj.sR)}, s60, 3\ns_mov_b32 {S(proj.sW)}, s62")
a("s_cmp_lt_u32 s60, 128\ns_cselect_b32 s58, 1, 0\ns_cmp_eq_u32 s62, 0\ns_cselect_b32 s58, s58, 0")
a(f"s_add_u32 s57, s60, {4*D_KV}")
def publish(a, cnt_ops):
    L = a.newlabel("PB")
    a("s_cmp_eq_u32 s58, 0")
    a(f"s_cbranch_scc1 {L}")
    for x in cnt_ops: a(x)
    a("v_mov_b32 v122, s57\nv_mov_b32 v123, s56\ns_mov_b64 exec, 1")
    a("global_store_byte v122, v123, s[64:65] sc1")
    a("s_mov_b64 exec, -1")
    a(f"{L}:")
def hook(a, par, typ):
    if typ == 0:
        publish(a, [f"s_add_u32 s56, {S(proj.sI)}, {par}", "s_max_u32 s56, s56, 1", "s_sub_u32 s56, s56, 1"])
proj.proj_role(a, 0, 'sc1', hook)
a("s_barrier")
publish(a, ["s_mov_b32 s56, 16"])
a("L_p1done:")
wstamp(0)
roles.signal_add(a, 4*D_P, 1, 62)
roles.wait_word(a, 4*D_P, lambda r: a(f"s_cmp_ge_u32 s{r}, 224"), 62)
wstamp(1)
a("s_cmp_ge_u32 s60, 192")
a("s_cbranch_scc1 L_p2done")
a("s_mul_i32 s61, s60, 43691\ns_lshr_b32 s61, s61, 18")
a("s_mul_i32 s59, s61, 6\ns_sub_u32 s59, s60, s59")
roles.battn_role(a, 61, 59, 62, 'sc1', 'sc1')
roles.signal_add(a, 4*D_O, 1, 62)
a("L_p2done:")
wstamp(2)
a("s_cmp_ge_u32 s60, 128")
a("s_cbranch_scc1 L_t6")
roles.wait_word(a, 4*D_REC, lambda r: a(f"s_and_b32 s{r}, s{r}, 0xffff\ns_cmp_ge_u32 s{r}, 32"), 62)
a("s_lshr_b32 s61, s60, 2\ns_and_b32 s59, s60, 3")
roles.t5p_role(a, 61, 59, 62)
a("s_branch L_wend")
a("L_t6:")
a("s_sub_u32 s59, s60, 128\ns_and_b32 s61, s59, 15\ns_lshr_b32 s59, s59, 4")
roles.t6_setup(a, 0, 61, 62)
roles.VW[0] = 30
roles.wait_word(a, 4*D_O, lambda r: a(f"s_cmp_ge_u32 s{r}, 192"), 62)
a("L_t6loop:")
a(f"s_and_b32 s20, s59, 60\ns_add_u32 s20, s20, {4*D_SEG}\ns_and_b32 s21, s59, 3\ns_lshl_b32 s21, s21, 3")
roles.wait_word(a, "s20", lambda r: a(f"s_lshr_b32 s{r}, s{r}, s21\ns_and_b32 s{r}, s{r}, 255\ns_cmp_ge_u32 s{r}, 32"), 62)
roles.t6_unit(a, 59, 'sc1')
a("s_add_u32 s59, s59, 6\ns_cmp_lt_u32 s59, 64\ns_cbranch_scc1 L_t6loop")
a("L_wend:")
if PROF:
    wstamp(3)
    a("s_waitcnt lgkmcnt(0)")
    a(f"s_lshl_b32 s20, s60, 5\ns_add_u32 s20, s20, {PROFB + 65536}")
    a("v_mov_b32 v1, 0")
    for i in range(5):
        a(f"v_mov_b32 v2, s{80+2*i}")
        a(f"buffer_store_dword v2, v1, s[4:7], s20 offen offset:{4*i}")
a("s_branch L_end")
a("L_rec:")
a(f"s_mov_b32 {S(rec.sH)}, s60")
rec.rec_role(a, 0, 64, 62, 63, "L_end", PROF, CFG)
a("L_end:")
a("s_endpgm")
a.raw('.section .rodata,"a"')
a.raw(kernel_desc(KN))
out = sys.argv[1] if len(sys.argv) > 1 else f"cdna_kernels/{NAME}.s"
open(out, "w").write(a.finalize(True))
if PROF > 1: json.dump(rec.STNAMES, open("stnames.json", "w"))
```

```python
MB = 1 << 20
QXB  = 0
KXB  = 16 * MB
VXB  = 32 * MB
M2B  = 48 * MB
P1B  = 49 * MB
KVMB = 96 * MB
QBB  = 62 * MB
KBB  = 64 * MB
VBB  = 66 * MB
GB   = 68 * MB
OXB  = 70 * MB
MGB  = 90 * MB
PROFB = 92 * MB
MDBG = 93 * MB
WIMG = 112 * MB
WS_BYTES = 268435456
D_REC = 33
D_GO = 34
FLB = 91 * MB
F_KV = FLB
F_DONE = FLB + 4096
F_OB = FLB + 5120
F_SEG = FLB + 8192
```

```python
from asm import *
import math

from layout import *

L_M, L_KX, L_Q, L_K, L_O, L_W = 0, 8192, 16384, 16384 + 256, 20992, 24576
RS = 544
WREG = 17 * 2048

vL16, vIdx, vWl, vQKw, vQKr, vP1st, vM2st, vWarm = range(8)
vSel = 8
vB0, vB1 = 12, 14
accQ, accK, accV = 16, 24, 32
vVx = 40
RING = [56, 60, 48, 52]
X = 64
RES = 136
sSRD = 4
sH, sS, sM2r, sKX, sVX, sWarm, sP1st, sP1st2, sP1ld, sM2w, sMG, sSpin, sTmp = range(8, 21)
sReady, sFlag = 96, 98
vPub = 15
sC = 56
sOne = 58
sTag, sTag2, sClr = 21, 60, 61
sPm = 22
DBG_M = False
sT = 24
SPIN_MAX = 1 << 20
NST = 16

NQL = 9
def korder(w):
    ev = [(2 * w + 2 * i) % 8 for i in range(4)]
    return ev + [k + 1 for k in ev]
def qidx(w, ks, t): return korder(w).index(ks) * 2 + t
def qblk(w, ks, t):
    i = qidx(w, ks, t)
    return V(X + 8 * i, 8) if i < NQL else V(RES + 8 * (i - NQL), 8)
def kblk(ks, t): return A(8 * (ks * 2 + t), 8)
def vblk(ks, t): return A(128 + 8 * (ks * 2 + t), 8)
def oblk(T, ko):
    i = T * 2 + ko
    return V(RES + 56 + 8 * i, 8) if i < 8 else V(X + 8 * (i - 8), 8)

def smf_s(acc, areg, b):
    return f"v_smfmac_f32_16x16x64_bf16 {V(acc,4)}, {V(areg,4)}, {b}, {V(vIdx)}"

STN = [0]
STNAMES = []
STSEL = [None]
PSTART = [0]
def stamp(a, n, prof):
    if prof and (STSEL[0] is None or n in STSEL[0]):
        k = STN[0]; STN[0] += 1
        if len(STNAMES) <= k: STNAMES.append(str(n))
        assert k < NST
        a(f"s_memtime {S(sT + 2*k, 2)}")

def chk_ops(r, n, tmp):
    if n == 8:
        o = [f"v_max3_u32 {V(tmp)}, {V(r)}, {V(r+1)}, {V(r+2)}",
             f"v_max3_u32 {V(tmp+1)}, {V(r+3)}, {V(r+4)}, {V(r+5)}",
             f"v_max3_u32 {V(tmp)}, {V(tmp)}, {V(r+6)}, {V(r+7)}",
             f"v_max_u32 {V(tmp)}, {V(tmp)}, {V(tmp+1)}"]
    else:
        o = [f"v_max3_u32 {V(tmp)}, {V(r)}, {V(r+1)}, {V(r+2)}",
             f"v_max_u32 {V(tmp)}, {V(tmp)}, {V(r+3)}"]
    return o + [f"v_cmp_eq_u32 vcc, -1, {V(tmp)}"]

def poll_ops(r, n, soff, off=0):
    return [f"buffer_load_dwordx4 {V(r+4*i,4)}, {V(vL16)}, {S(sSRD,4)}, {S(soff)} offen offset:{off + 1024*i} sc1" for i in range(n // 4)]

def poll_retry(tail, name, r, n, soff, off, tmp, redo=()):
    tail.append(f"{name}:")
    tail += poll_ops(r, n, soff, off)
    tail.append(f"s_sub_u32 {S(sSpin)}, {S(sSpin)}, 1")
    tail.append(f"s_cbranch_scc1 {name}_to")
    tail.append("s_waitcnt vmcnt(0)")
    tail += list(redo)
    tail += chk_ops(r, n, tmp)
    tail.append(f"s_cbranch_vccnz {name}")
    tail.append(f"s_branch {name}_ok")
    tail.append(f"{name}_to:")
    tail.append(f"s_mov_b32 {S(sSpin)}, 0")
    tail.append("s_waitcnt vmcnt(0)")
    tail += list(redo)
    tail.append(f"s_branch {name}_ok")

def ready_calc(r):
    u = 100
    o = []
    for i in range(4):
        o += [f"v_readfirstlane_b32 {S(u)}, {V(r+i)}", f"s_lshl_b32 {S(u)}, {S(u)}, 2", f"s_add_u32 {S(u)}, {S(u)}, {i}"]
        o += [f"s_mov_b32 {S(sReady)}, {S(u)}"] if i == 0 else [f"s_min_u32 {S(sReady)}, {S(sReady)}, {S(u)}"]
    return o + [f"s_cmp_ge_u32 {S(sReady)}, 64", f"s_cselect_b32 {S(sReady)}, 128, {S(sReady)}"]

def ready_wait(name, ok, r):
    o = [f"buffer_load_dwordx4 {V(r,4)}, off, {S(sSRD,4)}, {S(sFlag)} sc1",
         f"s_sub_u32 {S(sSpin)}, {S(sSpin)}, 1", f"s_cbranch_scc1 {name}_to",
         "s_waitcnt vmcnt(0)"] + ready_calc(r)
    o += [f"s_cmp_lt_u32 {S(sTmp)}, {S(sReady)}", f"s_cbranch_scc1 {ok}", "s_sleep 8", f"s_branch {name}",
          f"{name}_to:", f"s_mov_b32 {S(sSpin)}, 0", f"s_mov_b32 {S(sReady)}, 128", "s_waitcnt vmcnt(0)", f"s_branch {ok}"]
    return o

def weave(a, main, fill, per=1, start=0):
    fill = list(fill)
    for i, m in enumerate(main):
        a(m)
        if i >= start:
            for _ in range(per):
                if fill: a(fill.pop(0))
    for f in fill: a(f)

def rec_loop(a, w, st, prof=False, sto='', cfg={}):
    P = f"R{w}{'s' if st else 'f'}"
    STN[0] = 0
    STSEL[0] = cfg.get('stamps')
    if cfg.get('free'):
        a0 = a
        def a(t):
            if t.startswith('s_cbranch_vcc'): return
            if t.startswith('s_waitcnt vmcnt'):
                t = 's_waitcnt lgkmcnt(0)' if 'lgkm' in t else 's_waitcnt vmcnt(40)'
            a0(t)
    tail = []
    sto = cfg.get('sto', sto); ldk = cfg.get('ldk', 'nt'); ldw = cfg.get('ldw', '')
    Ee, e1, e2, e3, Oo, o1, o2, o3 = korder(w)
    s0, s1, s2, s3 = RING
    def rdm(slot, ks): return f"ds_read_b128 {V(slot,4)}, {V(vL16)} offset:{L_M + ks*1024}"
    def wrm(slot, ks): return f"ds_write_b128 {V(vL16)}, {V(slot,4)} offset:{L_M + ks*1024}"
    def QQ(ks, slot): return [smf_s(accQ, slot, qblk(w, ks, 0)), smf_s(accQ + 4, slot, qblk(w, ks, 1))]
    def KK(ks, slot): return [smf_s(accK, slot, kblk(ks, 0)), smf_s(accK + 4, slot, kblk(ks, 1))]
    def VV(ks, slot): return [smf_s(accV, slot, vblk(ks, 0)), smf_s(accV + 4, slot, vblk(ks, 1))]
    stQ = [f"ds_read_b128 {V(X + 8*i + 4*hf, 4)}, {V(vWl)} offset:{i*2048 + hf*1024}" for i in range(NQL) for hf in range(2)]
    stO = [f"ds_read_b128 {V(X + 8*i + 4*hf, 4)}, {V(vWl)} offset:{(NQL + i)*2048 + hf*1024}" for i in range(8) for hf in range(2)]
    def zero(r, n): return [f"v_mov_b64 {V(r+i,2)}, 0" for i in range(0, n, 2)]
    kxl = [f"buffer_load_dwordx4 {V(vL16)}, {S(sSRD,4)}, {S(sKX)} offen offset:{1024*i} {ldk} lds" for i in range(2)]
    vxl = [f"buffer_load_dwordx4 {V(vVx+4*i,4)}, {V(vL16)}, {S(sSRD,4)}, {S(sVX)} offen offset:{1024*i} {ldk}" for i in range(2)]
    qf, kxf, kmf = X, X + 16, X + 48
    kvm = X + 64
    tmp = X + 68
    sx1, sx2, sm, pf = accQ, accQ + 4, accK, accK + 4
    oacc, of = 48, 56
    ones, lacc = 56, 60
    def padd(r): return [f"v_add_f32 {V(r)}, {V(r)}, {V(r+2)}", f"v_add_f32 {V(r+1)}, {V(r+1)}, {V(r+3)}"]
    def cvt(d, x, y): return f"v_cvt_pk_bf16_f32 {V(d)}, {V(x)}, {V(y)}"
    def lg(n): return f"s_waitcnt lgkmcnt({n})"
    def vm(n): return f"s_waitcnt vmcnt({n})"
    def seq(*xs):
        for x in xs:
            if isinstance(x, (list, tuple)):
                for y in x: a(y)
            else: a(x)
    spin = lambda to: [f"s_sub_u32 {S(sSpin)}, {S(sSpin)}, 1", f"s_cbranch_scc1 {to}"]
    peA, peB, po = poll_ops(s0, 4, sM2r), poll_ops(s3, 4, sM2r), poll_ops(s1, 4, sM2r, 1024)

    a(f"s_mov_b32 {S(sTmp)}, 1")
    a(f"s_cmp_lt_u32 {S(sTmp)}, {S(sReady)}")
    a(f"s_cbranch_scc1 {P}_r0_ok")
    a(f"{P}_r0:")
    seq(ready_wait(f"{P}_r0", f"{P}_r0_ok", X))
    a(f"{P}_r0_ok:")
    a(f"s_mov_b32 m0, {L_KX + w*2048}")
    seq(kxl, stQ, zero(accQ, 24))
    a(f"s_add_u32 {S(sKX)}, {S(sKX)}, {32*8192}")
    peC = poll_ops(s1, 4, sM2r)
    seq(peA, peB, peC, vm(2))
    a(f"{P}_top:")
    a(f"s_waitcnt vmcnt({2 if w < 2 else 3}) lgkmcnt(0)")
    stamp(a, 'peA', prof)
    ck = chk_ops(s0, 4, vWarm)
    seq(wrm(s0, Ee), ck)
    a(f"s_cbranch_vccnz {P}_pe")
    a(f"{P}_pe_go:")
    stamp(a, 'peok', prof)
    x = QQ(Ee, s0) + KK(Ee, s0)
    seq(x[0], po, x[1], x[2], x[3])
    cb, cc = chk_ops(s3, 4, vWarm), chk_ops(s1, 4, vWarm)
    def mv(r): return [f"v_mov_b64 {V(s0,2)}, {V(r,2)}", f"v_mov_b64 {V(s0+2,2)}, {V(r+2,2)}"]
    slp = ["s_nop 7"] * cfg.get('slp', 1)
    tail += [f"{P}_pe:"] + peA + [vm(2), wrm(s3, Ee)] + cb + [f"s_cbranch_vccz {P}_peb"]
    tail += slp + peB + [vm(2), wrm(s1, Ee)] + cc + [f"s_cbranch_vccz {P}_pec"]
    tail += spin(f"{P}_pe_to") + slp + peC + [vm(2), wrm(s0, Ee)] + ck + [f"s_cbranch_vccz {P}_pe_go"] + slp + [f"s_branch {P}_pe"]
    tail += [f"{P}_peb:"] + mv(s3) + [f"s_branch {P}_pe_go"]
    tail += [f"{P}_pec:"] + mv(s1) + [f"s_branch {P}_pe_go"]
    tail += [f"{P}_pe_to:", f"s_mov_b32 {S(sSpin)}, 0", f"s_branch {P}_pe_go"]
    seq(lg(0), "s_barrier")
    stamp(a, 'B1a', prof)
    kxr = [f"ds_read_b128 {V(kxf+16*tj+4*kk,4)}, {V(vL16)} offset:{L_KX + (tj*4+kk)*1024}" for tj in range(2) for kk in range(4)]
    x = VV(Ee, s0)
    seq(rdm(s2, e1), x[0], x[1], vm(1), rdm(s0, e2), rdm(s3, e3), lg(2))
    x = QQ(e1, s2) + KK(e1, s2)
    seq(x[0], x[1], kxr[0], kxr[1], x[2], kxr[2], kxr[3], x[3], lg(5), f"v_mov_b32 {V(vB0)}, -1")
    x = QQ(e2, s0) + KK(e2, s0)
    seq(x[0], x[1], kxr[4], kxr[5], x[2], kxr[6], kxr[7], x[3], vm(0))
    stamp(a, 'pook', prof)
    ck = chk_ops(s1, 4, vWarm)
    x = QQ(e3, s3) + KK(e3, s3)
    seq(wrm(s1, Oo), lg(9), x[0], vxl[0], vxl[1], ck[0], x[1],
        f"buffer_store_dword {V(vB0)}, {V(vM2st)}, {S(sSRD,4)}, {S(sClr)} offen {st}", ck[1], x[2], ck[2], x[3])
    a(f"s_cbranch_vccnz {P}_po")
    a(f"{P}_po_ok:")
    poll_retry(tail, f"{P}_po", s1, 4, sM2r, 1024, vWarm, redo=[wrm(s1, Oo)])
    seq(lg(0), "s_barrier")
    stamp(a, 'B1b', prof)
    x = QQ(Oo, s1) + KK(Oo, s1)
    seq(rdm(s2, o1), x[0], rdm(s0, o2), rdm(s3, o3), x[1], f"s_add_u32 {S(sTmp)}, {S(sS)}, 2", f"s_cmp_lt_u32 {S(sTmp)}, {S(sReady)}",
        x[2], f"s_cbranch_scc0 {P}_rd")
    a(f"{P}_rd_ok:")
    tail += [f"{P}_rd:"] + ready_wait(f"{P}_rd", f"{P}_rd_ok", X)
    seq(f"buffer_store_dword {V(vPub)}, {V(vM2st)}, {S(sSRD,4)}, {S(sMG)} offen sc1", f"v_lshlrev_b32 {V(vWarm)}, 2, {V(vL16)}", x[3], lg(2))
    x = QQ(o1, s2) + QQ(o2, s0) + QQ(o3, s3)
    seq(x[0], f"buffer_load_dword {V(vWarm)}, {V(vWarm)}, {S(sSRD,4)}, {S(sWarm)} offen {ldw}", x[1], lg(1), x[2], x[3], lg(0), x[4], x[5])
    qe = padd(accQ) + padd(accQ + 4) + [cvt(accQ+2, accQ, accQ+4), cvt(accQ+3, accQ+1, accQ+5),
          f"ds_write2_b32 {V(vQKw)}, {V(accQ+2)}, {V(accQ+3)} offset0:0 offset1:{RS//4}"]
    ke = padd(accK) + padd(accK + 4) + [cvt(kvm, accK, accK+4), cvt(kvm+1, accK+1, accK+5),
          f"ds_write2_b32 {V(vQKw)}, {V(kvm)}, {V(kvm+1)} offset0:64 offset1:{64 + RS//4}"]
    k6 = KK(o1, s2) + KK(o2, s0) + KK(o3, s3)
    vq = VV(Oo, s1) + VV(o2, s0) + VV(o1, s2) + VV(o3, s3) + VV(e1, s1) + VV(e2, s2) + VV(e3, s3)
    seq(k6[0], k6[1], qe[0], k6[2], qe[1], k6[3], qe[2], k6[4], qe[3], k6[5], qe[4])
    seq(vq[0], qe[5], vq[1], qe[6], rdm(s1, e1), ke[0:6], vq[2], ke[6])
    seq(vq[3], vq[4], vq[5], rdm(s2, e2), vq[6], lg(1), "s_barrier")
    stamp(a, 'B2', prof)
    rq = [f"ds_read_b128 {V(qf+4*kk,4)}, {V(vQKr)} offset:{64*kk}" for kk in range(4)]
    rk = [f"ds_read_b128 {V(kmf+4*kk,4)}, {V(vQKr)} offset:{L_K - L_Q + 64*kk}" for kk in range(4)]
    seq(rq[0], vq[7], rq[1], rq[2], vq[8], rq[3], rk[0], vq[9], rk[1], rk[2], lg(6))
    def SX(kk, tj):
        d = sx1 if tj == 0 else sx2
        c = "0" if kk == 0 else V(d, 4)
        return f"v_mfma_f32_16x16x32_bf16 {V(d,4)}, {V(kxf+16*tj+4*kk,4)}, {V(qf+4*kk,4)}, {c}"
    def SM(kk):
        c = "0" if kk == 0 else V(sm, 4)
        return f"v_mfma_f32_16x16x32_bf16 {V(sm,4)}, {V(kmf+4*kk,4)}, {V(qf+4*kk,4)}, {c}"
    seq(SX(0, 0), rk[3], rdm(s3, e3), SX(0, 1), kxl[0], lg(7))
    seq(SX(1, 0), kxl[1], SX(1, 1), lg(6))
    seq(SX(2, 0), SX(2, 1), lg(5))
    seq(SX(3, 0), SX(3, 1), lg(1))
    seq(SM(0), stO[4], f"v_mov_b64 {V(ones,2)}, {S(sOne,2)}")
    seq(SM(1), stO[5])
    seq(SM(2), stO[6], f"v_max3_f32 {V(tmp)}, {V(sx1)}, {V(sx1+1)}, {V(sx1+2)}", f"v_max3_f32 {V(tmp+1)}, {V(sx1+3)}, {V(sx2)}, {V(sx2+1)}")
    seq(SM(3), stO[7], f"v_max3_f32 {V(tmp)}, {V(tmp)}, {V(sx2+2)}, {V(sx2+3)}", f"v_mov_b64 {V(ones+2,2)}, {S(sOne,2)}")
    seq(vq[10], stO[0], stO[1], f"v_max_f32 {V(tmp)}, {V(tmp)}, {V(tmp+1)}", vq[11], stO[2], lg(7))
    stamp(a, 'Sdone', prof)
    a(f"v_max3_f32 {V(tmp)}, {V(tmp)}, {V(sm)}, {V(sm+1)}")
    a(f"v_max3_f32 {V(tmp+1)}, {V(tmp)}, {V(sm)}, {V(sm+1)}")
    seq(vq[12], stO[3], stO[8])
    a(f"v_permlane16_swap_b32 {V(tmp)}, {V(tmp+1)}")
    a(f"v_max_f32 {V(tmp+2)}, {V(tmp)}, {V(tmp+1)}")
    a(f"v_max_f32 {V(tmp+3)}, {V(tmp)}, {V(tmp+1)}")
    seq(vq[13], stO[9], stO[10])
    a(f"v_permlane32_swap_b32 {V(tmp+2)}, {V(tmp+3)}")
    a(f"v_max_f32 {V(tmp)}, {V(tmp+2)}, {V(tmp+3)}")
    a(f"v_mul_f32 {V(tmp)}, {S(sC)}, {V(tmp)}")
    for r in (sx1, sx1+2, sx2, sx2+2, sm):
        a(f"v_pk_fma_f32 {V(r,2)}, {V(r,2)}, {S(sC,2)}, {V(tmp,2)} op_sel_hi:[1,1,0] neg_lo:[0,0,1] neg_hi:[0,0,1]")
    def ex(r): return f"v_exp_f32 {V(r)}, {V(r)}"
    seq([ex(sx1+i) for i in range(8)])
    seq(cvt(pf, sx1, sx1+1), cvt(pf+1, sx1+2, sx1+3), cvt(pf+2, sx2, sx2+1), cvt(pf+3, sx2+2, sx2+3), ex(sm), vm(5))
    stamp(a, 'smx', prof)
    ve = padd(accV) + padd(accV + 4) + [cvt(kvm+2, accV, accV+1), cvt(kvm+3, accV+4, accV+5)]
    seq(f"v_mfma_f32_16x16x32_bf16 {V(lacc,4)}, {V(ones,4)}, {V(pf,4)}, 0", stO[11], ex(sm+1))
    seq(f"v_mfma_f32_16x16x32_bf16 {V(oacc,4)}, {V(vVx,4)}, {V(pf,4)}, 0", cvt(vB0, sm, sm+1), ve[0])
    seq(f"v_mfma_f32_16x16x32_bf16 {V(oacc+4,4)}, {V(vVx+4,4)}, {V(pf,4)}, 0", ve[1], ve[2])
    seq(f"v_mfma_f32_16x16x16_bf16 {V(lacc,4)}, {V(ones,2)}, {V(vB0,2)}, {V(lacc,4)}", ve[3], ve[4], ve[5], cvt(vB1+1, sm, sm+1))
    seq(f"v_mfma_f32_16x16x16_bf16 {V(oacc,4)}, {V(kvm+2,2)}, {V(vB0,2)}, {V(oacc,4)}")
    seq(f"v_mfma_f32_16x16x16_bf16 {V(oacc+4,4)}, {V(kvm+2,2)}, {V(vB1,2)}, {V(oacc+4,4)}")
    z = zero(accQ, 24)
    seq(f"v_rcp_f32 {V(tmp)}, {V(lacc)}", z[0:6])
    for i in range(4):
        a(f"v_cndmask_b32 {V(oacc+i)}, {V(oacc+i)}, {V(oacc+4+i)}, {S(sPm,2)}")
    a(f"v_pk_mul_f32 {V(oacc,2)}, {V(oacc,2)}, {V(tmp,2)} op_sel_hi:[1,0]")
    a(f"v_pk_mul_f32 {V(oacc+2,2)}, {V(oacc+2,2)}, {V(tmp,2)} op_sel_hi:[1,0]")
    seq(cvt(tmp+2, oacc, oacc+1), cvt(tmp+3, oacc+2, oacc+3))
    a(f"ds_write_b64 {V(vL16)}, {V(tmp+2,2)} offset:{L_O + (w//2)*1024 + (w%2)*8}")
    seq(z[6:], zero(oacc, 8), lg(0))
    if prof:
        a(f"s_cmp_eq_u32 {S(sS)}, {cfg.get('snap', 41)}")
        a(f"s_cbranch_scc0 {P}_nd")
        for i in range(NST):
            a(f"s_mov_b32 {S(72 + i)}, {S(sT + 2*i)}")
        a(f"{P}_nd:")
    a("s_barrier")
    stamp(a, 'B4', prof)
    a(f"ds_read_b128 {V(of,4)}, {V(vL16)} offset:{L_O}")
    a(f"ds_read_b128 {V(of+4,4)}, {V(vL16)} offset:{L_O + 1024}")
    kvs = 0 if cfg.get('samekv') else 32*8192
    sal = [f"s_add_u32 {S(sKX)}, {S(sKX)}, {kvs}",
           f"s_add_u32 {S(sVX)}, {S(sVX)}, {kvs}",
           f"s_add_u32 {S(sS)}, {S(sS)}, 1",
           f"s_add_u32 {S(sM2r)}, {S(sM2r)}, 8192",
           f"s_and_b32 {S(sM2r)}, {S(sM2r)}, {~0x8000 & 0xffffffff:#x}",
           f"s_add_u32 {S(sWarm)}, {S(sWarm)}, {kvs}",
           f"s_add_u32 {S(sMG)}, {S(sMG)}, 8192",
           f"s_xor_b32 {S(sClr)}, {S(sM2w)}, 16384"]
    seq(stO[12:16], sal)
    wacc = [accQ + 4 * i for i in range(6)] + [oacc, oacc + 4]
    ms = [smf_s(wacc[T], of + 4 * ko, oblk(T, ko)) for T in range(8) for ko in range(2)]
    def ad(T): return padd(wacc[T])
    def pk(tt):
        r0, r1, r2, r3 = wacc[4*tt:4*tt+4]
        return [cvt(r0, r0, r1), f"v_bfi_b32 {V(r0)}, 1, {S(sTag)}, {V(r0)}", cvt(r0+1, r0+1, r1+1), cvt(r0+2, r2, r3), cvt(r0+3, r2+1, r3+1),
                f"buffer_store_dwordx4 {V(r0,4)}, {V(vP1st)}, {S(sSRD,4)}, {S(sP1st if tt == 0 else sP1st2)} offen {st}"]
    p0, p1 = pk(0), pk(1)
    seq(lg(5), ms[0], ms[2], lg(4), ms[1], ms[3], ms[4], ad(0)[0], ms[5], ad(1)[0], ms[6], ad(0)[1], ms[7], ad(1)[1])
    seq(ms[8], p0[0], ad(2)[0], ms[9], ad(2)[1], ad(3), p0[1:5], ms[10], p0[5])
    stamp(a, 'st0', prof)
    seq(ms[11], ad(4)[0], ms[12], ad(4)[1], ms[13], lg(0), ad(5)[0], ms[14], ad(5)[1], ms[15], p1[0:3], ad(6), ad(7), p1[3:6])
    stamp(a, 'st1', prof)
    fillers = stQ + zero(accQ, 24) + [f"s_xor_b32 {S(sP1st)}, {S(sP1st)}, 262144", f"s_xor_b32 {S(sP1st2)}, {S(sP1st2)}, 262144"]
    early = w < 2
    cuts = list(cfg.get('e', [0, 10, 18, 32, 32]) if early else cfg.get('l', [16, 24, 32, 32, 32]))
    pads = list(cfg.get('pe', [8, 0, 4, 4, 4]) if early else cfg.get('pl', [14, 0, 0, 0, 4]))
    def pad(n): return ["s_nop 3"] * n
    pA, pB = poll_ops(56, 8, sP1ld), poll_ops(vVx, 8, sP1ld)
    seq(fillers[:cuts[0]], pad(pads[0]), pA, fillers[cuts[0]:cuts[1]], pad(pads[1]), pB, fillers[cuts[1]:cuts[2]])
    stamp(a, 'p1beg', prof)
    def red(r): return [f"v_mfma_f32_16x16x32_bf16 {V(48,4)}, {V(vSel,4)}, {V(r,4)}, 0",
                        f"v_mfma_f32_16x16x32_bf16 {V(48,4)}, {V(vSel,4)}, {V(r+4,4)}, {V(48,4)}"]
    def tck(r): return [f"v_and_b32 {V(vWarm)}, 1, {V(r)}", f"v_and_b32 {V(vB0)}, 1, {V(r+4)}",
                        f"v_add_u32 {V(vWarm)}, {V(vWarm)}, {V(vB0)}", f"v_cmp_ne_u32 vcc, {S(sTag2)}, {V(vWarm)}"]
    seq(vm(3), red(56)[0], vm(2), red(56)[1])
    stamp(a, 'p1A', prof)
    seq(tck(56))
    a(f"s_cbranch_vccnz {P}_p1")
    a(f"{P}_p1_ok:")
    tail += [f"{P}_p1:"] + pA + [vm(2)] + red(vVx) + tck(vVx) + [f"s_cbranch_vccz {P}_p1_ok"]
    tail += [f"{P}_p1l:"] + spin(f"{P}_p1_to") + slp + pB + [vm(2)] + red(56) + tck(56) + [f"s_cbranch_vccz {P}_p1_ok"]
    tail += slp + pA + [vm(2)] + red(vVx) + tck(vVx) + [f"s_cbranch_vccnz {P}_p1l", f"s_branch {P}_p1_ok"]
    tail += [f"{P}_p1_to:", f"s_mov_b32 {S(sSpin)}, 0", f"s_branch {P}_p1_ok"]
    stamp(a, 'p1ok', prof)
    fin = [f"v_add_f32_dpp {V(48)}, {V(48)}, {V(48)} row_ror:4 row_mask:0xf bank_mask:0xf",
           f"v_add_f32_dpp {V(49)}, {V(49)}, {V(49)} row_ror:4 row_mask:0xf bank_mask:0xf",
           f"v_add_f32_dpp {V(48)}, {V(48)}, {V(48)} row_ror:8 row_mask:0xf bank_mask:0xf",
           f"v_add_f32_dpp {V(49)}, {V(49)}, {V(49)} row_ror:8 row_mask:0xf bank_mask:0xf",
           cvt(vPub, 48, 49)]
    seq(f"s_cmp_eq_u32 {S(sS)}, 63", f"s_cbranch_scc1 {P}_fin")
    if not early: seq(peA)
    seq(fin)
    a(f"buffer_store_dword {V(vPub)}, {V(vM2st)}, {S(sSRD,4)}, {S(sM2w)} offen {st}")
    stamp(a, 'st2', prof)
    post = [f"s_add_u32 {S(sM2w)}, {S(sM2w)}, 8192", f"s_and_b32 {S(sM2w)}, {S(sM2w)}, {~0x8000 & 0xffffffff:#x}",
            f"s_xor_b32 {S(sP1ld)}, {S(sP1ld)}, 262144", f"s_and_b32 {S(sTag2)}, {S(sS)}, 2", f"s_lshr_b32 {S(sTag)}, {S(sTag2)}, 1"]
    seq(fillers[cuts[2]:cuts[3]], post, pad(pads[2]))
    if early: seq(peA)
    seq(fillers[cuts[3]:cuts[4]], pad(pads[3]), peB, fillers[cuts[4]:], pad(pads[4]), peC)
    a(f"s_branch {P}_top")
    seq(tail)
    a(f"{P}_fin:")
    seq(fin)
    a(f"buffer_store_dword {V(vPub)}, {V(vM2st)}, {S(sSRD,4)}, {S(sMG)} offen sc1")

def rec_setup_consts(a, w):
    t0, t1, t2 = 16, 17, 18
    a(f"v_and_b32 {V(t0)}, 15, v0")
    a(f"v_lshrrev_b32 {V(t1)}, 4, v0")
    a(f"v_lshlrev_b32 {V(vL16)}, 4, v0")
    a(f"v_add_u32 {V(vWl)}, {L_W + w*WREG}, {V(vL16)}")
    a(f"v_and_b32 {V(t2)}, 2, {V(t0)}")
    a(f"v_mov_b32 {V(vIdx)}, 0x4444")
    a(f"v_mov_b32 {V(vWarm)}, 0xeeee")
    a(f"v_cmp_eq_u32 vcc, 2, {V(t2)}")
    a(f"v_cndmask_b32 {V(vIdx)}, {V(vIdx)}, {V(vWarm)}, vcc")
    a(f"s_mov_b64 {S(sPm,2)}, vcc")
    a(f"v_mul_u32_u24 {V(vQKw)}, {2*RS}, {V(t1)}")
    a(f"v_lshl_add_u32 {V(vQKw)}, {V(t0)}, 2, {V(vQKw)}")
    a(f"v_add_u32 {V(vQKw)}, {L_Q + 64*w}, {V(vQKw)}")
    a(f"v_lshrrev_b32 {V(t2)}, 2, {V(t0)}")
    a(f"v_lshlrev_b32 {V(t2)}, 1, {V(t2)}")
    a(f"v_and_b32 {V(vQKr)}, 1, {V(t0)}")
    a(f"v_add_u32 {V(t2)}, {V(t2)}, {V(vQKr)}")
    a(f"v_mul_u32_u24 {V(vQKr)}, {RS}, {V(t2)}")
    a(f"v_lshl_add_u32 {V(vQKr)}, {V(t1)}, 4, {V(vQKr)}")
    a(f"v_add_u32 {V(vQKr)}, {L_Q}, {V(vQKr)}")
    a(f"v_lshlrev_b32 {V(vP1st)}, 14, {V(t1)}")
    a(f"v_lshrrev_b32 {V(t2)}, 3, {V(t0)}")
    a(f"v_lshl_add_u32 {V(vP1st)}, {V(t2)}, 13, {V(vP1st)}")
    a(f"v_bfe_u32 {V(t2)}, {V(t0)}, 2, 1")
    a(f"v_lshl_add_u32 {V(vP1st)}, {V(t2)}, 11, {V(vP1st)}")
    a(f"v_and_b32 {V(t2)}, 3, {V(t0)}")
    a(f"v_lshl_add_u32 {V(vP1st)}, {V(t2)}, 4, {V(vP1st)}")
    a(f"v_lshlrev_b32 {V(vM2st)}, 4, {V(t1)}")
    a(f"v_lshl_add_u32 {V(vM2st)}, {V(t0)}, 2, {V(vM2st)}")
    a(f"v_mov_b32 {V(vWarm)}, 0x40000000")
    a(f"v_cmp_gt_u32 vcc, 4, {V(t0)}")
    a(f"v_cndmask_b32 {V(vM2st)}, {V(vWarm)}, {V(vM2st)}, vcc")
    for r in range(4):
        a(f"v_mov_b32 {V(vSel+r)}, 0")
        a(f"v_mov_b32 {V(vWarm)}, 0x3f80")
        a(f"v_cmp_eq_u32 vcc, {4*r}, {V(t0)}")
        a(f"v_cndmask_b32 {V(vSel+r)}, {V(vSel+r)}, {V(vWarm)}, vcc")
        a(f"v_mov_b32 {V(vWarm)}, 1.0")
        a(f"v_cmp_eq_u32 vcc, {4*r+1}, {V(t0)}")
        a(f"v_cndmask_b32 {V(vSel+r)}, {V(vSel+r)}, {V(vWarm)}, vcc")
    for r in range(4): a(f"v_mov_b32 {V(vB0+r)}, 0")
    a(f"s_mov_b32 {S(sS)}, 0")
    a(f"s_mov_b32 {S(sM2r)}, {M2B + w*2048}")
    a(f"s_lshl_b32 {S(sTmp)}, {S(sH)}, 13")
    a(f"s_add_u32 {S(sKX)}, {S(sTmp)}, {KXB + w*2048}")
    a(f"s_add_u32 {S(sVX)}, {S(sTmp)}, {VXB + w*2048}")
    a(f"s_add_u32 {S(sWarm)}, {S(sTmp)}, {(KXB if w < 2 else VXB) + (w%2)*4096 + (2 if w < 2 else 1)*32*8192}")
    a(f"s_add_u32 {S(sP1ld)}, {S(sTmp)}, {P1B + w*2048}")
    a(f"s_lshr_b32 {S(sTmp)}, {S(sH)}, 4")
    a(f"s_lshl_b32 {S(sP1st)}, {S(sTmp)}, 10")
    a(f"s_and_b32 {S(sTmp)}, {S(sH)}, 3")
    a(f"s_lshl_b32 {S(sTmp)}, {S(sTmp)}, 8")
    a(f"s_add_u32 {S(sP1st)}, {S(sP1st)}, {S(sTmp)}")
    a(f"s_and_b32 {S(sTmp)}, {S(sH)}, 12")
    a(f"s_lshl_b32 {S(sTmp)}, {S(sTmp)}, 4")
    a(f"s_add_u32 {S(sP1st)}, {S(sP1st)}, {S(sTmp)}")
    a(f"s_add_u32 {S(sP1st)}, {S(sP1st)}, {P1B + 8*w*8192}")
    a(f"s_add_u32 {S(sP1st2)}, {S(sP1st)}, 4096")
    a(f"s_lshr_b32 {S(sTmp)}, {S(sH)}, 3")
    a(f"s_lshl_b32 {S(sM2w)}, {S(sTmp)}, 11")
    a(f"s_and_b32 {S(sTmp)}, {S(sH)}, 6")
    a(f"s_lshl_b32 {S(sTmp)}, {S(sTmp)}, 5")
    a(f"s_add_u32 {S(sM2w)}, {S(sM2w)}, {S(sTmp)}")
    a(f"s_and_b32 {S(sTmp)}, {S(sH)}, 1")
    a(f"s_lshl_b32 {S(sTmp)}, {S(sTmp)}, 9")
    a(f"s_add_u32 {S(sM2w)}, {S(sM2w)}, {S(sTmp)}")
    a(f"s_add_u32 {S(sM2w)}, {S(sM2w)}, {M2B + 1024*(w//2) + 256*(w%2)}")
    a(f"s_mov_b32 {S(sSpin)}, {SPIN_MAX}")
    a(f"s_mov_b32 {S(sTag)}, 0")
    a(f"s_mov_b32 {S(sTag2)}, 0")
    a(f"s_add_u32 {S(sClr)}, {S(sM2w)}, 16384")
    a(f"s_add_u32 {S(sMG)}, {S(sM2w)}, {MGB - M2B}")
    a(f"s_mov_b32 {S(sReady)}, 0")
    import struct
    c = struct.unpack('<I', struct.pack('<f', 128 ** -0.5 * math.log2(math.e)))[0]
    a(f"s_mov_b32 {S(sC)}, {c:#x}")
    a(f"s_mov_b32 {S(sC+1)}, {c:#x}")
    a(f"s_mov_b32 {S(sOne)}, 0x3f803f80")
    a(f"s_mov_b32 {S(sOne+1)}, 0x3f803f80")


def rec_clear(a, w):
    for i in range(4): a(f"v_mov_b32 {V(52+i)}, -1")
    for sl in range(2):
        a(f"s_add_u32 {S(sTmp)}, {S(sP1ld)}, {sl*262144}")
        a(f"buffer_store_dwordx4 {V(52,4)}, {V(vL16)}, {S(sSRD,4)}, {S(sTmp)} offen sc1")
        a(f"buffer_store_dwordx4 {V(52,4)}, {V(vL16)}, {S(sSRD,4)}, {S(sTmp)} offen offset:1024 sc1")
    if w == 3:
        a(f"v_mov_b64 {V(48,2)}, 0")
        a(f"v_lshrrev_b32 {V(50)}, 1, {V(vL16)}")
        a(f"s_lshl_b32 {S(sTmp)}, {S(sH)}, 9")
        a(f"s_add_u32 {S(sTmp)}, {S(sTmp)}, {FLB}")
        a(f"buffer_store_dwordx2 {V(48,2)}, {V(50)}, {S(sSRD,4)}, {S(sTmp)} offen sc1")
    a(f"s_lshl_b32 {S(sTmp)}, {S(sH)}, 14")
    a(f"s_add_u32 {S(sTmp)}, {S(sTmp)}, {MGB + w*4096}")
    for i in range(4):
        a(f"buffer_store_dwordx4 {V(52,4)}, {V(vL16)}, {S(sSRD,4)}, {S(sTmp)} offen offset:{1024*i} sc1")
    for sl in range(4):
        a(f"s_add_u32 {S(sTmp)}, {S(sM2w)}, {sl*8192}")
        a(f"buffer_store_dword {V(52)}, {V(vM2st)}, {S(sSRD,4)}, {S(sTmp)} offen sc1")

def rec_load_weights(a, w, sArg, lane, clear, first, mid, late, cfg):
    sq, sk, sv, so = 32, 36, 40, 44
    a(f"s_load_dwordx2 {S(sq,2)}, {S(sArg,2)}, 16")
    a(f"s_load_dwordx2 {S(sk,2)}, {S(sArg,2)}, 24")
    a(f"s_load_dwordx2 {S(sv,2)}, {S(sArg,2)}, 32")
    a(f"s_load_dwordx2 {S(so,2)}, {S(sArg,2)}, 40")
    for r in (sq, sk, sv, so):
        a(f"s_mov_b32 {S(r+2)}, {4 << 20}")
        a(f"s_mov_b32 {S(r+3)}, 0x20000")
    va, vb, ra, rb, t0, t1 = 16, 17, 18, 19, 21, 22
    base = L_W + w * WREG
    a(f"v_lshrrev_b32 {V(va)}, 2, {V(lane)}")
    a(f"v_lshlrev_b32 {V(va)}, 13, {V(va)}")
    a(f"v_and_b32 {V(t0)}, 3, {V(lane)}")
    a(f"v_lshl_add_u32 {V(va)}, {V(t0)}, 4, {V(va)}")
    a(f"v_lshrrev_b32 {V(vb)}, 3, {V(lane)}")
    a(f"v_lshlrev_b32 {V(vb)}, 10, {V(vb)}")
    a(f"v_and_b32 {V(t1)}, 7, {V(lane)}")
    a(f"v_lshl_add_u32 {V(vb)}, {V(t1)}, 4, {V(vb)}")
    a(f"v_lshlrev_b32 {V(ra)}, 3, {V(t0)}")
    a(f"v_add_u32 {V(ra)}, {base}, {V(ra)}")
    a(f"v_mov_b32 {V(rb)}, {V(ra)}")
    a(f"v_bfe_u32 {V(t1)}, {V(lane)}, 2, 2")
    a(f"v_lshl_add_u32 {V(ra)}, {V(t1)}, 10, {V(ra)}")
    a(f"v_lshrrev_b32 {V(t1)}, 4, {V(lane)}")
    a(f"v_lshl_add_u32 {V(ra)}, {V(t1)}, 7, {V(ra)}")
    for bit, sh in ((4, 12), (3, 11), (5, 9), (2, 7)):
        a(f"v_bfe_u32 {V(t1)}, {V(lane)}, {bit}, 1")
        a(f"v_lshl_add_u32 {V(rb)}, {V(t1)}, {sh}, {V(rb)}")
    s1, s2 = 48, 49
    a(f"s_lshl_b32 {S(s1)}, {S(sH)}, 8")
    a(f"s_add_u32 {S(s1)}, {S(s1)}, {64*w}")
    a(f"s_lshl_b32 {S(s2)}, {S(sH)}, 17")
    a(f"s_add_u32 {S(s2)}, {S(s2)}, {256*w}")
    a("s_waitcnt lgkmcnt(0)")
    order = korder(w)
    def slot_off(u): return (u % 4) * 4096 + (9 * 2048 if (u // 4) % 2 else 0)
    def sub(blk, p2):
        k, b = blk[0], int(blk[2:].split(':')[0])
        return R(k, b + 2 * p2, 2)
    qd = lambda ks, t: qblk(w, ks, t)
    mid_units = []
    for i in range(8):
        mid_units += [('m', sk, i, kblk), ('m', sv, i, vblk)]
        if i % 2 == 1: mid_units.append(('m', sq, order[4 + i // 2], qd))
    units = [('o', 0, q) for q in range(4)] + mid_units + [('m', sq, ks, qd) for ks in order[:4]] + [('o', 1, q) for q in range(4)]
    assert len(units) == 32
    def dma(u):
        x = units[u]
        for j in range(4):
            a(f"s_mov_b32 m0, {base + slot_off(u) + j*1024}")
            if x[0] == 'm':
                a(f"s_add_u32 {S(sTmp)}, {S(s1)}, {(64*x[2] + 16*j) * 8192}")
                a(f"buffer_load_dwordx4 {V(va)}, {S(x[1],4)}, {S(sTmp)} offen lds")
            else:
                a(f"s_add_u32 {S(sTmp)}, {S(s2)}, {(4*x[2] + j)*8192 + x[1]*128}")
                a(f"buffer_load_dwordx4 {V(vb)}, {S(so,4)}, {S(sTmp)} offen lds")
    def rd(u):
        x = units[u]
        if x[0] == 'm':
            for t in range(2):
                for p2 in range(4):
                    a(f"ds_read_b64_tr_b16 {sub(x[3](x[2], t), p2)}, {V(ra)} offset:{slot_off(u) + (8*(p2//2) + p2%2)*64 + t*32}")
        elif x[2] % 2 == 1:
            ko = x[2] // 2
            for tp in range(4):
                for p2 in range(4):
                    a(f"ds_read_b64_tr_b16 {sub(oblk(4*x[1]+tp, ko), p2)}, {V(rb)} offset:{slot_off(u-1) + (8*(p2//2) + 2*(p2%2))*128 + tp*32}")
    def wb(slot0, x0, n):
        for i in range(n):
            for hf in range(2):
                a(f"ds_write_b128 {V(vWl)}, {V(X + 8*(x0+i) + 4*hf, 4)} offset:{(slot0+i)*2048 + hf*1024}")
    log = []
    def issue(u): dma(u); log.extend([u] * 4)
    def younger(u): return len(log) - 1 - max(i for i, x in enumerate(log) if x == u)
    for u in range(4): issue(u)
    log.extend(['c'] * clear())
    for u in range(4, 8): issue(u)
    for u in range(32):
        x = units[u]
        if x[0] == 'o' and x[2] % 2 == 0: continue
        a(f"s_waitcnt vmcnt({younger(u) if u < 31 else 0})")
        if PSTART[0] and u % 4 == 3: a(f"s_memrealtime {S(72+2*(u//4),2)}")
        if u == 4: first()
        if u == 26:
            a(f"s_waitcnt vmcnt({younger('m')})")
            late()
        rd(u)
        a("s_waitcnt lgkmcnt(0)")
        if x[0] == 'm' and x[1] == sq and x[2] == order[4]: wb(8, 8, 1)
        if 24 <= u < 28: wb(2 * (u - 24), 2 * (u - 24), 2)
        if u == 27: a("s_waitcnt lgkmcnt(0)")
        if u == 31: wb(9, 0, 8); a("s_waitcnt lgkmcnt(0)")
        if u == 18: mid(); log.extend(['m'] * 3)
        for v in ([u - 1, u] if x[0] == 'o' else [u]):
            if v + 8 < 32: issue(v + 8)

def rec_m0_loads(a, w, sMem, lane):
    a(f"v_and_b32 v21, 3, {V(lane)}")
    a(f"v_lshrrev_b32 v22, 4, {V(lane)}")
    a("v_and_b32 v23, 1, v22")
    a("v_lshlrev_b32 v23, 10, v23")
    a("v_lshrrev_b32 v22, 1, v22")
    a("v_lshl_add_u32 v23, v22, 6, v23")
    a("v_lshl_add_u32 v23, v21, 1, v23")
    a(f"s_and_b32 {S(sTmp)}, {S(sH)}, 6")
    a(f"s_lshl_b32 {S(sTmp)}, {S(sTmp)}, 10")
    a(f"s_lshr_b32 s100, {S(sH)}, 3")
    a(f"s_lshl_b32 s100, s100, 8")
    a(f"s_add_u32 {S(sTmp)}, {S(sTmp)}, s100")
    a(f"s_and_b32 s100, {S(sH)}, 1")
    a(f"s_lshl_b32 s100, s100, 4")
    a(f"s_add_u32 {S(sTmp)}, {S(sTmp)}, s100")
    a(f"s_add_u32 {S(sTmp)}, {S(sTmp)}, {128*(w//2) + 8*(w%2)}")
    a(f"v_add_u32 v23, {S(sTmp)}, v23")
    a(f"global_load_ushort v24, v23, {S(sMem,2)}")
    a(f"global_load_ushort v25, v23, {S(sMem,2)} offset:32")

def rec_role(a, sArg, sDbg, sW, sXcc, end, prof=0, cfg={}):
    L = a.newlabel("RR")
    sMem, sMode = 50, 97
    if prof: a("s_memrealtime s[90:91]")
    PSTART[0] = prof == 1
    a(f"s_load_dwordx2 {S(sMem,2)}, {S(sArg,2)}, 8")
    a(f"s_lshl_b32 {S(sFlag)}, {S(sH)}, 7")
    a(f"s_add_u32 {S(sFlag)}, {S(sFlag)}, {F_KV}")
    for w in range(1, 4):
        a(f"s_cmp_eq_u32 {S(sW)}, {w}")
        a(f"s_cbranch_scc1 {L}_w{w}")
    for w in range(4):
        a(f"{L}_w{w}:")
        a("v_mov_b32 v20, v0")
        rec_setup_consts(a, w)
        def clear():
            rec_clear(a, w)
            return 13 if w == 3 else 12
        def first():
            a("s_barrier")
            if w == 0:
                a(f"s_cmp_lg_u32 {S(sXcc)}, 0")
                a(f"s_cselect_b32 {S(sTmp)}, 0x10001, 1")
                a(f"v_mov_b32 v21, {S(sTmp)}")
                a(f"v_mov_b32 v22, {4*D_REC}")
                a("s_mov_b64 exec, 1")
                a(f"global_atomic_add v22, v21, {S(sDbg,2)}")
                a("s_mov_b64 exec, -1")
        def mid():
            rec_m0_loads(a, w, sMem, 20)
            a(f"v_mov_b32 v22, {4*D_REC}")
            a(f"global_load_dword v21, v22, {S(sDbg,2)} sc1")
        def late():
            a(f"{L}_c{w}:")
            a(f"v_readfirstlane_b32 {S(sMode)}, v21")
            a(f"s_and_b32 s100, {S(sMode)}, 0xffff")
            a(f"s_cmp_ge_u32 s100, 32")
            a(f"s_cbranch_scc1 {L}_d{w}")
            a(f"global_load_dword v21, v22, {S(sDbg,2)} sc1")
            a(f"s_sub_u32 {S(sSpin)}, {S(sSpin)}, 1")
            a(f"s_cbranch_scc1 {end}")
            a("s_waitcnt vmcnt(0)")
            a(f"s_branch {L}_c{w}")
            a(f"{L}_d{w}:")
            a(f"v_lshl_or_b32 {V(vPub)}, v25, 16, v24")
            a(f"buffer_store_dword {V(vPub)}, {V(vM2st)}, {S(sSRD,4)}, {S(sM2w)} offen sc1")
            a(f"buffer_load_dwordx4 {V(28,4)}, off, {S(sSRD,4)}, {S(sFlag)} sc1")
            a(f"s_add_u32 {S(sM2w)}, {S(sM2w)}, 8192")
            if w == 0 and cfg.get('hold') is not None:
                a(f"v_mov_b32 v21, 1\nv_mov_b32 v22, {4*D_GO}\ns_mov_b64 exec, 1")
                a(f"global_atomic_add v22, v21, {S(sDbg,2)}")
                a("s_mov_b64 exec, -1")
        rec_load_weights(a, w, sArg, 20, clear, first, mid, late, cfg)
        for x in ready_calc(28): a(x)
        a(f"s_cmp_gt_u32 {S(sMode)}, 0xffff")
        a(f"s_cbranch_scc1 {L}_s{w}")
        if prof:
            a("s_memtime s[68:69]\ns_memrealtime s[92:93]\ns_waitcnt lgkmcnt(0)")
        rec_loop(a, w, '', prof > 1, cfg=cfg)
        if prof:
            a("s_memtime s[70:71]\ns_memrealtime s[94:95]\ns_waitcnt lgkmcnt(0)")
            a("s_sub_u32 s88, s70, s68\ns_sub_u32 s89, s94, s92\ns_sub_u32 s90, s92, s90")
            a(f"s_mov_b32 s91, {S(sSpin)}")
            a(f"s_lshl_b32 s63, {S(sH)}, 9")
            a(f"s_add_u32 s63, s63, {PROFB + w*128}")
            a("v_mov_b32 v1, 0")
            a("s_mov_b32 s93, s68")
            if prof == 1: a("s_getreg_b32 s73, hwreg(HW_REG_HW_ID)")
            for i in range(22):
                a(f"v_mov_b32 v2, {S(72+i)}")
                a(f"buffer_store_dword v2, v1, {S(sSRD,4)}, s63 offen offset:{4*i}")
        a(f"s_branch {end}")
        a(f"{L}_s{w}:")
        rec_loop(a, w, 'sc1', False, cfg=cfg)
        a(f"s_branch {end}")
```

```python
from asm import *
from layout import *
import struct, math
def f32bits(x): return struct.unpack('<I', struct.pack('<f', x))[0]
sWS = 4

def xlane_reduce16_32(a, op, r, t):
    for sw in ('v_permlane16_swap_b32', 'v_permlane32_swap_b32'):
        a(f"v_mov_b32 {V(t)}, {V(r)}")
        a(f"{sw} {V(r)}, {V(t)}")
        a(f"{op} {V(r)}, {V(r)}, {V(t)}")

def gate_role(a, sArg, sBlk, sW, st=''):
    L = a.newlabel("GT")
    sX, sG, sOff, sJ = 8, 12, 16, 17
    a(f"s_load_dwordx2 {S(sX,2)}, {S(sArg,2)}, 0")
    a(f"s_load_dwordx2 {S(sG,2)}, {S(sArg,2)}, 80")
    a(f"s_mov_b32 {S(sX+2)}, {2048*1024}")
    a(f"s_mov_b32 {S(sX+3)}, 0x20000")
    a(f"v_lshlrev_b32 v1, 4, v0")
    a(f"s_lshl_b32 {S(sOff)}, {S(sBlk)}, 2")
    a(f"s_add_u32 {S(sOff)}, {S(sOff)}, {S(sW)}")
    a(f"s_lshl_b32 s18, {S(sOff)}, 9")
    a(f"s_lshl_b32 {S(sOff)}, {S(sOff)}, 16")
    a("s_waitcnt lgkmcnt(0)")
    a(f"global_load_dwordx4 v[4:7], v1, {S(sG,2)}")
    a("s_waitcnt vmcnt(0)")
    for i in range(4):
        a(f"v_lshlrev_b32 {V(8+2*i)}, 16, {V(4+i)}")
        a(f"v_and_b32 {V(9+2*i)}, 0xffff0000, {V(4+i)}")
    a("v_mov_b32 v2, 0")
    a(f"s_mov_b32 {S(sJ)}, 0")
    a(f"{L}_loop:")
    for j in range(4):
        a(f"buffer_load_dwordx4 {V(32+4*j,4)}, v1, {S(sX,4)}, {S(sOff)} offen offset:{j*1024}")
    for j in range(4):
        a(f"s_waitcnt vmcnt({3-j})")
        for i in range(4):
            x = 32 + 4*j + i
            a(f"v_lshlrev_b32 v16, 16, {V(x)}")
            a(f"v_and_b32 v17, 0xffff0000, {V(x)}")
            a(f"v_mul_f32 v16, v16, {V(8+2*i)}")
            a(f"v_mul_f32 v17, v17, {V(9+2*i)}")
            a(f"v_cvt_pk_bf16_f32 v18, v16, v17")
            a(f"v_lshlrev_b32 v16, 16, v18")
            a(f"v_and_b32 v17, 0xffff0000, v18")
            if i == 0: a("v_add_f32 v19, v16, v17")
            else:
                a("v_add_f32 v19, v19, v16"); a("v_add_f32 v19, v19, v17")
        for ror in (1, 2, 4, 8):
            a(f"v_add_f32_dpp v19, v19, v19 row_ror:{ror} row_mask:0xf bank_mask:0xf")
        xlane_reduce16_32(a, "v_add_f32", 19, 20)
        a(f"v_cmp_eq_u32 vcc, {S(sJ)}, v0")
        a(f"v_cndmask_b32 v2, v2, v19, vcc")
        a(f"s_add_u32 {S(sJ)}, {S(sJ)}, 1")
    a(f"s_add_u32 {S(sOff)}, {S(sOff)}, 4096")
    a(f"s_cmp_lt_u32 {S(sJ)}, 64")
    a(f"s_cbranch_scc1 {L}_loop")
    a("v_cvt_pk_bf16_f32 v2, v2, v2")
    a("v_lshlrev_b32 v2, 16, v2")
    a(f"v_mul_f32 v2, {f32bits(-math.log2(math.e)):#x}, v2")
    a("v_exp_f32 v2, v2")
    a("v_add_f32 v2, 1.0, v2")
    a("v_rcp_f32 v2, v2")
    a("v_cvt_pk_bf16_f32 v2, v2, v2")
    a("v_lshlrev_b32 v2, 16, v2")
    a("v_sub_f32 v3, 1.0, v2")
    a("v_cvt_pk_bf16_f32 v3, v3, v3")
    a("v_lshlrev_b32 v3, 16, v3")
    a("v_lshlrev_b32 v1, 3, v0")
    a(f"s_add_u32 s18, s18, {GB}")
    a(f"buffer_store_dwordx2 v[2:3], v1, {S(sWS,4)}, s18 offen {st}")
    a("s_waitcnt vmcnt(0)")

def battn_role(a, sH, sPart, sW, ld='', st=''):
    L = a.newlabel("BA")
    NU = 3
    sT0, sMask, sI, sSeg = 16, 18, 20, 21
    vL16, vKa, vVa, vT = 1, 2, 3, 4
    Q = 8; KF = 20; VF = 28; PB = 44; NM = 64; OA = 112; SB = 160; MX = 208; GG = 216
    a(f"v_lshlrev_b32 {V(vL16)}, 4, v0")
    a(f"s_lshl_b32 {S(sT0)}, {S(sH)}, 16")
    a(f"s_lshl_b32 {S(sT0+1)}, {S(sW)}, 14")
    a(f"s_add_u32 {S(sT0)}, {S(sT0)}, {S(sT0+1)}")
    for m, base in ((0, KBB), (1, VBB)):
        for j in range(4):
            a(f"s_add_u32 m0, {S(sT0+1)}, {m*65536 + j*4096}")
            a(f"s_add_u32 {S(sI)}, {S(sT0)}, {base + j*4096}")
            for i in range(4):
                a(f"buffer_load_dwordx4 {V(vL16)}, {S(sWS,4)}, {S(sI)} offen offset:{i*1024} {ld} lds")
        if m == 0:
            a(f"s_mul_i32 {S(sSeg)}, {S(sPart)}, 12")
            a(f"s_mul_i32 {S(sI)}, {S(sW)}, 3")
            a(f"s_add_u32 {S(sSeg)}, {S(sSeg)}, {S(sI)}")
            a(f"v_and_b32 {V(vT)}, 31, v0")
            a(f"v_lshlrev_b32 {V(vT)}, 3, {V(vT)}")
            for u in (2, 1, 0):
                a(f"s_add_u32 {S(sSeg+u)}, {S(sSeg)}, {u}")
                a(f"s_min_u32 {S(sSeg+u)}, {S(sSeg+u)}, 63")
            for u in range(NU):
                a(f"s_lshl_b32 {S(sI)}, {S(sH)}, 6")
                a(f"s_add_u32 {S(sI)}, {S(sI)}, {S(sSeg+u)}")
                a(f"s_lshl_b32 {S(sI)}, {S(sI)}, 10")
                a(f"s_add_u32 {S(sI)}, {S(sI)}, {QBB}")
                a(f"buffer_load_dwordx4 {V(Q+4*u,4)}, {V(vL16)}, {S(sWS,4)}, {S(sI)} offen {ld}")
                a(f"s_lshl_b32 {S(sI)}, {S(sSeg+u)}, 8")
                a(f"s_add_u32 {S(sI)}, {S(sI)}, {GB}")
                a(f"buffer_load_dword {V(GG+u)}, {V(vT)}, {S(sWS,4)}, {S(sI)} offen offset:4 {ld}")
    a(f"s_mov_b32 {S(sMask)}, 0xffff")
    a(f"s_mov_b32 {S(sMask+1)}, 0xffff")
    a(f"v_lshrrev_b32 {V(vVa)}, 5, v0")
    a(f"v_lshlrev_b32 {V(vVa)}, 8, {V(vVa)}")
    a(f"v_and_b32 {V(vT)}, 15, v0")
    a(f"v_lshl_add_u32 {V(vVa)}, {V(vT)}, 4, {V(vVa)}")
    a(f"v_add_u32 {V(vVa)}, 65536, {V(vVa)}")
    for i in range(16): a(f"v_mov_b32 {V(VF+i)}, 0x3f803f80")
    for u in range(NU):
        a(f"v_mov_b32 {V(MX+2*u)}, 0xff800000"); a(f"v_mov_b32 {V(MX+2*u+1)}, 0xff800000")
        for i in range(0, 16, 2): a(f"v_mov_b64 {V(OA+16*u+i,2)}, 0")
    a("s_waitcnt vmcnt(16)")
    a("s_barrier")
    a(f"v_mov_b32 {V(vKa)}, {V(vL16)}")
    a(f"ds_read_b128 {V(KF,4)}, {V(vKa)}")
    a(f"ds_read_b128 {V(KF+4,4)}, {V(vKa)} offset:1024")
    a(f"s_mov_b32 {S(sI)}, 0")
    def smf(u, kf, c): return f"v_mfma_f32_32x32x16_bf16 {V(SB+16*u,16)}, {V(kf,4)}, {V(Q+4*u,4)}, {c}"
    def mx(u):
        b = SB + 16 * u
        return [f"v_max3_f32 {V(MX+2*u+(i%2))}, {V(MX+2*u+(i%2))}, {V(b+2*i)}, {V(b+2*i+1)}" for i in range(8)]
    a("s_waitcnt lgkmcnt(1)")
    a(smf(0, KF, "0")); a(smf(1, KF, "0"))
    a(f"{L}_p1:")
    for par in range(2):
        kc, kn = KF + 4 * par, KF + 4 * (1 - par)
        a(smf(2, kc, "0"))
        a(f"ds_read_b128 {V(kc,4)}, {V(vKa)} offset:{2048 + 1024*par}")
        for x in mx(0): a(x)
        a("s_waitcnt lgkmcnt(1)")
        a(smf(0, kn, "0"))
        for x in mx(1): a(x)
        a(smf(1, kn, "0"))
        for x in mx(2): a(x)
    a(f"v_add_u32 {V(vKa)}, 2048, {V(vKa)}")
    a(f"s_add_u32 {S(sI)}, {S(sI)}, 2")
    a(f"s_cmp_lt_u32 {S(sI)}, 64")
    a(f"s_cbranch_scc1 {L}_p1")
    for u in range(NU):
        a(f"v_max_f32 {V(MX+2*u)}, {V(MX+2*u)}, {V(MX+2*u+1)}")
        a(f"v_mov_b32 {V(MX+2*u+1)}, {V(MX+2*u)}")
        a(f"v_permlane32_swap_b32 {V(MX+2*u)}, {V(MX+2*u+1)}")
        a(f"v_max_f32 {V(MX+2*u)}, {V(MX+2*u)}, {V(MX+2*u+1)}")
        for i in range(16): a(f"v_sub_f32 {V(NM+16*u+i)}, 0, {V(MX+2*u)}")
    a("s_waitcnt vmcnt(0) lgkmcnt(0)")
    a("s_barrier")
    def rdV(par, off):
        return [f"s_mov_b64 exec, {S(sMask,2)}",
                f"ds_read_b128 {V(VF+8*par,4)}, {V(vVa)} offset:{off}",
                f"ds_read_b128 {V(VF+8*par+4,4)}, {V(vVa)} offset:{off+512}",
                "s_mov_b64 exec, -1"]
    a(f"v_mov_b32 {V(vKa)}, {V(vL16)}")
    a(f"ds_read_b128 {V(KF,4)}, {V(vKa)}")
    a(f"ds_read_b128 {V(KF+4,4)}, {V(vKa)} offset:1024")
    for x in rdV(0, 0): a(x)
    for i in range(8): a(f"v_mov_b32 {V(PB+8+i)}, 0")
    a(f"s_mov_b32 {S(sI)}, 0")
    a("s_waitcnt lgkmcnt(0)")
    def smf2(u, kf): return smf(u, kf, V(NM+16*u, 16))
    def pv(u, vpar, pb, h): return f"v_mfma_f32_32x32x16_bf16 {V(OA+16*u,16)}, {V(VF+8*vpar+4*h,4)}, {V(PB+8*pb+4*h,4)}, {V(OA+16*u,16)}"
    a(smf2(0, KF)); a(smf2(1, KF))
    a(f"{L}_p2:")
    n = 0
    for par in range(2):
        kc, kn = KF + 4 * par, KF + 4 * (1 - par)
        for u in range(NU):
            b = SB + 16 * u
            pb = n % 2
            pu = (u - 1) % NU
            pvpar = par if u > 0 else 1 - par
            if u == 0: a(smf2(2, kc)); a(f"ds_read_b128 {V(kc,4)}, {V(vKa)} offset:{2048 + 1024*par}")
            elif u == 1: a("s_waitcnt lgkmcnt(3)"); a(smf2(0, kn))
            else: a(smf2(1, kn))
            for i in range(16):
                a(f"v_exp_f32 {V(b+i)}, {V(b+i)}")
                if i == 4: a(pv(pu, pvpar, 1 - pb, 0))
                if i == 9:
                    a(pv(pu, pvpar, 1 - pb, 1))
                    if u == 0:
                        for x in rdV(1 - par, 1024 + 1024 * par): a(x)
                if i >= 3 and i % 2 == 1: a(f"v_cvt_pk_bf16_f32 {V(PB+8*pb+(i-3)//2)}, {V(b+i-3)}, {V(b+i-2)}")
            a(f"v_cvt_pk_bf16_f32 {V(PB+8*pb+7)}, {V(b+14)}, {V(b+15)}")
            n += 1
    a(f"v_add_u32 {V(vKa)}, 2048, {V(vKa)}")
    a(f"v_add_u32 {V(vVa)}, 2048, {V(vVa)}")
    a(f"s_add_u32 {S(sI)}, {S(sI)}, 2")
    a(f"s_cmp_lt_u32 {S(sI)}, 64")
    a(f"s_cbranch_scc1 {L}_p2")
    a(pv(2, 1, 1, 0)); a(pv(2, 1, 1, 1))
    for u in range(NU):
        o = OA + 16 * u
        a(f"v_rcp_f32 {V(vT)}, {V(o+8)}")
        a(f"v_mul_f32 {V(vT)}, {V(vT)}, {V(GG+u)}")
        for i in range(8): a(f"v_mul_f32 {V(o+i)}, {V(o+i)}, {V(vT)}")
        for i in range(4): a(f"v_cvt_pk_bf16_f32 {V(o+8+i)}, {V(o+2*i)}, {V(o+2*i+1)}")
        a(f"s_mul_i32 {S(sI)}, {S(sSeg+u)}, 288")
        a(f"s_add_u32 {S(sI)}, {S(sI)}, {S(sH)}")
        a(f"s_lshl_b32 {S(sI)}, {S(sI)}, 10")
        a(f"s_add_u32 {S(sI)}, {S(sI)}, {OXB + 256*1024}")
        a(f"buffer_store_dwordx4 {V(o+8,4)}, {V(vL16)}, {S(sWS,4)}, {S(sI)} offen {st}")
    a("s_waitcnt vmcnt(0) lgkmcnt(0)")

T5_MASK = 24
def t5_setup(a):
    a("v_lshlrev_b32 v1, 4, v0")
    a("v_lshlrev_b32 v2, 3, v0")
    a("v_and_b32 v5, 15, v0")
    a("v_lshlrev_b32 v3, 3, v5")
    a("v_lshrrev_b32 v6, 4, v0")
    a("v_lshlrev_b32 v4, 9, v6")
    a("v_lshl_add_u32 v4, v5, 4, v4")
    for r in range(4):
        a(f"v_lshl_add_u32 v7, v6, 2, {r}")
        a(f"v_cmp_le_u32 {S(T5_MASK+2*r,2)}, v7, v5")
    a(f"s_mov_b32 s22, {f32bits(128 ** -0.5 * math.log2(math.e)):#x}")
    a("v_mov_b32 v5, 0xf149f2ca")
    a("v_mov_b32 v9, 0"); a("v_mov_b32 v10, 0")

def t5_loads_a(a, sS, sH, ld=''):
    Q, K, VV_, KM, VM, G = 16, 48, 80, 112, 128, 136
    a(f"s_lshl_b32 s16, {S(sS)}, 5")
    a(f"s_add_u32 s16, s16, {S(sH)}")
    a(f"s_lshl_b32 s17, s16, 13")
    for base, reg in ((QXB, Q), (KXB, K), (VXB, VV_)):
        for half in range(2):
            a(f"s_add_u32 s18, s17, {base + half*4096}")
            for i in range(4):
                a(f"buffer_load_dwordx4 {V(reg+16*half+4*i,4)}, v1, {S(sWS,4)}, s18 offen offset:{i*1024} {ld}")
    a(f"s_lshl_b32 s18, {S(sS)}, 8")
    a(f"s_add_u32 s18, s18, {GB}")
    a(f"buffer_load_dword {V(G)}, v3, {S(sWS,4)}, s18 offen {ld}")
    a(f"buffer_load_dword {V(G+1)}, v3, {S(sWS,4)}, s18 offen offset:128 {ld}")

def t5_loads_b(a, ld=''):
    KM, VM = 112, 128
    a(f"s_add_u32 s18, s17, {KVMB}")
    for i in range(4):
        a(f"buffer_load_dwordx4 {V(KM+4*i,4)}, v1, {S(sWS,4)}, s18 offen offset:{i*1024} {ld}")
    a(f"s_add_u32 s18, s18, 4096")
    for i in range(4):
        a(f"buffer_load_dwordx2 {V(VM+2*i,2)}, v1, {S(sWS,4)}, s18 offen offset:{i*1024} {ld}")

def t5_compute(a, sS, sH, st=''):
    Q, K, VV_, KM, VM, G = 16, 48, 80, 112, 128, 136
    Sm, S0, S1, PF, T, O = 140, 144, 148, 152, 156, 160
    B0, B1 = 8, 10
    a(f"s_mul_i32 s18, {S(sS)}, 288")
    a(f"s_lshl_b32 s19, {S(sH)}, 3")
    a(f"s_add_u32 s18, s18, s19")
    a(f"s_lshl_b32 s18, s18, 10")
    a(f"s_add_u32 s18, s18, {OXB}")
    a(f"s_add_u32 s19, s18, 4096")
    a("s_waitcnt vmcnt(0)")
    def mf(d, x, y, first): return f"v_mfma_f32_16x16x32_bf16 {V(d,4)}, {V(x,4)}, {V(y,4)}, {'0' if first else V(d,4)}"
    for qt in range(2):
        for kk in range(4):
            q = Q + 16 * qt + 4 * kk
            a(mf(Sm, KM + 4*kk, q, kk == 0))
            a(mf(S0, K + 4*kk, q, kk == 0))
            if qt == 1: a(mf(S1, K + 16 + 4*kk, q, kk == 0))
        dg = S0 if qt == 0 else S1
        for r in range(4):
            a(f"v_cndmask_b32 {V(dg+r)}, v5, {V(dg+r)}, {S(T5_MASK+2*r,2)}")
        ev = [Sm, Sm+1, S0, S0+1, S0+2, S0+3] + ([S1, S1+1, S1+2, S1+3] if qt else [])
        a(f"v_max3_f32 {V(T)}, {V(Sm)}, {V(Sm+1)}, {V(S0)}")
        a(f"v_max3_f32 {V(T)}, {V(T)}, {V(S0+1)}, {V(S0+2)}")
        if qt:
            a(f"v_max3_f32 {V(T)}, {V(T)}, {V(S0+3)}, {V(S1)}")
            a(f"v_max3_f32 {V(T)}, {V(T)}, {V(S1+1)}, {V(S1+2)}")
            a(f"v_max_f32 {V(T)}, {V(T)}, {V(S1+3)}")
        else:
            a(f"v_max_f32 {V(T)}, {V(T)}, {V(S0+3)}")
        xlane_reduce16_32(a, "v_max_f32", T, T+1)
        a(f"v_mul_f32 {V(T)}, s22, {V(T)}")
        for r in ev: a(f"v_fma_f32 {V(r)}, {V(r)}, s22, -{V(T)}")
        for r in ev: a(f"v_exp_f32 {V(r)}, {V(r)}")
        a(f"v_cvt_pk_bf16_f32 {V(B0)}, {V(Sm)}, {V(Sm+1)}")
        a(f"v_cvt_pk_bf16_f32 {V(B1+1)}, {V(Sm)}, {V(Sm+1)}")
        a(f"v_cvt_pk_bf16_f32 {V(PF)}, {V(S0)}, {V(S0+1)}")
        a(f"v_cvt_pk_bf16_f32 {V(PF+1)}, {V(S0+2)}, {V(S0+3)}")
        if qt:
            a(f"v_cvt_pk_bf16_f32 {V(PF+2)}, {V(S1)}, {V(S1+1)}")
            a(f"v_cvt_pk_bf16_f32 {V(PF+3)}, {V(S1+2)}, {V(S1+3)}")
        else:
            a(f"v_mov_b64 {V(PF+2,2)}, 0")
        for e in range(8):
            a(mf(O + 4*e, VV_ + 4*e, PF, True))
        for e in range(8):
            a(f"v_mfma_f32_16x16x16_bf16 {V(O+4*e,4)}, {V(VM+2*(e//2),2)}, {V(B0 if e%2==0 else B1,2)}, {V(O+4*e,4)}")
        a(f"v_add_f32 {V(T)}, {V(ev[0])}, {V(ev[1])}")
        for r in ev[2:]: a(f"v_add_f32 {V(T)}, {V(T)}, {V(r)}")
        xlane_reduce16_32(a, "v_add_f32", T, T+1)
        a(f"v_rcp_f32 {V(T)}, {V(T)}")
        a(f"v_mul_f32 {V(T)}, {V(T)}, {V(G+qt)}")
        for u in range(4):
            o = O + 8 * u
            for i in range(8): a(f"v_mul_f32 {V(o+i)}, {V(o+i)}, {V(T)}")
            d = 192 + 4 * u + 16 * qt
            for i in range(4): a(f"v_cvt_pk_bf16_f32 {V(d+i)}, {V(o+2*i)}, {V(o+2*i+1)}")
            a(f"buffer_store_dwordx4 {V(d,4)}, v4, {S(sWS,4)}, {'s18' if u < 2 else 's19'} offen offset:{(u%2)*2048 + qt*256} {st}")

def t6_wreg(i): return A(4*i, 4) if i < 64 else V(224 + 4*(i-64), 4)
def t6_wreg2(i, hf): return A(4*i + 2*hf, 2) if i < 64 else V(224 + 4*(i-64) + 2*hf, 2)
def t6_setup(a, sArg, sN, sW):
    L = a.newlabel("T6")
    a(f"s_load_dwordx2 s[8:9], {S(sArg,2)}, 40")
    a(f"s_load_dwordx2 s[12:13], {S(sArg,2)}, 72")
    a(f"s_mov_b32 s10, {4096*1024}\ns_mov_b32 s11, 0x20000\ns_mov_b32 s14, {512*1024}\ns_mov_b32 s15, 0x20000")
    a("v_lshlrev_b32 v1, 4, v0")
    a("v_lshrrev_b32 v2, 2, v0\nv_lshlrev_b32 v2, 10, v2\nv_and_b32 v3, 3, v0\nv_lshl_add_u32 v2, v3, 4, v2")
    a(f"s_lshl_b32 s16, {S(sN)}, 6")
    a("v_add_u32 v2, s16, v2")
    a(f"s_mul_i32 s17, {S(sW)}, 36864")
    a("v_lshrrev_b32 v4, 5, v0\nv_lshlrev_b32 v4, 8, v4\nv_bfe_u32 v5, v0, 2, 2\nv_lshl_add_u32 v4, v5, 6, v4")
    a("v_bfe_u32 v5, v0, 4, 1\nv_lshl_add_u32 v4, v5, 5, v4\nv_lshl_add_u32 v4, v3, 3, v4\nv_add_u32 v4, s17, v4")
    a(f"s_mul_i32 s18, {S(sW)}, {1152*1024}")
    a("s_waitcnt lgkmcnt(0)")
    def body(w3):
        for ch in range(2):
            for j in range(36):
                i = ch * 36 + j
                a(f"s_add_u32 m0, s17, {j*1024}")
                if w3 and i >= 40:
                    a(f"s_mov_b32 s19, {(i-40)*16384}")
                    a("buffer_load_dwordx4 v2, s[12:15], s19 offen lds")
                else:
                    a(f"s_add_u32 s19, s18, {i*16384}")
                    a("buffer_load_dwordx4 v2, s[8:11], s19 offen lds")
            a("s_waitcnt vmcnt(0)")
            for j in range(36):
                i = ch * 36 + j
                for hf in range(2):
                    if w3 and i >= 40: row0 = 16 * j + 8 * hf
                    else: row0 = 32 * (j // 2) + 8 * (j % 2) + 16 * hf
                    a(f"ds_read_b64_tr_b16 {t6_wreg2(i, hf)}, v4 offset:{row0*64}")
            a("s_waitcnt lgkmcnt(0)")
    a(f"s_cmp_eq_u32 {S(sW)}, 3")
    a(f"s_cbranch_scc1 {L}_w3")
    body(False)
    a(f"s_branch {L}_e")
    a(f"{L}_w3:")
    body(True)
    a(f"{L}_e:")
    a(f"s_load_dwordx2 s[12:13], {S(sArg,2)}, 88")
    a(f"s_mov_b32 s14, {2048*1024}")
    a("v_and_b32 v2, 31, v0\nv_lshlrev_b32 v2, 10, v2\nv_lshrrev_b32 v3, 5, v0\nv_lshl_add_u32 v2, v3, 3, v2")
    a(f"s_lshl_b32 s19, {S(sW)}, 4")
    a("s_add_u32 s19, s19, s16")
    a("v_add_u32 v2, s19, v2")
    a(f"s_lshl_b32 s19, {S(sW)}, 12\nv_add_u32 v3, s19, v1")
    a(f"s_lshl_b32 s19, {S(sW)}, 10\nv_add_u32 v4, s19, v1")
    a(f"s_mul_i32 s17, {S(sW)}, {72*1024}")
    a(f"s_add_u32 s17, s17, {OXB}")
    a("s_waitcnt lgkmcnt(0)")
    a("s_barrier")

def t6_unit(a, sS, ld=''):
    NB = 48
    FR, ACC = 32, 8
    a(f"s_mul_i32 s18, {S(sS)}, {288*1024}")
    a("s_add_u32 s18, s18, s17")
    def ldf(i):
        ops = []
        if i % 4 == 0 and i: ops.append("s_add_u32 s18, s18, 4096")
        ops.append(f"buffer_load_dwordx4 {V(FR + 4*(i % NB), 4)}, v1, {S(sWS,4)}, s18 offen offset:{(i%4)*1024} {ld}")
        return ops
    for i in range(NB):
        for x in ldf(i): a(x)
    for i in range(72):
        out = min(72, i + NB) - i - 1
        a(f"s_waitcnt vmcnt({out})")
        a(f"v_mfma_f32_32x32x16_bf16 {V(ACC,16)}, {t6_wreg(i)}, {V(FR + 4*(i % NB), 4)}, {'0' if i == 0 else V(ACC,16)}")
        if i + NB < 72:
            for x in ldf(i + NB): a(x)
    for q in range(4):
        a(f"ds_write_b128 v3, {V(ACC+4*q,4)} offset:{q*1024}")
    a("s_waitcnt lgkmcnt(0)")
    a("s_barrier")
    for q in range(4):
        a(f"ds_read_b128 {V(ACC+4*q,4)}, v4 offset:{q*4096}")
    a(f"s_lshl_b32 s18, {S(sS)}, 15")
    a("s_waitcnt lgkmcnt(0)")
    a("s_barrier")
    for i in range(4):
        a(f"v_add_f32 {V(ACC+i)}, {V(ACC+i)}, {V(ACC+4+i)}")
        a(f"v_add_f32 {V(ACC+8+i)}, {V(ACC+8+i)}, {V(ACC+12+i)}")
        a(f"v_add_f32 {V(ACC+i)}, {V(ACC+i)}, {V(ACC+8+i)}")
    a(f"v_cvt_pk_bf16_f32 v24, {V(ACC)}, {V(ACC+1)}")
    a(f"v_cvt_pk_bf16_f32 v25, {V(ACC+2)}, {V(ACC+3)}")
    a("buffer_store_dwordx2 v[24:25], v2, s[12:15], s18 offen")


sDBG = 64
VW = [254]
def wait_word(a, off, cond, sW, sSpin=70, sleep=8):
    L = a.newlabel("WW")
    a(f"s_cmp_eq_u32 {S(sW)}, 0")
    a(f"s_cbranch_scc0 {L}_ok")
    a(f"{L}:")
    a(f"v_mov_b32 {V(VW[0])}, {off}")
    a(f"global_load_dword {V(VW[0]+1)}, {V(VW[0])}, {S(sDBG,2)} sc1")
    a(f"s_sub_u32 {S(sSpin)}, {S(sSpin)}, 1")
    a(f"s_cbranch_scc1 {L}_to")
    a("s_waitcnt vmcnt(0)")
    a(f"v_readfirstlane_b32 s71, {V(VW[0]+1)}")
    cond(71)
    a(f"s_cbranch_scc1 {L}_ok")
    a(f"s_sleep {sleep}")
    a(f"s_branch {L}")
    a(f"{L}_to:")
    a(f"s_mov_b32 {S(sSpin)}, 0")
    a("s_waitcnt vmcnt(0)")
    a(f"{L}_ok:")
    a("s_barrier")

def wait_flags(a, soff, nlanes, width, sW, sleep=16, sSpin=70):
    L = a.newlabel("WF")
    t = VW[0] - 4
    a(f"s_cmp_eq_u32 {S(sW)}, 0")
    a(f"s_cbranch_scc0 {L}_ok")
    a(f"v_min_u32 {V(t+4)}, {nlanes-1}, v0")
    a(f"v_lshlrev_b32 {V(t+4)}, {2 if width == 1 else 4}, {V(t+4)}")
    a(f"{L}:")
    if width == 1: a(f"buffer_load_dword {V(t)}, {V(t+4)}, {S(sWS,4)}, {soff} offen sc1")
    else: a(f"buffer_load_dwordx4 {V(t,4)}, {V(t+4)}, {S(sWS,4)}, {soff} offen sc1")
    a(f"s_sub_u32 {S(sSpin)}, {S(sSpin)}, 1")
    a(f"s_cbranch_scc1 {L}_to")
    a("s_waitcnt vmcnt(0)")
    if width == 4:
        a(f"v_min3_u32 {V(t)}, {V(t)}, {V(t+1)}, {V(t+2)}")
        a(f"v_min_u32 {V(t)}, {V(t)}, {V(t+3)}")
    a(f"v_cmp_eq_u32 vcc, 0, {V(t)}")
    a(f"s_cbranch_vccz {L}_ok")
    a(f"s_sleep {sleep}")
    a(f"s_branch {L}")
    a(f"{L}_to:")
    a(f"s_mov_b32 {S(sSpin)}, 0")
    a("s_waitcnt vmcnt(0)")
    a(f"{L}_ok:")
    a("s_barrier")

def signal_set(a, soff, sW):
    L = a.newlabel("SG")
    a("s_waitcnt vmcnt(0) lgkmcnt(0)")
    a("s_barrier")
    a(f"s_cmp_eq_u32 {S(sW)}, 0")
    a(f"s_cbranch_scc0 {L}")
    a(f"v_mov_b32 {V(VW[0])}, 1")
    a("s_mov_b64 exec, 1")
    a(f"buffer_store_dword {V(VW[0])}, off, {S(sWS,4)}, {soff} sc1")
    a("s_mov_b64 exec, -1")
    a(f"{L}:")

def t5p_role(a, sH, sS, sW, sSpin=70):
    L = a.newlabel("T5")
    XROW = 1040
    L_KM, L_VM = 16384, 20480
    vL, vG, vO, vNeg, vMw, vMr, vEw, vL8 = 1, 3, 4, 5, 6, 7, 12, 2
    B0, B1 = 8, 10
    Q, K, VV_, KM, VM, G = 16, 32, 64, 80, 96, 100
    Sm, S0, S1, PF, T, O = 104, 108, 112, 116, 120, 124
    MB, MP, FR, ACC, PKD = 144, 152, 160, 192, 224
    t5_setup(a)
    a("v_and_b32 v13, 15, v0\nv_lshrrev_b32 v14, 4, v0")
    a("v_lshrrev_b32 v15, 2, v13\nv_lshlrev_b32 v15, 1, v15\nv_and_b32 v6, 1, v13\nv_add_u32 v15, v15, v6")
    a(f"v_mul_u32_u24 v15, {XROW}, v15")
    a(f"v_bfe_u32 {V(vMw)}, v13, 1, 1\nv_lshlrev_b32 {V(vMw)}, 6, {V(vMw)}\nv_lshl_add_u32 {V(vMw)}, v14, 3, {V(vMw)}\nv_add_u32 {V(vMw)}, {V(vMw)}, v15")
    a(f"s_lshl_b32 s16, {S(sW)}, 8\nv_add_u32 {V(vMw)}, s16, {V(vMw)}")
    a(f"v_lshrrev_b32 {V(vMr)}, 5, v0\nv_lshl_add_u32 {V(vMr)}, {V(vMr)}, 4, v15")
    a("s_mov_b32 s20, 0x05040100\ns_mov_b32 s21, 0x07060302")
    a(f"s_and_b32 s23, {S(sW)}, 1")
    a(f"s_cmp_ge_u32 {S(sW)}, 2")
    a(f"s_cbranch_scc1 {L}_v")
    for qt in range(2):
        if qt == 1: a(f"{L}_v:")
        P = f"{L}_{qt}"
        a("v_lshrrev_b32 v15, 5, v0")
        if qt == 0:
            a(f"v_lshlrev_b32 {V(vEw)}, 8, v15\nv_lshl_add_u32 {V(vEw)}, v13, 4, {V(vEw)}")
            a(f"s_lshl_b32 s16, s23, 11\ns_add_u32 s16, s16, {L_KM}")
        else:
            a(f"v_lshlrev_b32 {V(vEw)}, 7, v15\nv_lshl_add_u32 {V(vEw)}, v13, 3, {V(vEw)}")
            a(f"v_bfe_u32 v15, v0, 4, 1\nv_lshl_add_u32 {V(vEw)}, v15, 2, {V(vEw)}")
            a(f"s_lshl_b32 s16, s23, 10\ns_add_u32 s16, s16, {L_VM}")
        a(f"v_add_u32 {V(vEw)}, s16, {V(vEw)}")
        a(f"s_lshl_b32 s16, s23, 10\nv_add_u32 {V(vL8)}, s16, {V(vL8)}")
        a(f"{P}_loop:")
        a(f"s_lshl_b32 s16, {S(sS)}, 5\ns_add_u32 s16, s16, {S(sH)}\ns_lshl_b32 s17, s16, 13")
        a(f"s_add_u32 s18, s17, {QXB + qt*4096}")
        for i in range(4): a(f"buffer_load_dwordx4 {V(Q+4*i,4)}, {V(vL)}, {S(sWS,4)}, s18 offen offset:{i*1024} sc1")
        for tj in range(qt + 1):
            a(f"s_add_u32 s18, s17, {KXB + tj*4096}")
            for i in range(4): a(f"buffer_load_dwordx4 {V(K+16*tj+4*i,4)}, {V(vL)}, {S(sWS,4)}, s18 offen offset:{i*1024} sc1")
        a(f"s_lshl_b32 s18, s23, 12\ns_add_u32 s18, s18, s17\ns_add_u32 s18, s18, {VXB}")
        for i in range(4): a(f"buffer_load_dwordx4 {V(VV_+4*i,4)}, {V(vL)}, {S(sWS,4)}, s18 offen offset:{i*1024} sc1")
        a(f"s_lshl_b32 s18, {S(sS)}, 8\ns_add_u32 s18, s18, {GB}")
        a(f"buffer_load_dword {V(G)}, {V(vG)}, {S(sWS,4)}, s18 offen offset:{128*qt} sc1")
        a(f"s_lshl_b32 s18, {S(sS)}, 13\ns_lshl_b32 s19, {S(sW)}, 11\ns_add_u32 s18, s18, s19\ns_add_u32 s18, s18, {MGB}")
        a(f"{P}_poll:")
        for i in range(2): a(f"buffer_load_dwordx4 {V(MB+4*i,4)}, {V(vL)}, {S(sWS,4)}, s18 offen offset:{i*1024} sc1")
        a(f"s_sub_u32 {S(sSpin)}, {S(sSpin)}, 1\ns_cbranch_scc1 {P}_to\ns_waitcnt vmcnt(0)")
        a(f"v_max3_u32 {V(T)}, {V(MB)}, {V(MB+1)}, {V(MB+2)}\nv_max3_u32 {V(T+1)}, {V(MB+3)}, {V(MB+4)}, {V(MB+5)}")
        a(f"v_max3_u32 {V(T)}, {V(T)}, {V(MB+6)}, {V(MB+7)}\nv_max_u32 {V(T)}, {V(T)}, {V(T+1)}\nv_cmp_eq_u32 vcc, -1, {V(T)}")
        a(f"s_cbranch_vccz {P}_ok\ns_sleep 4\ns_branch {P}_poll")
        a(f"{P}_to:\ns_mov_b32 {S(sSpin)}, 0\ns_waitcnt vmcnt(0)")
        a(f"{P}_ok:")
        for b in range(2):
            r = MB + 4 * b; d = MP + 4 * b
            a(f"v_perm_b32 {V(d)}, {V(r+1)}, {V(r)}, s20\nv_perm_b32 {V(d+1)}, {V(r+3)}, {V(r+2)}, s20")
            a(f"v_perm_b32 {V(d+2)}, {V(r+1)}, {V(r)}, s21\nv_perm_b32 {V(d+3)}, {V(r+3)}, {V(r+2)}, s21")
        for b in range(2):
            a(f"ds_write2_b64 {V(vMw)}, {V(MP+4*b,2)}, {V(MP+4*b+2,2)} offset0:{16*b} offset1:{16*b+4}")
        a("s_waitcnt lgkmcnt(0)\ns_barrier")
        def rdf(kk): return f"ds_read_b128 {V(FR + 4*(kk % 8), 4)}, {V(vMr)} offset:{32*kk}"
        for kk in range(6): a(rdf(kk))
        for kk in range(32):
            a(f"s_waitcnt lgkmcnt({min(5, 31-kk)})")
            for Tt in range(2):
                wreg = A((Tt*32+kk)*4, 4); x = V(FR + 4*(kk % 8), 4); d = V(ACC + 16*Tt, 16)
                c = "0" if kk == 0 else d
                a(f"v_mfma_f32_32x32x16_bf16 {d}, {wreg}, {x}, {c}" if qt == 0 else f"v_mfma_f32_32x32x16_bf16 {d}, {x}, {wreg}, {c}")
            if kk + 6 < 32: a(rdf(kk + 6))
        for Tt in range(2):
            b = ACC + 16 * Tt
            for q in range(2):
                if qt == 0:
                    d = PKD + 8 * Tt + 4 * q
                    for x in range(4): a(f"v_cvt_pk_bf16_f32 {V(d+x)}, {V(b+4*q+x)}, {V(b+4*(q+2)+x)}")
                    a(f"ds_write_b128 {V(vEw)}, {V(d,4)} offset:{Tt*1024 + q*512}")
                else:
                    d = PKD + 2 * Tt + q
                    a(f"v_cvt_pk_bf16_f32 {V(d)}, {V(b+4*q)}, {V(b+4*q+1)}")
                    a(f"ds_write_b32 {V(vEw)}, {V(d)} offset:{Tt*512 + q*256}")
        a("s_waitcnt lgkmcnt(0)\ns_barrier")
        for i in range(4): a(f"ds_read_b128 {V(KM+4*i,4)}, {V(vL)} offset:{L_KM + i*1024}")
        for i in range(2): a(f"ds_read_b64 {V(VM+2*i,2)}, {V(vL8)} offset:{L_VM + i*512}")
        def mf(d, x, y, first): return f"v_mfma_f32_16x16x32_bf16 {V(d,4)}, {V(x,4)}, {V(y,4)}, {'0' if first else V(d,4)}"
        for kk in range(4):
            a(mf(S0, K + 4*kk, Q + 4*kk, kk == 0))
            if qt == 1: a(mf(S1, K + 16 + 4*kk, Q + 4*kk, kk == 0))
        a(f"s_mul_i32 s18, {S(sS)}, 288\ns_lshl_b32 s19, {S(sH)}, 3\ns_add_u32 s18, s18, s19\ns_lshl_b32 s18, s18, 10")
        a(f"s_lshl_b32 s19, s23, 12\ns_add_u32 s18, s18, s19\ns_add_u32 s18, s18, {OXB}")
        a("s_waitcnt lgkmcnt(0)")
        for kk in range(4): a(mf(Sm, KM + 4*kk, Q + 4*kk, kk == 0))
        dg = S0 if qt == 0 else S1
        for r in range(4): a(f"v_cndmask_b32 {V(dg+r)}, {V(vNeg)}, {V(dg+r)}, {S(T5_MASK+2*r,2)}")
        ev = [S0, S0+1, S0+2, S0+3] + ([S1, S1+1, S1+2, S1+3] if qt else []) + [Sm, Sm+1]
        a(f"v_max3_f32 {V(T)}, {V(S0)}, {V(S0+1)}, {V(S0+2)}")
        if qt:
            a(f"v_max3_f32 {V(T)}, {V(T)}, {V(S1)}, {V(S1+1)}\nv_max3_f32 {V(T)}, {V(T)}, {V(S1+2)}, {V(S1+3)}")
        a(f"v_max_f32 {V(T)}, {V(T)}, {V(S0+3)}")
        a(f"v_max3_f32 {V(T)}, {V(T)}, {V(Sm)}, {V(Sm+1)}")
        xlane_reduce16_32(a, "v_max_f32", T, T+1)
        a(f"v_mul_f32 {V(T)}, s22, {V(T)}")
        for r in ev: a(f"v_fma_f32 {V(r)}, {V(r)}, s22, -{V(T)}")
        for r in ev: a(f"v_exp_f32 {V(r)}, {V(r)}")
        a(f"v_cvt_pk_bf16_f32 {V(PF)}, {V(S0)}, {V(S0+1)}\nv_cvt_pk_bf16_f32 {V(PF+1)}, {V(S0+2)}, {V(S0+3)}")
        if qt: a(f"v_cvt_pk_bf16_f32 {V(PF+2)}, {V(S1)}, {V(S1+1)}\nv_cvt_pk_bf16_f32 {V(PF+3)}, {V(S1+2)}, {V(S1+3)}")
        else: a(f"v_mov_b64 {V(PF+2,2)}, 0")
        a(f"v_cvt_pk_bf16_f32 {V(B0)}, {V(Sm)}, {V(Sm+1)}\nv_cvt_pk_bf16_f32 {V(B1+1)}, {V(Sm)}, {V(Sm+1)}")
        for e in range(4): a(mf(O + 4*e, VV_ + 4*e, PF, True))
        for e in range(4):
            a(f"v_mfma_f32_16x16x16_bf16 {V(O+4*e,4)}, {V(VM+2*(e//2),2)}, {V(B0 if e%2==0 else B1,2)}, {V(O+4*e,4)}")
        a(f"v_add_f32 {V(T)}, {V(ev[0])}, {V(ev[1])}")
        for r in ev[2:]: a(f"v_add_f32 {V(T)}, {V(T)}, {V(r)}")
        xlane_reduce16_32(a, "v_add_f32", T, T+1)
        a(f"v_rcp_f32 {V(T)}, {V(T)}")
        a(f"v_mul_f32 {V(T)}, {V(T)}, {V(G)}")
        for u in range(2):
            o = O + 8 * u
            for i in range(8): a(f"v_mul_f32 {V(o+i)}, {V(o+i)}, {V(T)}")
            d = PKD + 16 + 4 * u
            for i in range(4): a(f"v_cvt_pk_bf16_f32 {V(d+i)}, {V(o+2*i)}, {V(o+2*i+1)}")
            a(f"buffer_store_dwordx4 {V(d,4)}, {V(vO)}, {S(sWS,4)}, s18 offen offset:{u*2048 + qt*256} sc1")
        a(f"s_lshl_b32 s18, s16, 2\ns_add_u32 s18, s18, {F_SEG}")
        signal_set(a, "s18", sW)
        a(f"s_add_u32 {S(sS)}, {S(sS)}, 4\ns_cmp_lt_u32 {S(sS)}, 64\ns_cbranch_scc1 {P}_loop")
        if qt == 0: a(f"s_branch {L}_end")
    a(f"{L}_end:")
```

```python
from asm import *
from layout import *
import proj, roles, rec
import sys, json
NAME = "gated_mix__memory_aug_recurrent_mem_tr__softmax_full_mha__prompt"
PROF = int(sys.argv[2]) if len(sys.argv) > 2 else 0
CFG = json.loads(sys.argv[3]) if len(sys.argv) > 3 else {}
hdr = open(f"cdna_kernels/{NAME}.s.ref").read().split("; Override launch")[0]
KN = NAME + "_kernel"
a = Asm()
a.raw(hdr.rstrip())
if CFG.get('list'): a.raw(f"; @launch kernel={KN} grid=(256,1,1) block=(256,1,1) lds=163840")
else: a.raw("; @launch grid=(256,1,1) block=(256,1,1) lds=163840")
a.raw('.amdgcn_target "amdgcn-amd-amdhsa--gfx950"\n.text')
a.raw(f".globl {KN}\n.p2align 8\n.type {KN},@function")
a(f"{KN}:")
a("s_cmp_ge_u32 s2, 256")
a("s_cbranch_scc1 L_end")
a("s_load_dwordx4 s[64:67], s[0:1], 96")
a("s_load_dwordx8 s[16:23], s[0:1], 16")
a("s_load_dwordx2 s[24:25], s[0:1], 0")
a("s_load_dwordx2 s[26:27], s[0:1], 64")
if PROF: a("s_memrealtime s[80:81]")
a("v_lshrrev_b32 v1, 6, v0")
a("v_readfirstlane_b32 s62, v1")
a("v_and_b32 v0, 63, v0")
a("s_getreg_b32 s63, hwreg(HW_REG_XCC_ID)")
a("s_and_b32 s63, s63, 7")
a("s_waitcnt lgkmcnt(0)")
a(f"s_mov_b32 s4, s66\ns_mov_b32 s5, s67\ns_mov_b32 s6, {WS_BYTES}\ns_mov_b32 s7, 0x20000")
def claim():
    a("s_lshl_b32 s61, s60, 2")
    a("s_cmp_eq_u32 s60, 0")
    a("s_cselect_b32 s61, 128, s61")
    a("v_mov_b32 v1, s61")
    a("global_atomic_add v3, v1, v2, s[64:65] sc0")
a("s_cmp_eq_u32 s62, 0")
a("s_cbranch_scc1 L_w0")
a("s_barrier")
if CFG.get('gpf', 1):
    a("s_cmp_eq_u32 s63, 0")
    a("s_cbranch_scc1 L_tk")
    a("s_lshr_b32 s56, s2, 3\ns_mul_i32 s56, s56, 7\ns_add_u32 s56, s56, s63\ns_mul_i32 s56, s56, 3\ns_add_u32 s56, s56, s62\ns_sub_u32 s56, s56, 4")
    a("s_mul_i32 s57, s56, 49\nv_min_u32 v1, 48, v0\nv_add_u32 v1, s57, v1\nv_lshlrev_b32 v1, 7, v1")
    a("s_mul_i32 s57, s56, 25\nv_min_u32 v2, 24, v0\nv_add_u32 v2, s57, v2\nv_lshlrev_b32 v2, 7, v2")
    for n, (r, sz, v) in enumerate([(18, 4 << 20, 1), (20, 4 << 20, 1), (16, 4 << 20, 1), (24, 2 << 20, 2), (22, 4 << 20, 1), (26, 512 * 3072, 2)]):
        b = 32 + 4 * n
        a(f"s_mov_b32 s{b}, s{r}\ns_mov_b32 s{b+1}, s{r+1}\ns_mov_b32 s{b+2}, {sz}\ns_mov_b32 s{b+3}, 0x20000")
        a(f"buffer_load_dword v{240+n}, v{v}, s[{b}:{b+3}], 0 offen")
a("s_branch L_tk")
a("L_w0:")
a("s_mov_b32 s60, s63")
a("s_mov_b64 exec, 1")
a("v_mov_b32 v2, 1")
claim()
a("s_barrier")
a("s_branch L_try1")
a("L_try:")
claim()
a("L_try1:")
a("s_waitcnt vmcnt(0)")
a("v_readfirstlane_b32 s61, v3")
a("s_cmp_lt_u32 s61, 32")
a("s_cbranch_scc1 L_got")
a("s_add_u32 s60, s60, 1")
a("s_and_b32 s60, s60, 7")
a("s_cmp_lg_u32 s60, s63")
a("s_cbranch_scc1 L_try")
a("s_mov_b32 s60, 8")
a("L_got:")
a("s_lshl_b32 s60, s60, 5")
a("s_add_u32 s60, s60, s61")
a("v_mov_b32 v3, s60")
a("v_mov_b32 v1, 0")
a("ds_write_b32 v1, v3")
a("s_mov_b64 exec, -1")
a("s_waitcnt lgkmcnt(0)")
a("L_tk:")
a("s_barrier")
a("v_mov_b32 v1, 0")
a("ds_read_b32 v3, v1")
a("s_waitcnt lgkmcnt(0)")
a("v_readfirstlane_b32 s60, v3")
a("s_barrier")
a("s_cmp_lt_u32 s60, 32")
a("s_cbranch_scc1 L_rec")
a("s_cmp_ge_u32 s60, 256")
a("s_cbranch_scc1 L_end")
a("s_sub_u32 s60, s60, 32")
a(f"s_mov_b32 s70, {1 << 20}")
def wstamp(i):
    if PROF: a(f"s_memrealtime s[{82+2*i}:{83+2*i}]")
if CFG.get('hold') is not None:
    a(f"s_cmp_lt_u32 s60, {CFG['hold']}")
    a("s_cbranch_scc1 L_nohold")
    roles.wait_word(a, 4*D_GO, lambda r: a(f"s_cmp_ge_u32 s{r}, 32"), 62, sleep=64)
    a("L_nohold:")
def rec_seen(): roles.wait_word(a, 4*D_REC, lambda r: a(f"s_and_b32 s{r}, s{r}, 0xffff\ns_cmp_ge_u32 s{r}, 32"), 62)
a("s_cmp_ge_u32 s60, 216")
a("s_cbranch_scc0 L_proj")
a("s_sub_u32 s59, s60, 216")
roles.gate_role(a, 0, 59, 62, 'sc1')
rec_seen()
a("s_branch L_p1done")
a("L_proj:")
a(f"s_lshr_b32 {S(proj.sCB)}, s60, 2\ns_and_b32 {S(proj.sR)}, s60, 3\ns_mov_b32 {S(proj.sW)}, s62")
a("s_cmp_lt_u32 s60, 128\ns_cselect_b32 s58, 1, 0\ns_cmp_eq_u32 s62, 0\ns_cselect_b32 s58, s58, 0")
a(f"s_lshl_b32 s57, {S(proj.sCB)}, 7\ns_lshl_b32 s56, {S(proj.sR)}, 2\ns_add_u32 s57, s57, s56\ns_add_u32 s57, s57, {F_KV}")
def publish(a, cnt_ops):
    L = a.newlabel("PB")
    a("s_cmp_eq_u32 s58, 0")
    a(f"s_cbranch_scc1 {L}")
    for x in cnt_ops: a(x)
    a("v_mov_b32 v123, s56\ns_mov_b64 exec, 1")
    a("buffer_store_dword v123, off, s[4:7], s57 sc1")
    a("s_mov_b64 exec, -1")
    a(f"{L}:")
def hook(a, par, typ):
    if typ == 0:
        publish(a, [f"s_add_u32 s56, {S(proj.sI)}, {par}", "s_max_u32 s56, s56, 1", "s_sub_u32 s56, s56, 1"])
def pre():
    if PROF: a("s_memrealtime s[92:93]")
    rec_seen()
    if PROF: a("s_memrealtime s[90:91]\ns_memtime s[94:95]")
proj.proj_role(a, 0, CFG.get('pst', 'sc1'), hook, pre)
if PROF: a("s_memtime s[96:97]\ns_waitcnt lgkmcnt(0)\ns_sub_u32 s94, s96, s94")
a("s_barrier")
publish(a, ["s_mov_b32 s56, 16"])
a("L_p1done:")
wstamp(0)
a(f"s_lshl_b32 s56, s60, 2\ns_add_u32 s56, s56, {F_DONE}")
roles.signal_set(a, "s56", 62)
a("s_cmp_ge_u32 s60, 192")
a("s_cbranch_scc1 L_p2done")
a(f"s_mov_b32 s56, {F_DONE + 192*4}")
roles.wait_flags(a, "s56", 32, 1, 62)
wstamp(1)
a("s_mul_i32 s61, s60, 43691\ns_lshr_b32 s61, s61, 18")
a("s_mul_i32 s59, s61, 6\ns_sub_u32 s59, s60, s59")
roles.battn_role(a, 61, 59, 62, 'sc1', 'sc1')
a(f"s_lshl_b32 s56, s60, 2\ns_add_u32 s56, s56, {F_OB}")
roles.signal_set(a, "s56", 62)
a("L_p2done:")
wstamp(2)
a("s_cmp_ge_u32 s60, 128")
a("s_cbranch_scc1 L_t6")
a("s_lshr_b32 s61, s60, 2\ns_and_b32 s59, s60, 3")
a(f"s_lshr_b32 s56, s61, 1\ns_lshl_b32 s56, s56, 2\ns_add_u32 s56, s56, s59\ns_lshl_b32 s56, s56, 2\ns_add_u32 s56, s56, {F_DONE + 128*4}")
roles.wait_flags(a, "s56", 1, 1, 62)
roles.t5p_role(a, 61, 59, 62)
a("s_branch L_wend")
a("L_t6:")
a("s_sub_u32 s59, s60, 128\ns_and_b32 s61, s59, 15\ns_lshr_b32 s59, s59, 4")
roles.t6_setup(a, 0, 61, 62)
roles.VW[0] = 30
a(f"s_mov_b32 s56, {F_OB}")
roles.wait_flags(a, "s56", 48, 4, 62, 32)
a("L_t6loop:")
a(f"s_lshl_b32 s56, s59, 7\ns_add_u32 s56, s56, {F_SEG}")
roles.wait_flags(a, "s56", 32, 1, 62, 4)
roles.t6_unit(a, 59, 'sc1')
a("s_add_u32 s59, s59, 6\ns_cmp_lt_u32 s59, 64\ns_cbranch_scc1 L_t6loop")
a("L_wend:")
if PROF:
    wstamp(3)
    a("s_waitcnt lgkmcnt(0)")
    a(f"s_lshl_b32 s20, s60, 5\ns_add_u32 s20, s20, {PROFB + 65536}")
    a("v_mov_b32 v1, 0")
    for i in range(8):
        a(f"v_mov_b32 v2, s{80+2*i}")
        a(f"buffer_store_dword v2, v1, s[4:7], s20 offen offset:{4*i}")
a("s_branch L_end")
a("L_rec:")
a(f"s_mov_b32 {S(rec.sH)}, s60")
rec.rec_role(a, 0, 64, 62, 63, "L_end", PROF, CFG)
a("L_end:")
a("s_endpgm")
a.raw('.section .rodata,"a"')
a.raw(kernel_desc(KN))
out = sys.argv[1] if len(sys.argv) > 1 else f"cdna_kernels/{NAME}.s"
open(out, "w").write(a.finalize(True))
if PROF > 1: json.dump(rec.STNAMES, open("stnames.json", "w"))
```

```python
MB = 1 << 20
QXB  = 0
KXB  = 16 * MB
VXB  = 32 * MB
KVMB = 96 * MB
QBB  = 62 * MB
KBB  = 64 * MB
VBB  = 66 * MB
GB   = 68 * MB
OXB  = 70 * MB
CLRB = 48 * MB
P1B  = CLRB
MGB  = CLRB + 512 * 1024
M2B  = CLRB + 1024 * 1024
PROFB = 92 * MB
MDBG = 93 * MB
WIMG = 112 * MB
WS_BYTES = 268435456
D_REC = 32
D_CLR = 33
FLB = 91 * MB
F_KV = FLB
F_DONE = FLB + 4096
F_OB = FLB + 5120
F_SEG = FLB + 8192
```

```python
from asm import *
import math

from layout import *

L_M, L_KX, L_Q, L_O, L_W = 0, 8192, 16384, 22016, 24576
QA, QB, QC = 336, 72, 160
WREG = 17 * 2048

vL16, vIdx, vWl, vQKw, vQKr, vP1st, vM2st, vWarm = range(8)
vSel = 8
vB0, vBias = 12, 14
accQ, accK, accV = 16, 24, 32
vVx = 40
RING = [56, 60, 48, 52]
X = 64
RES = 136
sSRD = 4
sH, sS, sM2r, sKX, sVX, sWarm, sP1st, sP1st2, sP1ld, sM2w, sMG, sSpin, sTmp = range(8, 21)
sReady, sFlag = 96, 98
vPub = 15
sC = 56
sOne = 58
sTag, sTag2, sClr = 21, 60, 61
sPm = 22
DBG_M = False
sT = 24
SPIN_MAX = 1 << 20
NST = 16

NQL = 9
def korder(w):
    ev = [(2 * w + 2 * i) % 8 for i in range(4)]
    return ev + [k + 1 for k in ev]
def qidx(w, ks, t): return korder(w).index(ks) * 2 + t
def qblk(w, ks, t):
    i = qidx(w, ks, t)
    return V(X + 8 * i, 8) if i < NQL else V(RES + 8 * (i - NQL), 8)
def kblk(ks, t): return A(8 * (ks * 2 + t), 8)
def vblk(ks, t): return A(128 + 8 * (ks * 2 + t), 8)
def oblk(T, ko):
    i = T * 2 + ko
    return V(RES + 56 + 8 * i, 8) if i < 8 else V(X + 8 * (i - 8), 8)

def smf_s(acc, areg, b):
    return f"v_smfmac_f32_16x16x64_bf16 {V(acc,4)}, {V(areg,4)}, {b}, {V(vIdx)}"

STN = [0]
STNAMES = []
STSEL = [None]
MC = [None]
PSTART = [0]
def stamp(a, n, prof):
    if prof and (STSEL[0] is None or n in STSEL[0]):
        k = STN[0]; STN[0] += 1
        if len(STNAMES) <= k: STNAMES.append(str(n))
        assert k < NST
        a(f"s_memtime {S(sT + 2*k, 2)}")

def chk_ops(r, n, tmp):
    if n == 8:
        o = [f"v_max3_u32 {V(tmp)}, {V(r)}, {V(r+1)}, {V(r+2)}",
             f"v_max3_u32 {V(tmp+1)}, {V(r+3)}, {V(r+4)}, {V(r+5)}",
             f"v_max3_u32 {V(tmp)}, {V(tmp)}, {V(r+6)}, {V(r+7)}",
             f"v_max_u32 {V(tmp)}, {V(tmp)}, {V(tmp+1)}"]
    else:
        o = [f"v_max3_u32 {V(tmp)}, {V(r)}, {V(r+1)}, {V(r+2)}",
             f"v_max_u32 {V(tmp)}, {V(tmp)}, {V(r+3)}"]
    return o + [f"v_cmp_eq_u32 vcc, -1, {V(tmp)}"]

def poll_ops(r, n, soff, off=0):
    return [f"buffer_load_dwordx4 {V(r+4*i,4)}, {V(vL16)}, {S(sSRD,4)}, {S(soff)} offen offset:{off + 1024*i} sc1" for i in range(n // 4)]

def poll_retry(tail, name, r, n, soff, off, tmp, redo=()):
    tail.append(f"{name}:")
    tail += poll_ops(r, n, soff, off)
    tail.append(f"s_sub_u32 {S(sSpin)}, {S(sSpin)}, 1")
    tail.append(f"s_cbranch_scc1 {name}_to")
    tail.append("s_waitcnt vmcnt(0)")
    tail += list(redo)
    tail += chk_ops(r, n, tmp)
    tail.append(f"s_cbranch_vccnz {name}")
    tail.append(f"s_branch {name}_ok")
    tail.append(f"{name}_to:")
    tail.append(f"s_mov_b32 {S(sSpin)}, 0")
    tail.append("s_waitcnt vmcnt(0)")
    tail += list(redo)
    tail.append(f"s_branch {name}_ok")

def ready_calc(r):
    u = 100
    o = []
    for i in range(4):
        o += [f"v_readfirstlane_b32 {S(u)}, {V(r+i)}", f"s_lshl_b32 {S(u)}, {S(u)}, 2", f"s_add_u32 {S(u)}, {S(u)}, {i}"]
        o += [f"s_mov_b32 {S(sReady)}, {S(u)}"] if i == 0 else [f"s_min_u32 {S(sReady)}, {S(sReady)}, {S(u)}"]
    return o + [f"s_cmp_ge_u32 {S(sReady)}, 64", f"s_cselect_b32 {S(sReady)}, 128, {S(sReady)}"]

def ready_wait(name, ok, r):
    o = [f"buffer_load_dwordx4 {V(r,4)}, off, {S(sSRD,4)}, {S(sFlag)} sc1",
         f"s_sub_u32 {S(sSpin)}, {S(sSpin)}, 1", f"s_cbranch_scc1 {name}_to",
         "s_waitcnt vmcnt(0)"] + ready_calc(r)
    o += [f"s_cmp_lt_u32 {S(sTmp)}, {S(sReady)}", f"s_cbranch_scc1 {ok}", "s_sleep 8", f"s_branch {name}",
          f"{name}_to:", f"s_mov_b32 {S(sSpin)}, 0", f"s_mov_b32 {S(sReady)}, 128", "s_waitcnt vmcnt(0)", f"s_branch {ok}"]
    return o

def weave(a, main, fill, per=1, start=0):
    fill = list(fill)
    for i, m in enumerate(main):
        a(m)
        if i >= start:
            for _ in range(per):
                if fill: a(fill.pop(0))
    for f in fill: a(f)

def rec_loop(a, w, st, prof=False, sto='', cfg={}):
    P = f"R{w}{'s' if st else 'f'}"
    STN[0] = 0
    STSEL[0] = cfg.get('stamps')
    if cfg.get('free'):
        a0 = a
        def a(t):
            if t.startswith('s_cbranch_vcc'): return
            import re
            if any(re.search(p, t) for p in cfg.get('drop', [])): return
            if t.startswith('s_waitcnt vmcnt'):
                t = 's_waitcnt lgkmcnt(0)' if 'lgkm' in t else 's_waitcnt vmcnt(40)'
            a0(t)
            if t.endswith('_top:'): MC[0] = 0
            if (t.startswith('v_smf') or t.startswith('v_mfma')) and MC[0] is not None:
                MC[0] += 1
                if MC[0] in cfg.get('mst', []):
                    STSEL[0] = None; stamp(a0, f"m{MC[0]}", prof); STSEL[0] = cfg.get('stamps')
            if t.startswith('s_branch') and t.endswith('_top'): MC[0] = None
    tail = []
    sto = cfg.get('sto', sto); ldk = cfg.get('ldk', 'nt'); ldw = cfg.get('ldw', '')
    Ee, e1, e2, e3, Oo, o1, o2, o3 = korder(w)
    s0, s1, s2, s3 = RING
    def rdm(slot, ks): return f"ds_read_b128 {V(slot,4)}, {V(vL16)} offset:{L_M + ks*1024}"
    def wrm(slot, ks): return f"ds_write_b128 {V(vL16)}, {V(slot,4)} offset:{L_M + ks*1024}"
    def QQ(ks, slot): return [smf_s(accQ, slot, qblk(w, ks, 0)), smf_s(accQ + 4, slot, qblk(w, ks, 1))]
    def KK(ks, slot): return [smf_s(accK, slot, kblk(ks, 0)), smf_s(accK + 4, slot, kblk(ks, 1))]
    def VV(ks, slot): return [smf_s(accV, slot, vblk(ks, 0)), smf_s(accV + 4, slot, vblk(ks, 1))]
    stQ = [f"ds_read_b128 {V(X + 8*i + 4*hf, 4)}, {V(vWl)} offset:{i*2048 + hf*1024}" for i in range(NQL) for hf in range(2)]
    stO = [f"ds_read_b128 {V(X + 8*i + 4*hf, 4)}, {V(vWl)} offset:{(NQL + i)*2048 + hf*1024}" for i in range(8) for hf in range(2)]
    def zero(r, n): return [f"v_mov_b64 {V(r+i,2)}, 0" for i in range(0, n, 2)]
    kxl = [f"buffer_load_dwordx4 {V(vL16)}, {S(sSRD,4)}, {S(sKX)} offen offset:{1024*i} {ldk} lds" for i in range(2)]
    vxl = [f"buffer_load_dwordx4 {V(vVx+4*i,4)}, {V(vL16)}, {S(sSRD,4)}, {S(sVX)} offen offset:{1024*i} {ldk}" for i in range(2)]
    qf, kxf, kmf = X, X + 16, X + 48
    kvm = X + 64
    tmp = X + 68
    sx1, sx2, sm, pf = accQ, accQ + 4, accK, accK + 4
    oacc, of = 48, 56
    ones, lacc = 56, 60
    def padd(r): return [f"v_add_f32 {V(r)}, {V(r)}, {V(r+2)}", f"v_add_f32 {V(r+1)}, {V(r+1)}, {V(r+3)}"]
    def cvt(d, x, y): return f"v_cvt_pk_bf16_f32 {V(d)}, {V(x)}, {V(y)}"
    def lg(n): return f"s_waitcnt lgkmcnt({n})"
    def vm(n): return f"s_waitcnt vmcnt({n})"
    def seq(*xs):
        for x in xs:
            if isinstance(x, (list, tuple)):
                for y in x: a(y)
            else: a(x)
    spin = lambda to: [f"s_sub_u32 {S(sSpin)}, {S(sSpin)}, 1", f"s_cbranch_scc1 {to}"]
    peA, peB, po = poll_ops(s0, 4, sM2r), poll_ops(s3, 4, sM2r), poll_ops(s1, 4, sM2r, 1024)

    a(f"s_mov_b32 {S(sTmp)}, 1")
    a(f"s_cmp_lt_u32 {S(sTmp)}, {S(sReady)}")
    a(f"s_cbranch_scc1 {P}_r0_ok")
    a(f"{P}_r0:")
    seq(ready_wait(f"{P}_r0", f"{P}_r0_ok", X))
    a(f"{P}_r0_ok:")
    a(f"s_mov_b32 m0, {L_KX + w*2048}")
    seq(kxl, stQ, zero(accQ, 24))
    a(f"s_add_u32 {S(sKX)}, {S(sKX)}, {32*8192}")
    peC = poll_ops(s1, 4, sM2r)
    seq(peA, peB, peC, vm(2))
    a(f"{P}_top:")
    a(f"s_waitcnt vmcnt({2 if w < 2 else 3}) lgkmcnt(0)")
    stamp(a, 'peA', prof)
    ck = chk_ops(s0, 4, vWarm)
    seq(wrm(s0, Ee), ck)
    a(f"s_cbranch_vccnz {P}_pe")
    a(f"{P}_pe_go:")
    stamp(a, 'peok', prof)
    x = QQ(Ee, s0) + KK(Ee, s0)
    seq(x[0], po, x[1], x[2], x[3])
    cb, cc = chk_ops(s3, 4, vWarm), chk_ops(s1, 4, vWarm)
    def mv(r): return [f"v_mov_b64 {V(s0,2)}, {V(r,2)}", f"v_mov_b64 {V(s0+2,2)}, {V(r+2,2)}"]
    slp = ["s_nop 7"] * cfg.get('slp', 1)
    tail += [f"{P}_pe:"] + peA + [vm(2), wrm(s3, Ee)] + cb + [f"s_cbranch_vccz {P}_peb"]
    tail += slp + peB + [vm(2), wrm(s1, Ee)] + cc + [f"s_cbranch_vccz {P}_pec"]
    tail += spin(f"{P}_pe_to") + slp + peC + [vm(2), wrm(s0, Ee)] + ck + [f"s_cbranch_vccz {P}_pe_go"] + slp + [f"s_branch {P}_pe"]
    tail += [f"{P}_peb:"] + mv(s3) + [f"s_branch {P}_pe_go"]
    tail += [f"{P}_pec:"] + mv(s1) + [f"s_branch {P}_pe_go"]
    tail += [f"{P}_pe_to:", f"s_mov_b32 {S(sSpin)}, 0", f"s_branch {P}_pe_go"]
    seq(lg(0), "s_barrier")
    stamp(a, 'B1a', prof)
    kxr = [f"ds_read_b128 {V(kxf+16*tj+4*kk,4)}, {V(vL16)} offset:{L_KX + (tj*4+kk)*1024}" for tj in range(2) for kk in range(4)]
    x = VV(Ee, s0)
    seq(rdm(s2, e1), x[0], x[1], vm(1), rdm(s0, e2), rdm(s3, e3), lg(2))
    x = QQ(e1, s2) + KK(e1, s2)
    seq(x[0], x[1], kxr[0], x[2], kxr[1], x[3], lg(3), f"v_mov_b32 {V(vB0)}, -1")
    x = QQ(e2, s0) + KK(e2, s0)
    seq(x[0], kxr[2], x[1], x[2], x[3], vm(0))
    stamp(a, 'pook', prof)
    ck = chk_ops(s1, 4, vWarm)
    x = QQ(e3, s3) + KK(e3, s3) + VV(e3, s3)
    nv3 = cfg.get('nv3', 2)
    seq(wrm(s1, Oo), lg(4), x[0], vxl[0], ck[0], x[1], vxl[1], ck[1], x[2],
        f"buffer_store_dword {V(vB0)}, {V(vM2st)}, {S(sSRD,4)}, {S(sClr)} offen {st}", ck[2], x[3])
    a(f"s_cbranch_vccnz {P}_po")
    a(f"{P}_po_ok:")
    poll_retry(tail, f"{P}_po", s1, 4, sM2r, 1024, vWarm, redo=[wrm(s1, Oo)])
    seq(x[4], lg(0), "s_barrier")
    stamp(a, 'B1b', prof)
    seq(rdm(s2, o1), x[5], rdm(s0, o2))
    x = QQ(Oo, s1) + KK(Oo, s1)
    seq(x[0], rdm(s3, o3), x[1], f"s_add_u32 {S(sTmp)}, {S(sS)}, 2", f"s_cmp_lt_u32 {S(sTmp)}, {S(sReady)}",
        x[2], f"s_cbranch_scc0 {P}_rd")
    a(f"{P}_rd_ok:")
    tail += [f"{P}_rd:"] + ready_wait(f"{P}_rd", f"{P}_rd_ok", X)
    seq(f"buffer_store_dword {V(vPub)}, {V(vM2st)}, {S(sSRD,4)}, {S(sClr if cfg.get('nomg') else sMG)} offen {'' if cfg.get('nomg') else 'sc1'}".replace(V(vPub), V(vB0) if cfg.get('nomg') else V(vPub)), f"v_lshlrev_b32 {V(vWarm)}, 2, {V(vL16)}", x[3], lg(2), kxr[3])
    x = QQ(o1, s2) + QQ(o2, s0) + QQ(o3, s3)
    seq(x[0], f"buffer_load_dword {V(vWarm)}, {V(vWarm)}, {S(sSRD,4)}, {S(sWarm)} offen {ldw}", kxr[4], x[1], lg(3), kxr[5],
        x[2], kxr[6], x[3], lg(4), kxr[7], x[4], stO[12], x[5], stO[13])
    qe = padd(accQ) + padd(accQ + 4) + [cvt(accQ+2, accQ, accQ+4), cvt(accQ+3, accQ+1, accQ+5),
          f"ds_write2_b32 {V(vQKw)}, {V(accQ+2)}, {V(accQ+3)} offset0:0 offset1:{QB}"]
    ke = padd(accK) + padd(accK + 4) + [cvt(kvm, accK, accK+4), cvt(kvm+1, accK+1, accK+5),
          f"ds_write2_b32 {V(vQKw)}, {V(kvm)}, {V(kvm+1)} offset0:{QC} offset1:{QC+QB}"]
    k6 = KK(o1, s2) + KK(o2, s0) + KK(o3, s3)
    vq = VV(o1, s2) + VV(o3, s3) + VV(Oo, s1) + VV(o2, s0) + VV(e1, s2) + VV(e2, s3)
    seq(k6[0], stO[14], k6[1], stO[15], qe[0], k6[2], qe[1], k6[3], qe[2], k6[4], qe[3], k6[5], qe[4])
    seq(vq[0], qe[5], vq[1], qe[6], rdm(s2, e1), ke[0:6], vq[2], ke[6])
    seq(vq[3], rdm(s3, e2), vq[4], vq[5], vq[6], lg(1), "s_barrier")
    stamp(a, 'B2', prof)
    rq = [f"ds_read_b128 {V(qf+4*kk,4)}, {V(vQKr)} offset:{64*kk}" for kk in range(4)]
    seq(rq[0], vq[7], rq[1], rq[2], vq[8], rq[3], vq[9], lg(4), vq[10], lg(3))
    def SX(kk, tj):
        d = sx1 if tj == 0 else sx2
        c = "0" if kk == 0 else V(d, 4)
        return f"v_mfma_f32_16x16x32_bf16 {V(d,4)}, {V(kxf+16*tj+4*kk,4)}, {V(qf+4*kk,4)}, {c}"
    def SM(kk):
        c = "0" if kk == 0 else V(sm, 4)
        return f"v_mfma_f32_16x16x32_bf16 {V(sm,4)}, {V(qf+4*kk,4)}, {V(qf+4*kk,4)}, {c}"
    ve = padd(accV) + padd(accV + 4) + [cvt(kvm+2, accV, accV+1), cvt(kvm+3, accV+4, accV+5)]
    m0_, m1_ = sm + 2, sm + 3
    seq(SM(0), kxl[0], SX(0, 0), kxl[1], SX(0, 1), lg(2), vq[11], stO[4])
    seq(SM(1), stO[8], f"v_mov_b64 {V(ones,2)}, {S(sOne,2)}", f"v_mov_b64 {V(ones+2,2)}, {S(sOne,2)}", SX(1, 0), stO[0], SX(1, 1), lg(4), ve[0], ve[1])
    seq(SM(2), stO[5], ve[2], ve[3], SX(2, 0), stO[9], ve[4], ve[5], SX(2, 1), lg(5))
    seq(SM(3), stO[1], SX(3, 0), stO[6], SX(3, 1), stO[10], stO[2])
    a(f"v_max_f32 {V(tmp)}, {V(m0_)}, {V(m1_)}")
    seq(stO[7], stO[11])
    a(f"v_max3_f32 {V(tmp)}, {V(tmp)}, {V(sx1)}, {V(sx1+1)}")
    a(f"v_max3_f32 {V(tmp)}, {V(tmp)}, {V(sx1+2)}, {V(sx1+3)}")
    stamp(a, 'Sdone', prof)
    a(f"v_max3_f32 {V(tmp+2)}, {V(tmp)}, {V(sx2)}, {V(sx2+1)}")
    a(f"v_max3_f32 {V(tmp)}, {V(tmp+2)}, {V(sx2+2)}, {V(sx2+3)}")
    a(f"v_max3_f32 {V(tmp+1)}, {V(tmp+2)}, {V(sx2+2)}, {V(sx2+3)}")
    z = zero(accV, 8) + zero(oacc + 4, 4) + zero(sm, 4) + zero(sx2, 4) + zero(sx1, 4) + zero(pf, 4) + zero(oacc, 4)
    seq(z[0], z[1])
    a(f"v_permlane16_swap_b32 {V(tmp)}, {V(tmp+1)}")
    a(f"v_max_f32 {V(tmp+2)}, {V(tmp)}, {V(tmp+1)}")
    a(f"v_max_f32 {V(tmp+3)}, {V(tmp)}, {V(tmp+1)}")
    seq(z[2], z[3])
    a(f"v_permlane32_swap_b32 {V(tmp+2)}, {V(tmp+3)}")
    a(f"v_max_f32 {V(tmp)}, {V(tmp+2)}, {V(tmp+3)}")
    a(f"v_fma_f32 {V(tmp)}, {V(tmp)}, {S(sC)}, {V(vBias)}")
    for r in (m0_, sx1, sx1+2, sx2, sx2+2):
        a(f"v_pk_fma_f32 {V(r,2)}, {V(r,2)}, {S(sC,2)}, {V(tmp,2)} op_sel_hi:[1,1,0] neg_lo:[0,0,1] neg_hi:[0,0,1]")
    def ex(r): return f"v_exp_f32 {V(r)}, {V(r)}"
    def swp(d, r): return f"v_mov_b32_dpp {V(d)}, {V(r)} quad_perm:[2,3,0,1] row_mask:0xf bank_mask:0xf"
    p1f = sx1
    seq(ex(m0_), ex(m1_), ex(sx1), cvt(vB0, m0_, m1_), ex(sx1+1), ex(sx1+2), swp(vB0+1, vB0), ex(sx1+3), cvt(pf, sx1, sx1+1))
    seq(f"v_mfma_f32_16x16x16_bf16 {V(lacc,4)}, {V(ones,2)}, {V(vB0,2)}, 0", stO[3], ex(sx2), cvt(pf+1, sx1+2, sx1+3))
    seq(f"v_mfma_f32_16x16x16_bf16 {V(oacc,4)}, {V(kvm+2,2)}, {V(vB0,2)}, 0", vm(5), ex(sx2+1), ex(sx2+2), ex(sx2+3), cvt(pf+2, sx2, sx2+1), cvt(pf+3, sx2+2, sx2+3))
    stamp(a, 'smx', prof)
    seq(swp(p1f, pf), swp(p1f+1, pf+1))
    seq(f"v_mfma_f32_16x16x32_bf16 {V(lacc,4)}, {V(ones,4)}, {V(pf,4)}, {V(lacc,4)}", swp(p1f+2, pf+2), swp(p1f+3, pf+3))
    seq(f"v_mfma_f32_16x16x32_bf16 {V(oacc,4)}, {V(vVx,4)}, {V(pf,4)}, {V(oacc,4)}", z[4], z[5])
    seq(f"v_mfma_f32_16x16x32_bf16 {V(oacc,4)}, {V(vVx+4,4)}, {V(p1f,4)}, {V(oacc,4)}")
    seq(f"v_rcp_f32_dpp {V(tmp)}, {V(lacc)} quad_perm:[0,1,0,1] row_mask:0xf bank_mask:0xf", z[6:12])
    a(f"v_pk_mul_f32 {V(oacc,2)}, {V(oacc,2)}, {V(tmp,2)} op_sel_hi:[1,0]")
    a(f"v_pk_mul_f32 {V(oacc+2,2)}, {V(oacc+2,2)}, {V(tmp,2)} op_sel_hi:[1,0]")
    seq(cvt(tmp+2, oacc, oacc+1), cvt(tmp+3, oacc+2, oacc+3))
    a(f"ds_write_b64 {V(vL16)}, {V(tmp+2,2)} offset:{L_O + (w//2)*1024 + (w%2)*8}")
    kvs = 0 if cfg.get('samekv') else 32*8192
    sal = [f"s_add_u32 {S(sKX)}, {S(sKX)}, {kvs}",
           f"s_add_u32 {S(sVX)}, {S(sVX)}, {kvs}",
           f"s_add_u32 {S(sS)}, {S(sS)}, 1",
           f"s_add_u32 {S(sM2r)}, {S(sM2r)}, 8192",
           f"s_and_b32 {S(sM2r)}, {S(sM2r)}, {~0x8000 & 0xffffffff:#x}",
           f"s_add_u32 {S(sWarm)}, {S(sWarm)}, {kvs}",
           f"s_add_u32 {S(sMG)}, {S(sMG)}, 8192",
           f"s_xor_b32 {S(sClr)}, {S(sM2w)}, 16384"]
    if cfg.get('tl'): a("s_memtime s[24:25]" if cfg.get('tlo') else "s_memrealtime s[24:25]")
    seq(z[12:], sal, lg(0))
    if cfg.get('tl'):
        seq(f"s_max_u32 m0, {S(sS)}, {cfg.get('tlo', 0)}", f"s_sub_u32 m0, m0, {cfg.get('tlo', 0)}", f"s_lshr_b32 m0, m0, {cfg['tl']-1}", "s_min_u32 m0, m0, 15", "s_nop 0", "s_movreld_b32 s72, s24", f"s_mov_b32 m0, {L_KX + w*2048}")
    if prof:
        a(f"s_cmp_eq_u32 {S(sS)}, {cfg.get('snap', 41)}")
        a(f"s_cbranch_scc0 {P}_nd")
        for i in range(NST):
            a(f"s_mov_b32 {S(72 + i)}, {S(sT + 2*i)}")
        a(f"{P}_nd:")
    a("s_barrier")
    stamp(a, 'B4', prof)
    a(f"ds_read_b128 {V(of,4)}, {V(vL16)} offset:{L_O}")
    a(f"ds_read_b128 {V(of+4,4)}, {V(vL16)} offset:{L_O + 1024}")
    wacc = [accQ + 4 * i for i in range(6)] + [oacc, oacc + 4]
    ms = [smf_s(wacc[T], of + 4 * ko, oblk(T, ko)) for T in range(8) for ko in range(2)]
    def ad(T): return padd(wacc[T])
    def pk(tt):
        r0, r1, r2, r3 = wacc[4*tt:4*tt+4]
        return [cvt(r0, r0, r1), f"v_bfi_b32 {V(r0)}, 1, {S(sTag)}, {V(r0)}", cvt(r0+1, r0+1, r1+1), cvt(r0+2, r2, r3), cvt(r0+3, r2+1, r3+1),
                f"buffer_store_dwordx4 {V(r0,4)}, {V(vP1st)}, {S(sSRD,4)}, {S(sP1st if tt == 0 else sP1st2)} offen {st}"]
    p0, p1 = pk(0), pk(1)
    seq(lg(1), ms[0], ms[2], lg(0), ms[1], ms[3], ms[4], ad(0)[0], ms[5], ad(1)[0], ms[6], ad(0)[1], ms[7], ad(1)[1])
    seq(ms[8], p0[0], ad(2)[0], ms[9], ad(2)[1], ad(3), p0[1:5], ms[10], p0[5])
    stamp(a, 'st0', prof)
    seq(ms[11], ad(4)[0], ms[12], ad(4)[1], ms[13], ad(5)[0], ms[14], ad(5)[1], ms[15], p1[0:3], ad(6), ad(7), p1[3:5])
    fillers = stQ + zero(accQ, 24) + [f"s_xor_b32 {S(sP1st)}, {S(sP1st)}, 262144", f"s_xor_b32 {S(sP1st2)}, {S(sP1st2)}, 262144"]
    early = w < 2
    cuts = list(cfg.get('e', [0, 10, 18, 32, 32]) if early else cfg.get('l', [16, 24, 32, 32, 32]))
    pads = list(cfg.get('pe', [8, 0, 4, 4, 4]) if early else cfg.get('pl', [14, 0, 0, 0, 4]))
    def pad(n): return ["s_nop 3"] * n
    pA, pB = poll_ops(56, 8, sP1ld), poll_ops(vVx, 8, sP1ld)
    d1 = cfg.get('d1')
    if d1 is None:
        seq(p1[5])
        stamp(a, 'st1', prof)
        seq(fillers[:cuts[0]], pad(pads[0]), pA)
        nA = 2
    elif early:
        seq(pad(d1[0]), pA, p1[5])
        stamp(a, 'st1', prof)
        seq(fillers[:cuts[0]])
        nA = 3
    else:
        seq(pad(d1[1]), p1[5])
        stamp(a, 'st1', prof)
        seq(fillers[:cuts[0]], pad(pads[0]), pA)
        nA = 2
    seq(fillers[cuts[0]:cuts[1]], pad(pads[1]), pB, fillers[cuts[1]:cuts[2]])
    stamp(a, 'p1beg', prof)
    def red(r): return [f"v_mfma_f32_16x16x32_bf16 {V(48,4)}, {V(vSel,4)}, {V(r,4)}, 0",
                        f"v_mfma_f32_16x16x32_bf16 {V(48,4)}, {V(vSel,4)}, {V(r+4,4)}, {V(48,4)}"]
    def tck(r): return [f"v_and_b32 {V(vWarm)}, 1, {V(r)}", f"v_and_b32 {V(vB0)}, 1, {V(r+4)}",
                        f"v_add_u32 {V(vWarm)}, {V(vWarm)}, {V(vB0)}", f"v_cmp_ne_u32 vcc, {S(sTag2)}, {V(vWarm)}"]
    seq(vm(nA + 1), red(56)[0], vm(nA), red(56)[1])
    stamp(a, 'p1A', prof)
    seq(tck(56))
    a(f"s_cbranch_vccnz {P}_p1")
    a(f"{P}_p1_ok:")
    tail += [f"{P}_p1:"] + pA + [vm(2)] + red(vVx) + tck(vVx) + [f"s_cbranch_vccz {P}_p1_ok"]
    tail += [f"{P}_p1l:"] + spin(f"{P}_p1_to") + slp + pB + [vm(2)] + red(56) + tck(56) + [f"s_cbranch_vccz {P}_p1_ok"]
    tail += slp + pA + [vm(2)] + red(vVx) + tck(vVx) + [f"s_cbranch_vccnz {P}_p1l", f"s_branch {P}_p1_ok"]
    tail += [f"{P}_p1_to:", f"s_mov_b32 {S(sSpin)}, 0", f"s_branch {P}_p1_ok"]
    stamp(a, 'p1ok', prof)
    fin = [f"v_add_f32_dpp {V(48)}, {V(48)}, {V(48)} row_ror:4 row_mask:0xf bank_mask:0xf",
           f"v_add_f32_dpp {V(49)}, {V(49)}, {V(49)} row_ror:4 row_mask:0xf bank_mask:0xf",
           f"v_add_f32_dpp {V(48)}, {V(48)}, {V(48)} row_ror:8 row_mask:0xf bank_mask:0xf",
           f"v_add_f32_dpp {V(49)}, {V(49)}, {V(49)} row_ror:8 row_mask:0xf bank_mask:0xf",
           cvt(vPub, 48, 49)]
    seq(f"s_cmp_eq_u32 {S(sS)}, 63", f"s_cbranch_scc1 {P}_fin")
    if not early: seq(peA)
    seq(fin)
    a(f"buffer_store_dword {V(vPub)}, {V(vM2st)}, {S(sSRD,4)}, {S(sM2w)} offen {st}")
    stamp(a, 'st2', prof)
    post = [f"s_add_u32 {S(sM2w)}, {S(sM2w)}, 8192", f"s_and_b32 {S(sM2w)}, {S(sM2w)}, {~0x8000 & 0xffffffff:#x}",
            f"s_xor_b32 {S(sP1ld)}, {S(sP1ld)}, 262144", f"s_and_b32 {S(sTag2)}, {S(sS)}, 2", f"s_lshr_b32 {S(sTag)}, {S(sTag2)}, 1"]
    seq(fillers[cuts[2]:cuts[3]], post, pad(pads[2]))
    if early: seq(peA)
    seq(fillers[cuts[3]:cuts[4]], pad(pads[3]), peB, fillers[cuts[4]:], pad(pads[4]), peC)
    a(f"s_branch {P}_top")
    if cfg.get('cnt'):
        t2 = []; k = 0
        for x in tail:
            t2.append(x)
            if x.startswith('buffer_load') and 'offset:1024' not in x or (x.startswith('buffer_load') and t2[-2].endswith('_po:')):
                t2.append(f"s_add_u32 s{72+k}, s{72+k}, 1"); k += 1
        tail = t2
    seq(tail)
    a(f"{P}_fin:")
    seq(fin)
    a(f"buffer_store_dword {V(vPub)}, {V(vM2st)}, {S(sSRD,4)}, {S(sMG)} offen sc1")

def rec_setup_consts(a, w):
    t0, t1, t2 = 16, 17, 18
    a(f"v_and_b32 {V(t0)}, 15, v0")
    a(f"v_lshrrev_b32 {V(t1)}, 4, v0")
    a(f"v_lshlrev_b32 {V(vL16)}, 4, v0")
    a(f"v_add_u32 {V(vWl)}, {L_W + w*WREG}, {V(vL16)}")
    a(f"v_and_b32 {V(t2)}, 2, {V(t0)}")
    a(f"v_mov_b32 {V(vIdx)}, 0x4444")
    a(f"v_mov_b32 {V(vWarm)}, 0xeeee")
    a(f"v_cmp_eq_u32 vcc, 2, {V(t2)}")
    a(f"v_cndmask_b32 {V(vIdx)}, {V(vIdx)}, {V(vWarm)}, vcc")
    a(f"v_mov_b32 {V(vBias)}, 0")
    a(f"v_mov_b32 {V(vWarm)}, 0x7f800000")
    a(f"v_cndmask_b32 {V(vBias)}, {V(vBias)}, {V(vWarm)}, vcc")
    a(f"v_mul_u32_u24 {V(vQKw)}, {4*QA}, {V(t1)}")
    a(f"v_lshl_add_u32 {V(vQKw)}, {V(t0)}, 2, {V(vQKw)}")
    a(f"v_add_u32 {V(vQKw)}, {L_Q + 64*w}, {V(vQKw)}")
    a(f"v_lshrrev_b32 {V(t2)}, 2, {V(t0)}")
    a(f"v_mul_u32_u24 {V(vQKr)}, {4*QA}, {V(t2)}")
    a(f"v_and_b32 {V(t2)}, 1, {V(t0)}")
    a(f"v_mul_u32_u24 {V(t2)}, {4*QB}, {V(t2)}")
    a(f"v_add_u32 {V(vQKr)}, {V(vQKr)}, {V(t2)}")
    a(f"v_bfe_u32 {V(t2)}, {V(t0)}, 1, 1")
    a(f"v_mul_u32_u24 {V(t2)}, {4*QC}, {V(t2)}")
    a(f"v_add_u32 {V(vQKr)}, {V(vQKr)}, {V(t2)}")
    a(f"v_lshl_add_u32 {V(vQKr)}, {V(t1)}, 4, {V(vQKr)}")
    a(f"v_add_u32 {V(vQKr)}, {L_Q}, {V(vQKr)}")
    a(f"v_lshlrev_b32 {V(vP1st)}, 14, {V(t1)}")
    a(f"v_lshrrev_b32 {V(t2)}, 3, {V(t0)}")
    a(f"v_lshl_add_u32 {V(vP1st)}, {V(t2)}, 13, {V(vP1st)}")
    a(f"v_bfe_u32 {V(t2)}, {V(t0)}, 2, 1")
    a(f"v_lshl_add_u32 {V(vP1st)}, {V(t2)}, 11, {V(vP1st)}")
    a(f"v_and_b32 {V(t2)}, 3, {V(t0)}")
    a(f"v_lshl_add_u32 {V(vP1st)}, {V(t2)}, 4, {V(vP1st)}")
    a(f"v_lshlrev_b32 {V(vM2st)}, 4, {V(t1)}")
    a(f"v_lshl_add_u32 {V(vM2st)}, {V(t0)}, 2, {V(vM2st)}")
    a(f"v_mov_b32 {V(vWarm)}, 0x40000000")
    a(f"v_cmp_gt_u32 vcc, 4, {V(t0)}")
    a(f"v_cndmask_b32 {V(vM2st)}, {V(vWarm)}, {V(vM2st)}, vcc")
    for r in range(4):
        a(f"v_mov_b32 {V(vSel+r)}, 0")
        a(f"v_mov_b32 {V(vWarm)}, 0x3f80")
        a(f"v_cmp_eq_u32 vcc, {4*r}, {V(t0)}")
        a(f"v_cndmask_b32 {V(vSel+r)}, {V(vSel+r)}, {V(vWarm)}, vcc")
        a(f"v_mov_b32 {V(vWarm)}, 1.0")
        a(f"v_cmp_eq_u32 vcc, {4*r+1}, {V(t0)}")
        a(f"v_cndmask_b32 {V(vSel+r)}, {V(vSel+r)}, {V(vWarm)}, vcc")
    a(f"s_mov_b32 {S(sS)}, 0")
    a(f"s_mov_b32 {S(sM2r)}, {M2B + w*2048}")
    a(f"s_lshl_b32 {S(sTmp)}, {S(sH)}, 13")
    a(f"s_add_u32 {S(sKX)}, {S(sTmp)}, {KXB + w*2048}")
    a(f"s_add_u32 {S(sVX)}, {S(sTmp)}, {VXB + w*2048}")
    a(f"s_add_u32 {S(sWarm)}, {S(sTmp)}, {(KXB if w < 2 else VXB) + (w%2)*4096 + (2 if w < 2 else 1)*32*8192}")
    a(f"s_add_u32 {S(sP1ld)}, {S(sTmp)}, {P1B + w*2048}")
    a(f"s_lshr_b32 {S(sTmp)}, {S(sH)}, 4")
    a(f"s_lshl_b32 {S(sP1st)}, {S(sTmp)}, 10")
    a(f"s_and_b32 {S(sTmp)}, {S(sH)}, 3")
    a(f"s_lshl_b32 {S(sTmp)}, {S(sTmp)}, 8")
    a(f"s_add_u32 {S(sP1st)}, {S(sP1st)}, {S(sTmp)}")
    a(f"s_and_b32 {S(sTmp)}, {S(sH)}, 12")
    a(f"s_lshl_b32 {S(sTmp)}, {S(sTmp)}, 4")
    a(f"s_add_u32 {S(sP1st)}, {S(sP1st)}, {S(sTmp)}")
    a(f"s_add_u32 {S(sP1st)}, {S(sP1st)}, {P1B + 8*w*8192}")
    a(f"s_add_u32 {S(sP1st2)}, {S(sP1st)}, 4096")
    a(f"s_lshr_b32 {S(sTmp)}, {S(sH)}, 3")
    a(f"s_lshl_b32 {S(sM2w)}, {S(sTmp)}, 11")
    a(f"s_and_b32 {S(sTmp)}, {S(sH)}, 6")
    a(f"s_lshl_b32 {S(sTmp)}, {S(sTmp)}, 5")
    a(f"s_add_u32 {S(sM2w)}, {S(sM2w)}, {S(sTmp)}")
    a(f"s_and_b32 {S(sTmp)}, {S(sH)}, 1")
    a(f"s_lshl_b32 {S(sTmp)}, {S(sTmp)}, 9")
    a(f"s_add_u32 {S(sM2w)}, {S(sM2w)}, {S(sTmp)}")
    a(f"s_add_u32 {S(sM2w)}, {S(sM2w)}, {M2B + 1024*(w//2) + 256*(w%2)}")
    a(f"s_mov_b32 {S(sSpin)}, {SPIN_MAX}")
    a(f"s_mov_b32 {S(sTag)}, 0")
    a(f"s_mov_b32 {S(sTag2)}, 0")
    a(f"s_add_u32 {S(sClr)}, {S(sM2w)}, 16384")
    a(f"s_sub_u32 {S(sMG)}, {S(sM2w)}, {M2B - MGB}")
    a(f"s_mov_b32 {S(sReady)}, 0")
    import struct
    c = struct.unpack('<I', struct.pack('<f', 128 ** -0.5 * math.log2(math.e)))[0]
    a(f"s_mov_b32 {S(sC)}, {c:#x}")
    a(f"s_mov_b32 {S(sC+1)}, {c:#x}")
    a(f"s_mov_b32 {S(sOne)}, 0x3f803f80")
    a(f"s_mov_b32 {S(sOne+1)}, 0x3f803f80")


def rec_load_weights(a, w, sArg, lane, mid, late, cfg):
    sq, sk, sv, so = 32, 36, 40, 44
    a(f"s_load_dwordx2 {S(sq,2)}, {S(sArg,2)}, 16")
    a(f"s_load_dwordx2 {S(sk,2)}, {S(sArg,2)}, 24")
    a(f"s_load_dwordx2 {S(sv,2)}, {S(sArg,2)}, 32")
    a(f"s_load_dwordx2 {S(so,2)}, {S(sArg,2)}, 40")
    for r in (sq, sk, sv, so):
        a(f"s_mov_b32 {S(r+2)}, {4 << 20}")
        a(f"s_mov_b32 {S(r+3)}, 0x20000")
    va, vb, ra, rb, t0, t1 = 16, 17, 18, 19, 21, 22
    base = L_W + w * WREG
    a(f"v_lshrrev_b32 {V(va)}, 2, {V(lane)}")
    a(f"v_lshlrev_b32 {V(va)}, 13, {V(va)}")
    a(f"v_and_b32 {V(t0)}, 3, {V(lane)}")
    a(f"v_lshl_add_u32 {V(va)}, {V(t0)}, 4, {V(va)}")
    a(f"v_lshrrev_b32 {V(vb)}, 3, {V(lane)}")
    a(f"v_lshlrev_b32 {V(vb)}, 10, {V(vb)}")
    a(f"v_and_b32 {V(t1)}, 7, {V(lane)}")
    a(f"v_lshl_add_u32 {V(vb)}, {V(t1)}, 4, {V(vb)}")
    a(f"v_lshlrev_b32 {V(ra)}, 3, {V(t0)}")
    a(f"v_add_u32 {V(ra)}, {base}, {V(ra)}")
    a(f"v_mov_b32 {V(rb)}, {V(ra)}")
    a(f"v_bfe_u32 {V(t1)}, {V(lane)}, 2, 2")
    a(f"v_lshl_add_u32 {V(ra)}, {V(t1)}, 10, {V(ra)}")
    a(f"v_lshrrev_b32 {V(t1)}, 4, {V(lane)}")
    a(f"v_lshl_add_u32 {V(ra)}, {V(t1)}, 7, {V(ra)}")
    for bit, sh in ((4, 12), (3, 11), (5, 9), (2, 7)):
        a(f"v_bfe_u32 {V(t1)}, {V(lane)}, {bit}, 1")
        a(f"v_lshl_add_u32 {V(rb)}, {V(t1)}, {sh}, {V(rb)}")
    s1, s2 = 48, 49
    a(f"s_lshl_b32 {S(s1)}, {S(sH)}, 8")
    a(f"s_add_u32 {S(s1)}, {S(s1)}, {64*w}")
    if cfg.get('rot', 0):
        a(f"s_and_b32 {S(sTmp)}, {S(sH)}, 12")
        a(f"s_lshl_b32 {S(s2)}, {S(sTmp)}, 18")
        a(f"s_add_u32 {S(s1)}, {S(s1)}, {S(s2)}")
        a(f"s_lshl_b32 {S(s2)}, {S(sTmp)}, 9")
        a(f"s_xor_b32 {S(sM2r)}, {S(sM2r)}, {S(s2)}")
    a(f"s_lshl_b32 {S(s2)}, {S(sH)}, 17")
    a(f"s_add_u32 {S(s2)}, {S(s2)}, {256*w}")
    a("s_waitcnt lgkmcnt(0)")
    order = korder(w)
    def slot_off(u): return (u % 4) * 4096 + (9 * 2048 if (u // 4) % 2 else 0)
    def sub(blk, p2):
        k, b = blk[0], int(blk[2:].split(':')[0])
        return R(k, b + 2 * p2, 2)
    qd = lambda ks, t: qblk(w, ks, t)
    mid_units = []
    for i in range(8):
        mid_units += [('m', sk, i, kblk), ('m', sv, i, vblk)]
        if i % 2 == 1: mid_units.append(('m', sq, order[4 + i // 2], qd))
    units = [('o', 0, q) for q in range(4)] + mid_units + [('m', sq, ks, qd) for ks in order[:4]] + [('o', 1, q) for q in range(4)]
    assert len(units) == 32
    def dma(u):
        x = units[u]
        for j in range(4):
            a(f"s_mov_b32 m0, {base + slot_off(u) + j*1024}")
            if x[0] == 'm':
                a(f"s_xor_b32 {S(sTmp)}, {S(s1)}, {(64*x[2] + 16*j) * 8192}")
                a(f"buffer_load_dwordx4 {V(va)}, {S(x[1],4)}, {S(sTmp)} offen lds")
            else:
                a(f"s_add_u32 {S(sTmp)}, {S(s2)}, {(4*x[2] + j)*8192 + x[1]*128}")
                a(f"buffer_load_dwordx4 {V(vb)}, {S(so,4)}, {S(sTmp)} offen lds")
    def rd(u):
        x = units[u]
        if x[0] == 'm':
            for t in range(2):
                for p2 in range(4):
                    a(f"ds_read_b64_tr_b16 {sub(x[3](x[2], t), p2)}, {V(ra)} offset:{slot_off(u) + (8*(p2//2) + p2%2)*64 + t*32}")
        elif x[2] % 2 == 1:
            ko = x[2] // 2
            for tp in range(4):
                for p2 in range(4):
                    a(f"ds_read_b64_tr_b16 {sub(oblk(4*x[1]+tp, ko), p2)}, {V(rb)} offset:{slot_off(u-1) + (8*(p2//2) + 2*(p2%2))*128 + tp*32}")
    def wb(slot0, x0, n):
        for i in range(n):
            for hf in range(2):
                a(f"ds_write_b128 {V(vWl)}, {V(X + 8*(x0+i) + 4*hf, 4)} offset:{(slot0+i)*2048 + hf*1024}")
    log = []
    def issue(u): dma(u); log.extend([u] * 4)
    def younger(u): return len(log) - 1 - max(i for i, x in enumerate(log) if x == u)
    for u in range(8): issue(u)
    for u in range(32):
        x = units[u]
        if x[0] == 'o' and x[2] % 2 == 0: continue
        a(f"s_waitcnt vmcnt({younger(u) if u < 31 else 0})")
        if PSTART[0] and u % 4 == 3: a(f"s_memrealtime {S(72+2*(u//4),2)}")
        if u == 26:
            a(f"s_waitcnt vmcnt({younger('m')})")
            late()
        rd(u)
        a("s_waitcnt lgkmcnt(0)")
        if x[0] == 'm' and x[1] == sq and x[2] == order[4]: wb(8, 8, 1)
        if 24 <= u < 28: wb(2 * (u - 24), 2 * (u - 24), 2)
        if u == 27: a("s_waitcnt lgkmcnt(0)")
        if u == 31: wb(9, 0, 8); a("s_waitcnt lgkmcnt(0)")
        if u == 18: mid(); log.extend(['m'] * 3)
        for v in ([u - 1, u] if x[0] == 'o' else [u]):
            if v + 8 < 32: issue(v + 8)

def rec_m0_loads(a, w, sMem, lane):
    a(f"v_and_b32 v21, 3, {V(lane)}")
    a(f"v_lshrrev_b32 v22, 4, {V(lane)}")
    a("v_and_b32 v23, 1, v22")
    a("v_lshlrev_b32 v23, 10, v23")
    a("v_lshrrev_b32 v22, 1, v22")
    a("v_lshl_add_u32 v23, v22, 6, v23")
    a("v_lshl_add_u32 v23, v21, 1, v23")
    a(f"s_and_b32 {S(sTmp)}, {S(sH)}, 6")
    a(f"s_lshl_b32 {S(sTmp)}, {S(sTmp)}, 10")
    a(f"s_lshr_b32 s100, {S(sH)}, 3")
    a(f"s_lshl_b32 s100, s100, 8")
    a(f"s_add_u32 {S(sTmp)}, {S(sTmp)}, s100")
    a(f"s_and_b32 s100, {S(sH)}, 1")
    a(f"s_lshl_b32 s100, s100, 4")
    a(f"s_add_u32 {S(sTmp)}, {S(sTmp)}, s100")
    a(f"s_add_u32 {S(sTmp)}, {S(sTmp)}, {128*(w//2) + 8*(w%2)}")
    a(f"v_add_u32 v23, {S(sTmp)}, v23")
    a(f"global_load_ushort v24, v23, {S(sMem,2)}")
    a(f"global_load_ushort v25, v23, {S(sMem,2)} offset:32")

def rec_role(a, sArg, sDbg, sW, sXcc, end, prof=0, cfg={}):
    L = a.newlabel("RR")
    sMem, sMode = 50, 97
    if prof: a("s_memrealtime s[90:91]")
    PSTART[0] = prof == 1 and not cfg.get('tl') and not cfg.get('cnt')
    if cfg.get('cnt'):
        for i in range(16): a(f's_mov_b32 s{72+i}, 0')
    a(f"s_load_dwordx2 {S(sMem,2)}, {S(sArg,2)}, 8")
    a(f"s_lshl_b32 {S(sFlag)}, {S(sH)}, 7")
    a(f"s_add_u32 {S(sFlag)}, {S(sFlag)}, {F_KV}")
    for w in range(1, 4):
        a(f"s_cmp_eq_u32 {S(sW)}, {w}")
        a(f"s_cbranch_scc1 {L}_w{w}")
    for w in range(4):
        a(f"{L}_w{w}:")
        a("v_mov_b32 v20, v0")
        rec_setup_consts(a, w)
        def mid():
            rec_m0_loads(a, w, sMem, 20)
            a(f"v_mov_b32 v22, {4*D_REC}")
            a(f"global_load_dwordx2 v[26:27], v22, {S(sDbg,2)} sc1")
        def late():
            a(f"{L}_c{w}:")
            a(f"v_readfirstlane_b32 {S(sMode)}, v26")
            a(f"v_readfirstlane_b32 s101, v27")
            a(f"s_and_b32 s100, {S(sMode)}, 0xffff")
            a(f"s_lshl_b32 s101, s101, 2")
            a(f"s_min_u32 s100, s100, s101")
            a(f"s_cmp_ge_u32 s100, 32")
            a(f"s_cbranch_scc1 {L}_d{w}")
            a(f"global_load_dwordx2 v[26:27], v22, {S(sDbg,2)} sc1")
            a(f"s_sub_u32 {S(sSpin)}, {S(sSpin)}, 1")
            a(f"s_cbranch_scc1 {end}")
            a("s_waitcnt vmcnt(0)")
            a(f"s_branch {L}_c{w}")
            a(f"{L}_d{w}:")
            a(f"v_lshl_or_b32 {V(vPub)}, v25, 16, v24")
            a(f"buffer_store_dword {V(vPub)}, {V(vM2st)}, {S(sSRD,4)}, {S(sM2w)} offen sc1")
            a(f"buffer_load_dwordx4 {V(28,4)}, off, {S(sSRD,4)}, {S(sFlag)} sc1")
            a(f"s_add_u32 {S(sM2w)}, {S(sM2w)}, 8192")
        rec_load_weights(a, w, sArg, 20, mid, late, cfg)
        for x in ready_calc(28): a(x)
        a(f"s_cmp_gt_u32 {S(sMode)}, 0xffff")
        a(f"s_cbranch_scc1 {L}_s{w}")
        if prof:
            a("s_memtime s[68:69]\ns_memrealtime s[92:93]\ns_waitcnt lgkmcnt(0)")
        rec_loop(a, w, '', prof > 1, cfg=cfg)
        if prof:
            a("s_memtime s[70:71]\ns_memrealtime s[94:95]\ns_waitcnt lgkmcnt(0)")
            a("s_sub_u32 s88, s70, s68\ns_sub_u32 s89, s94, s92\ns_sub_u32 s90, s92, s90")
            a(f"s_mov_b32 s91, {S(sSpin)}")
            a(f"s_lshl_b32 s63, {S(sH)}, 9")
            a(f"s_add_u32 s63, s63, {PROFB + w*128}")
            a("v_mov_b32 v1, 0")
            a("s_mov_b32 s93, s68")
            if PSTART[0]: a("s_getreg_b32 s73, hwreg(HW_REG_HW_ID)")
            for i in range(22):
                a(f"v_mov_b32 v2, {S(72+i)}")
                a(f"buffer_store_dword v2, v1, {S(sSRD,4)}, s63 offen offset:{4*i}")
        a(f"s_branch {end}")
        a(f"{L}_s{w}:")
        rec_loop(a, w, 'sc1', False, cfg=cfg)
        a(f"s_branch {end}")
```

```python
from asm import *
from layout import *
import struct, math
def f32bits(x): return struct.unpack('<I', struct.pack('<f', x))[0]
sWS = 4

def xlane_reduce16_32(a, op, r, t):
    for sw in ('v_permlane16_swap_b32', 'v_permlane32_swap_b32'):
        a(f"v_mov_b32 {V(t)}, {V(r)}")
        a(f"{sw} {V(r)}, {V(t)}")
        a(f"{op} {V(r)}, {V(r)}, {V(t)}")

def gate_role(a, sArg, sBlk, sW, st=''):
    L = a.newlabel("GT")
    sX, sG, sOff, sJ = 8, 12, 16, 17
    a(f"s_load_dwordx2 {S(sX,2)}, {S(sArg,2)}, 0")
    a(f"s_load_dwordx2 {S(sG,2)}, {S(sArg,2)}, 80")
    a(f"s_mov_b32 {S(sX+2)}, {2048*1024}")
    a(f"s_mov_b32 {S(sX+3)}, 0x20000")
    a(f"v_lshlrev_b32 v1, 4, v0")
    a(f"s_lshl_b32 {S(sOff)}, {S(sBlk)}, 2")
    a(f"s_add_u32 {S(sOff)}, {S(sOff)}, {S(sW)}")
    a(f"s_lshl_b32 s18, {S(sOff)}, 9")
    a(f"s_lshl_b32 {S(sOff)}, {S(sOff)}, 16")
    a("s_waitcnt lgkmcnt(0)")
    a(f"global_load_dwordx4 v[4:7], v1, {S(sG,2)}")
    a("s_waitcnt vmcnt(0)")
    for i in range(4):
        a(f"v_lshlrev_b32 {V(8+2*i)}, 16, {V(4+i)}")
        a(f"v_and_b32 {V(9+2*i)}, 0xffff0000, {V(4+i)}")
    a("v_mov_b32 v2, 0")
    a(f"s_mov_b32 {S(sJ)}, 0")
    a(f"{L}_loop:")
    for j in range(4):
        a(f"buffer_load_dwordx4 {V(32+4*j,4)}, v1, {S(sX,4)}, {S(sOff)} offen offset:{j*1024}")
    for j in range(4):
        a(f"s_waitcnt vmcnt({3-j})")
        for i in range(4):
            x = 32 + 4*j + i
            a(f"v_lshlrev_b32 v16, 16, {V(x)}")
            a(f"v_and_b32 v17, 0xffff0000, {V(x)}")
            a(f"v_mul_f32 v16, v16, {V(8+2*i)}")
            a(f"v_mul_f32 v17, v17, {V(9+2*i)}")
            a(f"v_cvt_pk_bf16_f32 v18, v16, v17")
            a(f"v_lshlrev_b32 v16, 16, v18")
            a(f"v_and_b32 v17, 0xffff0000, v18")
            if i == 0: a("v_add_f32 v19, v16, v17")
            else:
                a("v_add_f32 v19, v19, v16"); a("v_add_f32 v19, v19, v17")
        for ror in (1, 2, 4, 8):
            a(f"v_add_f32_dpp v19, v19, v19 row_ror:{ror} row_mask:0xf bank_mask:0xf")
        xlane_reduce16_32(a, "v_add_f32", 19, 20)
        a(f"v_cmp_eq_u32 vcc, {S(sJ)}, v0")
        a(f"v_cndmask_b32 v2, v2, v19, vcc")
        a(f"s_add_u32 {S(sJ)}, {S(sJ)}, 1")
    a(f"s_add_u32 {S(sOff)}, {S(sOff)}, 4096")
    a(f"s_cmp_lt_u32 {S(sJ)}, 64")
    a(f"s_cbranch_scc1 {L}_loop")
    a("v_cvt_pk_bf16_f32 v2, v2, v2")
    a("v_lshlrev_b32 v2, 16, v2")
    a(f"v_mul_f32 v2, {f32bits(-math.log2(math.e)):#x}, v2")
    a("v_exp_f32 v2, v2")
    a("v_add_f32 v2, 1.0, v2")
    a("v_rcp_f32 v2, v2")
    a("v_cvt_pk_bf16_f32 v2, v2, v2")
    a("v_lshlrev_b32 v2, 16, v2")
    a("v_sub_f32 v3, 1.0, v2")
    a("v_cvt_pk_bf16_f32 v3, v3, v3")
    a("v_lshlrev_b32 v3, 16, v3")
    a("v_lshlrev_b32 v1, 3, v0")
    a(f"s_add_u32 s18, s18, {GB}")
    a(f"buffer_store_dwordx2 v[2:3], v1, {S(sWS,4)}, s18 offen {st}")
    a("s_waitcnt vmcnt(0)")

def battn_role(a, sH, sPart, sW, ld='', st=''):
    L = a.newlabel("BA")
    NU = 3
    sT0, sMask, sI, sSeg = 16, 18, 20, 21
    vL16, vKa, vVa, vT = 1, 2, 3, 4
    Q = 8; KF = 20; VF = 28; PB = 44; NM = 64; OA = 112; SB = 160; MX = 208; GG = 216
    a(f"v_lshlrev_b32 {V(vL16)}, 4, v0")
    a(f"s_lshl_b32 {S(sT0)}, {S(sH)}, 16")
    a(f"s_lshl_b32 {S(sT0+1)}, {S(sW)}, 14")
    a(f"s_add_u32 {S(sT0)}, {S(sT0)}, {S(sT0+1)}")
    for m, base in ((0, KBB), (1, VBB)):
        for j in range(4):
            a(f"s_add_u32 m0, {S(sT0+1)}, {m*65536 + j*4096}")
            a(f"s_add_u32 {S(sI)}, {S(sT0)}, {base + j*4096}")
            for i in range(4):
                a(f"buffer_load_dwordx4 {V(vL16)}, {S(sWS,4)}, {S(sI)} offen offset:{i*1024} {ld} lds")
        if m == 0:
            a(f"s_mul_i32 {S(sSeg)}, {S(sPart)}, 12")
            a(f"s_mul_i32 {S(sI)}, {S(sW)}, 3")
            a(f"s_add_u32 {S(sSeg)}, {S(sSeg)}, {S(sI)}")
            a(f"v_and_b32 {V(vT)}, 31, v0")
            a(f"v_lshlrev_b32 {V(vT)}, 3, {V(vT)}")
            for u in (2, 1, 0):
                a(f"s_add_u32 {S(sSeg+u)}, {S(sSeg)}, {u}")
                a(f"s_min_u32 {S(sSeg+u)}, {S(sSeg+u)}, 63")
            for u in range(NU):
                a(f"s_lshl_b32 {S(sI)}, {S(sH)}, 6")
                a(f"s_add_u32 {S(sI)}, {S(sI)}, {S(sSeg+u)}")
                a(f"s_lshl_b32 {S(sI)}, {S(sI)}, 10")
                a(f"s_add_u32 {S(sI)}, {S(sI)}, {QBB}")
                a(f"buffer_load_dwordx4 {V(Q+4*u,4)}, {V(vL16)}, {S(sWS,4)}, {S(sI)} offen {ld}")
                a(f"s_lshl_b32 {S(sI)}, {S(sSeg+u)}, 8")
                a(f"s_add_u32 {S(sI)}, {S(sI)}, {GB}")
                a(f"buffer_load_dword {V(GG+u)}, {V(vT)}, {S(sWS,4)}, {S(sI)} offen offset:4 {ld}")
    a(f"s_mov_b32 {S(sMask)}, 0xffff")
    a(f"s_mov_b32 {S(sMask+1)}, 0xffff")
    a(f"v_lshrrev_b32 {V(vVa)}, 5, v0")
    a(f"v_lshlrev_b32 {V(vVa)}, 8, {V(vVa)}")
    a(f"v_and_b32 {V(vT)}, 15, v0")
    a(f"v_lshl_add_u32 {V(vVa)}, {V(vT)}, 4, {V(vVa)}")
    a(f"v_add_u32 {V(vVa)}, 65536, {V(vVa)}")
    for i in range(16): a(f"v_mov_b32 {V(VF+i)}, 0x3f803f80")
    for u in range(NU):
        a(f"v_mov_b32 {V(MX+2*u)}, 0xff800000"); a(f"v_mov_b32 {V(MX+2*u+1)}, 0xff800000")
        for i in range(0, 16, 2): a(f"v_mov_b64 {V(OA+16*u+i,2)}, 0")
    a("s_waitcnt vmcnt(16)")
    a("s_barrier")
    a(f"v_mov_b32 {V(vKa)}, {V(vL16)}")
    a(f"ds_read_b128 {V(KF,4)}, {V(vKa)}")
    a(f"ds_read_b128 {V(KF+4,4)}, {V(vKa)} offset:1024")
    a(f"s_mov_b32 {S(sI)}, 0")
    def smf(u, kf, c): return f"v_mfma_f32_32x32x16_bf16 {V(SB+16*u,16)}, {V(kf,4)}, {V(Q+4*u,4)}, {c}"
    def mx(u):
        b = SB + 16 * u
        return [f"v_max3_f32 {V(MX+2*u+(i%2))}, {V(MX+2*u+(i%2))}, {V(b+2*i)}, {V(b+2*i+1)}" for i in range(8)]
    a("s_waitcnt lgkmcnt(1)")
    a(smf(0, KF, "0")); a(smf(1, KF, "0"))
    a(f"{L}_p1:")
    for par in range(2):
        kc, kn = KF + 4 * par, KF + 4 * (1 - par)
        a(smf(2, kc, "0"))
        a(f"ds_read_b128 {V(kc,4)}, {V(vKa)} offset:{2048 + 1024*par}")
        for x in mx(0): a(x)
        a("s_waitcnt lgkmcnt(1)")
        a(smf(0, kn, "0"))
        for x in mx(1): a(x)
        a(smf(1, kn, "0"))
        for x in mx(2): a(x)
    a(f"v_add_u32 {V(vKa)}, 2048, {V(vKa)}")
    a(f"s_add_u32 {S(sI)}, {S(sI)}, 2")
    a(f"s_cmp_lt_u32 {S(sI)}, 64")
    a(f"s_cbranch_scc1 {L}_p1")
    for u in range(NU):
        a(f"v_max_f32 {V(MX+2*u)}, {V(MX+2*u)}, {V(MX+2*u+1)}")
        a(f"v_mov_b32 {V(MX+2*u+1)}, {V(MX+2*u)}")
        a(f"v_permlane32_swap_b32 {V(MX+2*u)}, {V(MX+2*u+1)}")
        a(f"v_max_f32 {V(MX+2*u)}, {V(MX+2*u)}, {V(MX+2*u+1)}")
        for i in range(16): a(f"v_sub_f32 {V(NM+16*u+i)}, 0, {V(MX+2*u)}")
    a("s_waitcnt vmcnt(0) lgkmcnt(0)")
    a("s_barrier")
    def rdV(par, off):
        return [f"s_mov_b64 exec, {S(sMask,2)}",
                f"ds_read_b128 {V(VF+8*par,4)}, {V(vVa)} offset:{off}",
                f"ds_read_b128 {V(VF+8*par+4,4)}, {V(vVa)} offset:{off+512}",
                "s_mov_b64 exec, -1"]
    a(f"v_mov_b32 {V(vKa)}, {V(vL16)}")
    a(f"ds_read_b128 {V(KF,4)}, {V(vKa)}")
    a(f"ds_read_b128 {V(KF+4,4)}, {V(vKa)} offset:1024")
    for x in rdV(0, 0): a(x)
    for i in range(8): a(f"v_mov_b32 {V(PB+8+i)}, 0")
    a(f"s_mov_b32 {S(sI)}, 0")
    a("s_waitcnt lgkmcnt(0)")
    def smf2(u, kf): return smf(u, kf, V(NM+16*u, 16))
    def pv(u, vpar, pb, h): return f"v_mfma_f32_32x32x16_bf16 {V(OA+16*u,16)}, {V(VF+8*vpar+4*h,4)}, {V(PB+8*pb+4*h,4)}, {V(OA+16*u,16)}"
    a(smf2(0, KF)); a(smf2(1, KF))
    a(f"{L}_p2:")
    n = 0
    for par in range(2):
        kc, kn = KF + 4 * par, KF + 4 * (1 - par)
        for u in range(NU):
            b = SB + 16 * u
            pb = n % 2
            pu = (u - 1) % NU
            pvpar = par if u > 0 else 1 - par
            if u == 0: a(smf2(2, kc)); a(f"ds_read_b128 {V(kc,4)}, {V(vKa)} offset:{2048 + 1024*par}")
            elif u == 1: a("s_waitcnt lgkmcnt(3)"); a(smf2(0, kn))
            else: a(smf2(1, kn))
            for i in range(16):
                a(f"v_exp_f32 {V(b+i)}, {V(b+i)}")
                if i == 4: a(pv(pu, pvpar, 1 - pb, 0))
                if i == 9:
                    a(pv(pu, pvpar, 1 - pb, 1))
                    if u == 0:
                        for x in rdV(1 - par, 1024 + 1024 * par): a(x)
                if i >= 3 and i % 2 == 1: a(f"v_cvt_pk_bf16_f32 {V(PB+8*pb+(i-3)//2)}, {V(b+i-3)}, {V(b+i-2)}")
            a(f"v_cvt_pk_bf16_f32 {V(PB+8*pb+7)}, {V(b+14)}, {V(b+15)}")
            n += 1
    a(f"v_add_u32 {V(vKa)}, 2048, {V(vKa)}")
    a(f"v_add_u32 {V(vVa)}, 2048, {V(vVa)}")
    a(f"s_add_u32 {S(sI)}, {S(sI)}, 2")
    a(f"s_cmp_lt_u32 {S(sI)}, 64")
    a(f"s_cbranch_scc1 {L}_p2")
    a(pv(2, 1, 1, 0)); a(pv(2, 1, 1, 1))
    for u in range(NU):
        o = OA + 16 * u
        a(f"v_rcp_f32 {V(vT)}, {V(o+8)}")
        a(f"v_mul_f32 {V(vT)}, {V(vT)}, {V(GG+u)}")
        for i in range(8): a(f"v_mul_f32 {V(o+i)}, {V(o+i)}, {V(vT)}")
        for i in range(4): a(f"v_cvt_pk_bf16_f32 {V(o+8+i)}, {V(o+2*i)}, {V(o+2*i+1)}")
        a(f"s_mul_i32 {S(sI)}, {S(sSeg+u)}, 288")
        a(f"s_add_u32 {S(sI)}, {S(sI)}, {S(sH)}")
        a(f"s_lshl_b32 {S(sI)}, {S(sI)}, 10")
        a(f"s_add_u32 {S(sI)}, {S(sI)}, {OXB + 256*1024}")
        a(f"buffer_store_dwordx4 {V(o+8,4)}, {V(vL16)}, {S(sWS,4)}, {S(sI)} offen {st}")
    a("s_waitcnt vmcnt(0) lgkmcnt(0)")

T5_MASK = 24
def t5_setup(a):
    a("v_lshlrev_b32 v1, 4, v0")
    a("v_lshlrev_b32 v2, 3, v0")
    a("v_and_b32 v5, 15, v0")
    a("v_lshlrev_b32 v3, 3, v5")
    a("v_lshrrev_b32 v6, 4, v0")
    a("v_lshlrev_b32 v4, 9, v6")
    a("v_lshl_add_u32 v4, v5, 4, v4")
    for r in range(4):
        a(f"v_lshl_add_u32 v7, v6, 2, {r}")
        a(f"v_cmp_le_u32 {S(T5_MASK+2*r,2)}, v7, v5")
    a(f"s_mov_b32 s22, {f32bits(128 ** -0.5 * math.log2(math.e)):#x}")
    a("v_mov_b32 v5, 0xf149f2ca")
    a("v_mov_b32 v9, 0"); a("v_mov_b32 v10, 0")

def t5_loads_a(a, sS, sH, ld=''):
    Q, K, VV_, KM, VM, G = 16, 48, 80, 112, 128, 136
    a(f"s_lshl_b32 s16, {S(sS)}, 5")
    a(f"s_add_u32 s16, s16, {S(sH)}")
    a(f"s_lshl_b32 s17, s16, 13")
    for base, reg in ((QXB, Q), (KXB, K), (VXB, VV_)):
        for half in range(2):
            a(f"s_add_u32 s18, s17, {base + half*4096}")
            for i in range(4):
                a(f"buffer_load_dwordx4 {V(reg+16*half+4*i,4)}, v1, {S(sWS,4)}, s18 offen offset:{i*1024} {ld}")
    a(f"s_lshl_b32 s18, {S(sS)}, 8")
    a(f"s_add_u32 s18, s18, {GB}")
    a(f"buffer_load_dword {V(G)}, v3, {S(sWS,4)}, s18 offen {ld}")
    a(f"buffer_load_dword {V(G+1)}, v3, {S(sWS,4)}, s18 offen offset:128 {ld}")

def t5_loads_b(a, ld=''):
    KM, VM = 112, 128
    a(f"s_add_u32 s18, s17, {KVMB}")
    for i in range(4):
        a(f"buffer_load_dwordx4 {V(KM+4*i,4)}, v1, {S(sWS,4)}, s18 offen offset:{i*1024} {ld}")
    a(f"s_add_u32 s18, s18, 4096")
    for i in range(4):
        a(f"buffer_load_dwordx2 {V(VM+2*i,2)}, v1, {S(sWS,4)}, s18 offen offset:{i*1024} {ld}")

def t5_compute(a, sS, sH, st=''):
    Q, K, VV_, KM, VM, G = 16, 48, 80, 112, 128, 136
    Sm, S0, S1, PF, T, O = 140, 144, 148, 152, 156, 160
    B0, B1 = 8, 10
    a(f"s_mul_i32 s18, {S(sS)}, 288")
    a(f"s_lshl_b32 s19, {S(sH)}, 3")
    a(f"s_add_u32 s18, s18, s19")
    a(f"s_lshl_b32 s18, s18, 10")
    a(f"s_add_u32 s18, s18, {OXB}")
    a(f"s_add_u32 s19, s18, 4096")
    a("s_waitcnt vmcnt(0)")
    def mf(d, x, y, first): return f"v_mfma_f32_16x16x32_bf16 {V(d,4)}, {V(x,4)}, {V(y,4)}, {'0' if first else V(d,4)}"
    for qt in range(2):
        for kk in range(4):
            q = Q + 16 * qt + 4 * kk
            a(mf(Sm, KM + 4*kk, q, kk == 0))
            a(mf(S0, K + 4*kk, q, kk == 0))
            if qt == 1: a(mf(S1, K + 16 + 4*kk, q, kk == 0))
        dg = S0 if qt == 0 else S1
        for r in range(4):
            a(f"v_cndmask_b32 {V(dg+r)}, v5, {V(dg+r)}, {S(T5_MASK+2*r,2)}")
        ev = [Sm, Sm+1, S0, S0+1, S0+2, S0+3] + ([S1, S1+1, S1+2, S1+3] if qt else [])
        a(f"v_max3_f32 {V(T)}, {V(Sm)}, {V(Sm+1)}, {V(S0)}")
        a(f"v_max3_f32 {V(T)}, {V(T)}, {V(S0+1)}, {V(S0+2)}")
        if qt:
            a(f"v_max3_f32 {V(T)}, {V(T)}, {V(S0+3)}, {V(S1)}")
            a(f"v_max3_f32 {V(T)}, {V(T)}, {V(S1+1)}, {V(S1+2)}")
            a(f"v_max_f32 {V(T)}, {V(T)}, {V(S1+3)}")
        else:
            a(f"v_max_f32 {V(T)}, {V(T)}, {V(S0+3)}")
        xlane_reduce16_32(a, "v_max_f32", T, T+1)
        a(f"v_mul_f32 {V(T)}, s22, {V(T)}")
        for r in ev: a(f"v_fma_f32 {V(r)}, {V(r)}, s22, -{V(T)}")
        for r in ev: a(f"v_exp_f32 {V(r)}, {V(r)}")
        a(f"v_cvt_pk_bf16_f32 {V(B0)}, {V(Sm)}, {V(Sm+1)}")
        a(f"v_cvt_pk_bf16_f32 {V(B1+1)}, {V(Sm)}, {V(Sm+1)}")
        a(f"v_cvt_pk_bf16_f32 {V(PF)}, {V(S0)}, {V(S0+1)}")
        a(f"v_cvt_pk_bf16_f32 {V(PF+1)}, {V(S0+2)}, {V(S0+3)}")
        if qt:
            a(f"v_cvt_pk_bf16_f32 {V(PF+2)}, {V(S1)}, {V(S1+1)}")
            a(f"v_cvt_pk_bf16_f32 {V(PF+3)}, {V(S1+2)}, {V(S1+3)}")
        else:
            a(f"v_mov_b64 {V(PF+2,2)}, 0")
        for e in range(8):
            a(mf(O + 4*e, VV_ + 4*e, PF, True))
        for e in range(8):
            a(f"v_mfma_f32_16x16x16_bf16 {V(O+4*e,4)}, {V(VM+2*(e//2),2)}, {V(B0 if e%2==0 else B1,2)}, {V(O+4*e,4)}")
        a(f"v_add_f32 {V(T)}, {V(ev[0])}, {V(ev[1])}")
        for r in ev[2:]: a(f"v_add_f32 {V(T)}, {V(T)}, {V(r)}")
        xlane_reduce16_32(a, "v_add_f32", T, T+1)
        a(f"v_rcp_f32 {V(T)}, {V(T)}")
        a(f"v_mul_f32 {V(T)}, {V(T)}, {V(G+qt)}")
        for u in range(4):
            o = O + 8 * u
            for i in range(8): a(f"v_mul_f32 {V(o+i)}, {V(o+i)}, {V(T)}")
            d = 192 + 4 * u + 16 * qt
            for i in range(4): a(f"v_cvt_pk_bf16_f32 {V(d+i)}, {V(o+2*i)}, {V(o+2*i+1)}")
            a(f"buffer_store_dwordx4 {V(d,4)}, v4, {S(sWS,4)}, {'s18' if u < 2 else 's19'} offen offset:{(u%2)*2048 + qt*256} {st}")

def t6_wreg(i): return A(4*i, 4) if i < 64 else V(224 + 4*(i-64), 4)
def t6_wreg2(i, hf): return A(4*i + 2*hf, 2) if i < 64 else V(224 + 4*(i-64) + 2*hf, 2)
def t6_setup(a, sArg, sN, sW):
    L = a.newlabel("T6")
    a(f"s_load_dwordx2 s[8:9], {S(sArg,2)}, 40")
    a(f"s_load_dwordx2 s[12:13], {S(sArg,2)}, 72")
    a(f"s_mov_b32 s10, {4096*1024}\ns_mov_b32 s11, 0x20000\ns_mov_b32 s14, {512*1024}\ns_mov_b32 s15, 0x20000")
    a("v_lshlrev_b32 v1, 4, v0")
    a("v_lshrrev_b32 v2, 2, v0\nv_lshlrev_b32 v2, 10, v2\nv_and_b32 v3, 3, v0\nv_lshl_add_u32 v2, v3, 4, v2")
    a(f"s_lshl_b32 s16, {S(sN)}, 6")
    a("v_add_u32 v2, s16, v2")
    a(f"s_mul_i32 s17, {S(sW)}, 36864")
    a("v_lshrrev_b32 v4, 5, v0\nv_lshlrev_b32 v4, 8, v4\nv_bfe_u32 v5, v0, 2, 2\nv_lshl_add_u32 v4, v5, 6, v4")
    a("v_bfe_u32 v5, v0, 4, 1\nv_lshl_add_u32 v4, v5, 5, v4\nv_lshl_add_u32 v4, v3, 3, v4\nv_add_u32 v4, s17, v4")
    a(f"s_mul_i32 s18, {S(sW)}, {1152*1024}")
    a("s_waitcnt lgkmcnt(0)")
    def body(w3):
        for ch in range(2):
            for j in range(36):
                i = ch * 36 + j
                a(f"s_add_u32 m0, s17, {j*1024}")
                if w3 and i >= 40:
                    a(f"s_mov_b32 s19, {(i-40)*16384}")
                    a("buffer_load_dwordx4 v2, s[12:15], s19 offen lds")
                else:
                    a(f"s_add_u32 s19, s18, {i*16384}")
                    a("buffer_load_dwordx4 v2, s[8:11], s19 offen lds")
            a("s_waitcnt vmcnt(0)")
            for j in range(36):
                i = ch * 36 + j
                for hf in range(2):
                    if w3 and i >= 40: row0 = 16 * j + 8 * hf
                    else: row0 = 32 * (j // 2) + 8 * (j % 2) + 16 * hf
                    a(f"ds_read_b64_tr_b16 {t6_wreg2(i, hf)}, v4 offset:{row0*64}")
            a("s_waitcnt lgkmcnt(0)")
    a(f"s_cmp_eq_u32 {S(sW)}, 3")
    a(f"s_cbranch_scc1 {L}_w3")
    body(False)
    a(f"s_branch {L}_e")
    a(f"{L}_w3:")
    body(True)
    a(f"{L}_e:")
    a(f"s_load_dwordx2 s[12:13], {S(sArg,2)}, 88")
    a(f"s_mov_b32 s14, {2048*1024}")
    a("v_and_b32 v2, 31, v0\nv_lshlrev_b32 v2, 10, v2\nv_lshrrev_b32 v3, 5, v0\nv_lshl_add_u32 v2, v3, 3, v2")
    a(f"s_lshl_b32 s19, {S(sW)}, 4")
    a("s_add_u32 s19, s19, s16")
    a("v_add_u32 v2, s19, v2")
    a(f"s_lshl_b32 s19, {S(sW)}, 12\nv_add_u32 v3, s19, v1")
    a(f"s_lshl_b32 s19, {S(sW)}, 10\nv_add_u32 v4, s19, v1")
    a(f"s_mul_i32 s17, {S(sW)}, {72*1024}")
    a(f"s_add_u32 s17, s17, {OXB}")
    a("s_waitcnt lgkmcnt(0)")
    a("s_barrier")

def t6_unit(a, sS, ld=''):
    NB = 48
    FR, ACC = 32, 8
    a(f"s_mul_i32 s18, {S(sS)}, {288*1024}")
    a("s_add_u32 s18, s18, s17")
    def ldf(i):
        ops = []
        if i % 4 == 0 and i: ops.append("s_add_u32 s18, s18, 4096")
        ops.append(f"buffer_load_dwordx4 {V(FR + 4*(i % NB), 4)}, v1, {S(sWS,4)}, s18 offen offset:{(i%4)*1024} {ld}")
        return ops
    for i in range(NB):
        for x in ldf(i): a(x)
    for i in range(72):
        out = min(72, i + NB) - i - 1
        a(f"s_waitcnt vmcnt({out})")
        a(f"v_mfma_f32_32x32x16_bf16 {V(ACC,16)}, {t6_wreg(i)}, {V(FR + 4*(i % NB), 4)}, {'0' if i == 0 else V(ACC,16)}")
        if i + NB < 72:
            for x in ldf(i + NB): a(x)
    for q in range(4):
        a(f"ds_write_b128 v3, {V(ACC+4*q,4)} offset:{q*1024}")
    a("s_waitcnt lgkmcnt(0)")
    a("s_barrier")
    for q in range(4):
        a(f"ds_read_b128 {V(ACC+4*q,4)}, v4 offset:{q*4096}")
    a(f"s_lshl_b32 s18, {S(sS)}, 15")
    a("s_waitcnt lgkmcnt(0)")
    a("s_barrier")
    for i in range(4):
        a(f"v_add_f32 {V(ACC+i)}, {V(ACC+i)}, {V(ACC+4+i)}")
        a(f"v_add_f32 {V(ACC+8+i)}, {V(ACC+8+i)}, {V(ACC+12+i)}")
        a(f"v_add_f32 {V(ACC+i)}, {V(ACC+i)}, {V(ACC+8+i)}")
    a(f"v_cvt_pk_bf16_f32 v24, {V(ACC)}, {V(ACC+1)}")
    a(f"v_cvt_pk_bf16_f32 v25, {V(ACC+2)}, {V(ACC+3)}")
    a("buffer_store_dwordx2 v[24:25], v2, s[12:15], s18 offen")


sDBG = 64
VW = [254]
T5FAST = [63, 32]
def wait_word(a, off, cond, sW, sSpin=70, sleep=8):
    L = a.newlabel("WW")
    a(f"s_cmp_eq_u32 {S(sW)}, 0")
    a(f"s_cbranch_scc0 {L}_ok")
    a(f"{L}:")
    a(f"v_mov_b32 {V(VW[0])}, {off}")
    a(f"global_load_dword {V(VW[0]+1)}, {V(VW[0])}, {S(sDBG,2)} sc1")
    a(f"s_sub_u32 {S(sSpin)}, {S(sSpin)}, 1")
    a(f"s_cbranch_scc1 {L}_to")
    a("s_waitcnt vmcnt(0)")
    a(f"v_readfirstlane_b32 s71, {V(VW[0]+1)}")
    cond(71)
    a(f"s_cbranch_scc1 {L}_ok")
    a(f"s_sleep {sleep}")
    a(f"s_branch {L}")
    a(f"{L}_to:")
    a(f"s_mov_b32 {S(sSpin)}, 0")
    a("s_waitcnt vmcnt(0)")
    a(f"{L}_ok:")
    a("s_barrier")

def wait_flags(a, soff, nlanes, width, sW, sleep=16, sSpin=70):
    L = a.newlabel("WF")
    t = VW[0] - 4
    a(f"s_cmp_eq_u32 {S(sW)}, 0")
    a(f"s_cbranch_scc0 {L}_ok")
    a(f"v_min_u32 {V(t+4)}, {nlanes-1}, v0")
    a(f"v_lshlrev_b32 {V(t+4)}, {2 if width == 1 else 4}, {V(t+4)}")
    a(f"{L}:")
    if width == 1: a(f"buffer_load_dword {V(t)}, {V(t+4)}, {S(sWS,4)}, {soff} offen sc1")
    else: a(f"buffer_load_dwordx4 {V(t,4)}, {V(t+4)}, {S(sWS,4)}, {soff} offen sc1")
    a(f"s_sub_u32 {S(sSpin)}, {S(sSpin)}, 1")
    a(f"s_cbranch_scc1 {L}_to")
    a("s_waitcnt vmcnt(0)")
    if width == 4:
        a(f"v_min3_u32 {V(t)}, {V(t)}, {V(t+1)}, {V(t+2)}")
        a(f"v_min_u32 {V(t)}, {V(t)}, {V(t+3)}")
    a(f"v_cmp_eq_u32 vcc, 0, {V(t)}")
    a(f"s_cbranch_vccz {L}_ok")
    a(f"s_sleep {sleep}")
    a(f"s_branch {L}")
    a(f"{L}_to:")
    a(f"s_mov_b32 {S(sSpin)}, 0")
    a("s_waitcnt vmcnt(0)")
    a(f"{L}_ok:")
    a("s_barrier")

def signal_set(a, soff, sW):
    L = a.newlabel("SG")
    a("s_waitcnt vmcnt(0) lgkmcnt(0)")
    a("s_barrier")
    a(f"s_cmp_eq_u32 {S(sW)}, 0")
    a(f"s_cbranch_scc0 {L}")
    a(f"v_mov_b32 {V(VW[0])}, 1")
    a("s_mov_b64 exec, 1")
    a(f"buffer_store_dword {V(VW[0])}, off, {S(sWS,4)}, {soff} sc1")
    a("s_mov_b64 exec, -1")
    a(f"{L}:")

def t5p_role(a, sH, sS, sW, sSpin=70):
    L = a.newlabel("T5")
    XROW = 1040
    L_KM, L_VM = 16384, 20480
    vL, vG, vO, vNeg, vMw, vMr, vEw, vL8 = 1, 3, 4, 5, 6, 7, 12, 2
    B0, B1 = 8, 10
    Q, K, VV_, KM, VM, G = 16, 32, 64, 80, 96, 100
    Sm, S0, S1, PF, T, O = 104, 108, 112, 116, 120, 124
    MB, MP, FR, ACC, PKD = 144, 152, 160, 192, 224
    t5_setup(a)
    a("v_and_b32 v13, 15, v0\nv_lshrrev_b32 v14, 4, v0")
    a("v_lshrrev_b32 v15, 2, v13\nv_lshlrev_b32 v15, 1, v15\nv_and_b32 v6, 1, v13\nv_add_u32 v15, v15, v6")
    a(f"v_mul_u32_u24 v15, {XROW}, v15")
    a(f"v_bfe_u32 {V(vMw)}, v13, 1, 1\nv_lshlrev_b32 {V(vMw)}, 6, {V(vMw)}\nv_lshl_add_u32 {V(vMw)}, v14, 3, {V(vMw)}\nv_add_u32 {V(vMw)}, {V(vMw)}, v15")
    a(f"s_lshl_b32 s16, {S(sW)}, 8\nv_add_u32 {V(vMw)}, s16, {V(vMw)}")
    a(f"v_lshrrev_b32 {V(vMr)}, 5, v0\nv_lshl_add_u32 {V(vMr)}, {V(vMr)}, 4, v15")
    a("s_mov_b32 s20, 0x05040100\ns_mov_b32 s21, 0x07060302")
    a(f"s_and_b32 s23, {S(sW)}, 1")
    a(f"s_cmp_ge_u32 {S(sW)}, 2")
    a(f"s_cbranch_scc1 {L}_v")
    for qt in range(2):
        if qt == 1: a(f"{L}_v:")
        P = f"{L}_{qt}"
        a("v_lshrrev_b32 v15, 5, v0")
        if qt == 0:
            a(f"v_lshlrev_b32 {V(vEw)}, 8, v15\nv_lshl_add_u32 {V(vEw)}, v13, 4, {V(vEw)}")
            a(f"s_lshl_b32 s16, s23, 11\ns_add_u32 s16, s16, {L_KM}")
        else:
            a(f"v_lshlrev_b32 {V(vEw)}, 7, v15\nv_lshl_add_u32 {V(vEw)}, v13, 3, {V(vEw)}")
            a(f"v_bfe_u32 v15, v0, 4, 1\nv_lshl_add_u32 {V(vEw)}, v15, 2, {V(vEw)}")
            a(f"s_lshl_b32 s16, s23, 10\ns_add_u32 s16, s16, {L_VM}")
        a(f"v_add_u32 {V(vEw)}, s16, {V(vEw)}")
        a(f"s_lshl_b32 s16, s23, 10\nv_add_u32 {V(vL8)}, s16, {V(vL8)}")
        a(f"{P}_loop:")
        a(f"s_lshl_b32 s16, {S(sS)}, 5\ns_add_u32 s16, s16, {S(sH)}\ns_lshl_b32 s17, s16, 13")
        a(f"s_add_u32 s18, s17, {QXB + qt*4096}")
        for i in range(4): a(f"buffer_load_dwordx4 {V(Q+4*i,4)}, {V(vL)}, {S(sWS,4)}, s18 offen offset:{i*1024} sc1")
        for tj in range(qt + 1):
            a(f"s_add_u32 s18, s17, {KXB + tj*4096}")
            for i in range(4): a(f"buffer_load_dwordx4 {V(K+16*tj+4*i,4)}, {V(vL)}, {S(sWS,4)}, s18 offen offset:{i*1024} sc1")
        a(f"s_lshl_b32 s18, s23, 12\ns_add_u32 s18, s18, s17\ns_add_u32 s18, s18, {VXB}")
        for i in range(4): a(f"buffer_load_dwordx4 {V(VV_+4*i,4)}, {V(vL)}, {S(sWS,4)}, s18 offen offset:{i*1024} sc1")
        a(f"s_lshl_b32 s18, {S(sS)}, 8\ns_add_u32 s18, s18, {GB}")
        a(f"buffer_load_dword {V(G)}, {V(vG)}, {S(sWS,4)}, s18 offen offset:{128*qt} sc1")
        a(f"s_lshl_b32 s18, {S(sS)}, 13\ns_lshl_b32 s19, {S(sW)}, 11\ns_add_u32 s18, s18, s19\ns_add_u32 s18, s18, {MGB}")
        if qt == 0:
            a(f"s_cmp_lg_u32 {S(sW)}, 0\ns_cbranch_scc1 {P}_pp\ns_cmp_ge_u32 {S(sS)}, {T5FAST[0]}\ns_cbranch_scc1 {P}_pp")
            a(f"{P}_pq:")
            a(f"buffer_load_dword {V(T)}, off, {S(sWS,4)}, s18 offset:1024 sc1")
            a(f"s_sub_u32 {S(sSpin)}, {S(sSpin)}, 1\ns_cbranch_scc1 {P}_pt\ns_waitcnt vmcnt(0)")
            a(f"v_cmp_eq_u32 vcc, -1, {V(T)}\ns_cbranch_vccz {P}_pp\ns_sleep {T5FAST[1]}\ns_branch {P}_pq")
            a(f"{P}_pt:\ns_mov_b32 {S(sSpin)}, 0")
            a(f"{P}_pp:")
        a("s_barrier")
        a(f"{P}_poll:")
        for i in range(2): a(f"buffer_load_dwordx4 {V(MB+4*i,4)}, {V(vL)}, {S(sWS,4)}, s18 offen offset:{i*1024} sc1")
        a(f"s_sub_u32 {S(sSpin)}, {S(sSpin)}, 1\ns_cbranch_scc1 {P}_to\ns_waitcnt vmcnt(0)")
        a(f"v_max3_u32 {V(T)}, {V(MB)}, {V(MB+1)}, {V(MB+2)}\nv_max3_u32 {V(T+1)}, {V(MB+3)}, {V(MB+4)}, {V(MB+5)}")
        a(f"v_max3_u32 {V(T)}, {V(T)}, {V(MB+6)}, {V(MB+7)}\nv_max_u32 {V(T)}, {V(T)}, {V(T+1)}\nv_cmp_eq_u32 vcc, -1, {V(T)}")
        a(f"s_cbranch_vccz {P}_ok\ns_sleep 4\ns_branch {P}_poll")
        a(f"{P}_to:\ns_mov_b32 {S(sSpin)}, 0\ns_waitcnt vmcnt(0)")
        a(f"{P}_ok:")
        for b in range(2):
            r = MB + 4 * b; d = MP + 4 * b
            a(f"v_perm_b32 {V(d)}, {V(r+1)}, {V(r)}, s20\nv_perm_b32 {V(d+1)}, {V(r+3)}, {V(r+2)}, s20")
            a(f"v_perm_b32 {V(d+2)}, {V(r+1)}, {V(r)}, s21\nv_perm_b32 {V(d+3)}, {V(r+3)}, {V(r+2)}, s21")
        for b in range(2):
            a(f"ds_write2_b64 {V(vMw)}, {V(MP+4*b,2)}, {V(MP+4*b+2,2)} offset0:{16*b} offset1:{16*b+4}")
        a("s_waitcnt lgkmcnt(0)\ns_barrier")
        def rdf(kk): return f"ds_read_b128 {V(FR + 4*(kk % 8), 4)}, {V(vMr)} offset:{32*kk}"
        for kk in range(6): a(rdf(kk))
        for kk in range(32):
            a(f"s_waitcnt lgkmcnt({min(5, 31-kk)})")
            for Tt in range(2):
                wreg = A((Tt*32+kk)*4, 4); x = V(FR + 4*(kk % 8), 4); d = V(ACC + 16*Tt, 16)
                c = "0" if kk == 0 else d
                a(f"v_mfma_f32_32x32x16_bf16 {d}, {wreg}, {x}, {c}" if qt == 0 else f"v_mfma_f32_32x32x16_bf16 {d}, {x}, {wreg}, {c}")
            if kk + 6 < 32: a(rdf(kk + 6))
        for Tt in range(2):
            b = ACC + 16 * Tt
            for q in range(2):
                if qt == 0:
                    d = PKD + 8 * Tt + 4 * q
                    for x in range(4): a(f"v_cvt_pk_bf16_f32 {V(d+x)}, {V(b+4*q+x)}, {V(b+4*(q+2)+x)}")
                    a(f"ds_write_b128 {V(vEw)}, {V(d,4)} offset:{Tt*1024 + q*512}")
                else:
                    d = PKD + 2 * Tt + q
                    a(f"v_cvt_pk_bf16_f32 {V(d)}, {V(b+4*q)}, {V(b+4*q+1)}")
                    a(f"ds_write_b32 {V(vEw)}, {V(d)} offset:{Tt*512 + q*256}")
        a("s_waitcnt lgkmcnt(0)\ns_barrier")
        for i in range(4): a(f"ds_read_b128 {V(KM+4*i,4)}, {V(vL)} offset:{L_KM + i*1024}")
        for i in range(2): a(f"ds_read_b64 {V(VM+2*i,2)}, {V(vL8)} offset:{L_VM + i*512}")
        def mf(d, x, y, first): return f"v_mfma_f32_16x16x32_bf16 {V(d,4)}, {V(x,4)}, {V(y,4)}, {'0' if first else V(d,4)}"
        for kk in range(4):
            a(mf(S0, K + 4*kk, Q + 4*kk, kk == 0))
            if qt == 1: a(mf(S1, K + 16 + 4*kk, Q + 4*kk, kk == 0))
        a(f"s_mul_i32 s18, {S(sS)}, 288\ns_lshl_b32 s19, {S(sH)}, 3\ns_add_u32 s18, s18, s19\ns_lshl_b32 s18, s18, 10")
        a(f"s_lshl_b32 s19, s23, 12\ns_add_u32 s18, s18, s19\ns_add_u32 s18, s18, {OXB}")
        a("s_waitcnt lgkmcnt(0)")
        for kk in range(4): a(mf(Sm, KM + 4*kk, Q + 4*kk, kk == 0))
        dg = S0 if qt == 0 else S1
        for r in range(4): a(f"v_cndmask_b32 {V(dg+r)}, {V(vNeg)}, {V(dg+r)}, {S(T5_MASK+2*r,2)}")
        ev = [S0, S0+1, S0+2, S0+3] + ([S1, S1+1, S1+2, S1+3] if qt else []) + [Sm, Sm+1]
        a(f"v_max3_f32 {V(T)}, {V(S0)}, {V(S0+1)}, {V(S0+2)}")
        if qt:
            a(f"v_max3_f32 {V(T)}, {V(T)}, {V(S1)}, {V(S1+1)}\nv_max3_f32 {V(T)}, {V(T)}, {V(S1+2)}, {V(S1+3)}")
        a(f"v_max_f32 {V(T)}, {V(T)}, {V(S0+3)}")
        a(f"v_max3_f32 {V(T)}, {V(T)}, {V(Sm)}, {V(Sm+1)}")
        xlane_reduce16_32(a, "v_max_f32", T, T+1)
        a(f"v_mul_f32 {V(T)}, s22, {V(T)}")
        for r in ev: a(f"v_fma_f32 {V(r)}, {V(r)}, s22, -{V(T)}")
        for r in ev: a(f"v_exp_f32 {V(r)}, {V(r)}")
        a(f"v_cvt_pk_bf16_f32 {V(PF)}, {V(S0)}, {V(S0+1)}\nv_cvt_pk_bf16_f32 {V(PF+1)}, {V(S0+2)}, {V(S0+3)}")
        if qt: a(f"v_cvt_pk_bf16_f32 {V(PF+2)}, {V(S1)}, {V(S1+1)}\nv_cvt_pk_bf16_f32 {V(PF+3)}, {V(S1+2)}, {V(S1+3)}")
        else: a(f"v_mov_b64 {V(PF+2,2)}, 0")
        a(f"v_cvt_pk_bf16_f32 {V(B0)}, {V(Sm)}, {V(Sm+1)}\nv_cvt_pk_bf16_f32 {V(B1+1)}, {V(Sm)}, {V(Sm+1)}")
        for e in range(4): a(mf(O + 4*e, VV_ + 4*e, PF, True))
        for e in range(4):
            a(f"v_mfma_f32_16x16x16_bf16 {V(O+4*e,4)}, {V(VM+2*(e//2),2)}, {V(B0 if e%2==0 else B1,2)}, {V(O+4*e,4)}")
        a(f"v_add_f32 {V(T)}, {V(ev[0])}, {V(ev[1])}")
        for r in ev[2:]: a(f"v_add_f32 {V(T)}, {V(T)}, {V(r)}")
        xlane_reduce16_32(a, "v_add_f32", T, T+1)
        a(f"v_rcp_f32 {V(T)}, {V(T)}")
        a(f"v_mul_f32 {V(T)}, {V(T)}, {V(G)}")
        for u in range(2):
            o = O + 8 * u
            for i in range(8): a(f"v_mul_f32 {V(o+i)}, {V(o+i)}, {V(T)}")
            d = PKD + 16 + 4 * u
            for i in range(4): a(f"v_cvt_pk_bf16_f32 {V(d+i)}, {V(o+2*i)}, {V(o+2*i+1)}")
            a(f"buffer_store_dwordx4 {V(d,4)}, {V(vO)}, {S(sWS,4)}, s18 offen offset:{u*2048 + qt*256} sc1")
        a(f"s_lshl_b32 s18, s16, 2\ns_add_u32 s18, s18, {F_SEG}")
        signal_set(a, "s18", sW)
        a(f"s_add_u32 {S(sS)}, {S(sS)}, 4\ns_cmp_lt_u32 {S(sS)}, 64\ns_cbranch_scc1 {P}_loop")
        if qt == 0: a(f"s_branch {L}_end")
    a(f"{L}_end:")
```

```python
from asm import *
from layout import *
import proj, roles, rec
import sys, json
NAME = "gated_mix__memory_aug_recurrent_mem_tr__softmax_full_mha__prompt"
PROF = int(sys.argv[2]) if len(sys.argv) > 2 else 0
CFG = json.loads(sys.argv[3]) if len(sys.argv) > 3 else {}
hdr = open(f"cdna_kernels/{NAME}.s.ref").read().split("; Override launch")[0]
KN = NAME + "_kernel"
a = Asm()
a.raw(hdr.rstrip())
if CFG.get('list'): a.raw(f"; @launch kernel={KN} grid=(256,1,1) block=(256,1,1) lds=163840")
else: a.raw("; @launch grid=(256,1,1) block=(256,1,1) lds=163840")
a.raw('.amdgcn_target "amdgcn-amd-amdhsa--gfx950"\n.text')
a.raw(f".globl {KN}\n.p2align 8\n.type {KN},@function")
a(f"{KN}:")
a("s_cmp_ge_u32 s2, 256")
a("s_cbranch_scc1 L_end")
a("s_load_dwordx4 s[64:67], s[0:1], 96")
a("s_load_dwordx8 s[16:23], s[0:1], 16")
a("s_load_dwordx2 s[24:25], s[0:1], 0")
a("s_load_dwordx2 s[26:27], s[0:1], 64")
if PROF: a("s_memrealtime s[80:81]")
a("v_lshrrev_b32 v1, 6, v0")
a("v_readfirstlane_b32 s62, v1")
a("v_and_b32 v0, 63, v0")
a("s_getreg_b32 s63, hwreg(HW_REG_XCC_ID)")
a("s_and_b32 s63, s63, 7")
a("s_waitcnt lgkmcnt(0)")
a(f"s_mov_b32 s4, s66\ns_mov_b32 s5, s67\ns_mov_b32 s6, {WS_BYTES}\ns_mov_b32 s7, 0x20000")
def claim():
    a("s_lshl_b32 s61, s60, 2")
    a("s_cmp_eq_u32 s60, 0")
    a("s_cselect_b32 s61, 128, s61")
    a("v_mov_b32 v1, s61")
    a("global_atomic_add v3, v1, v2, s[64:65] sc0")
a("s_cmp_eq_u32 s62, 0")
a("s_cbranch_scc1 L_w0")
a("s_barrier")
if CFG.get('gpf', 1):
    a("s_cmp_eq_u32 s63, 0")
    a("s_cbranch_scc1 L_tk")
    a("s_lshr_b32 s56, s2, 3\ns_mul_i32 s56, s56, 7\ns_add_u32 s56, s56, s63\ns_mul_i32 s56, s56, 3\ns_add_u32 s56, s56, s62\ns_sub_u32 s56, s56, 4")
    a("s_mul_i32 s57, s56, 49\nv_min_u32 v1, 48, v0\nv_add_u32 v1, s57, v1\nv_lshlrev_b32 v1, 7, v1")
    a("s_mul_i32 s57, s56, 25\nv_min_u32 v2, 24, v0\nv_add_u32 v2, s57, v2\nv_lshlrev_b32 v2, 7, v2")
    for n, (r, sz, v) in enumerate([[(18, 4 << 20, 1), (20, 4 << 20, 1), (16, 4 << 20, 1), (24, 2 << 20, 2), (22, 4 << 20, 1), (26, 512 * 3072, 2)][i] for i in CFG.get('gl', [4])]):
        b = 32 + 4 * n
        a(f"s_mov_b32 s{b}, s{r}\ns_mov_b32 s{b+1}, s{r+1}\ns_mov_b32 s{b+2}, {sz}\ns_mov_b32 s{b+3}, 0x20000")
        a(f"buffer_load_dword v{240+n}, v{v}, s[{b}:{b+3}], 0 offen")
a("s_branch L_tk")
a("L_w0:")
a("s_mov_b32 s60, s63")
a("s_mov_b64 exec, 1")
a("v_mov_b32 v2, 1")
claim()
a("s_barrier")
a("s_branch L_try1")
a("L_try:")
a("v_mov_b32 v2, 0x10001")
claim()
a("L_try1:")
a("s_waitcnt vmcnt(0)")
a("v_readfirstlane_b32 s61, v3")
a("s_and_b32 s61, s61, 0xffff")
a("s_cmp_lt_u32 s61, 32")
a("s_cbranch_scc1 L_got")
a("s_add_u32 s60, s60, 1")
a("s_and_b32 s60, s60, 7")
a("s_cmp_lg_u32 s60, s63")
a("s_cbranch_scc1 L_try")
a("s_mov_b32 s60, 8")
a("L_got:")
a("s_lshl_b32 s60, s60, 5")
a("s_add_u32 s60, s60, s61")
a("v_mov_b32 v3, s60")
a("v_mov_b32 v1, 0")
a("ds_write_b32 v1, v3")
a("s_mov_b64 exec, -1")
a("s_waitcnt lgkmcnt(0)")
a("L_tk:")
a("s_barrier")
a("v_mov_b32 v1, 0")
a("ds_read_b32 v3, v1")
a("s_waitcnt lgkmcnt(0)")
a("v_readfirstlane_b32 s60, v3")
a("s_barrier")
a("s_cmp_lt_u32 s60, 32")
a("s_cbranch_scc1 L_rec")
a("s_cmp_ge_u32 s60, 256")
a("s_cbranch_scc1 L_end")
a("s_sub_u32 s60, s60, 32")
a(f"s_mov_b32 s70, {CFG.get('wspin', 1 << 20)}")
def wstamp(i):
    if PROF: a(f"s_memrealtime s[{82+2*i}:{83+2*i}]")
def rec_seen(): roles.wait_word(a, 4*D_CLR, lambda r: a(f"s_cmp_ge_u32 s{r}, 8"), 62)
a("s_cmp_ge_u32 s60, 216")
a("s_cbranch_scc0 L_proj")
a("s_sub_u32 s59, s60, 216")
a("s_lshl_b32 s56, s59, 2\ns_add_u32 s56, s56, s62")
a(f"s_mul_i32 s57, s56, {40*1024}\ns_add_u32 s57, s57, {CLRB}")
a(f"s_lshl_b32 s56, s56, 9\ns_add_u32 s56, s56, {FLB}")
a("v_lshlrev_b32 v1, 4, v0\nv_lshlrev_b32 v2, 3, v0\nv_mov_b64 v[4:5], -1\nv_mov_b64 v[6:7], -1\nv_mov_b64 v[8:9], 0")
a("buffer_store_dwordx2 v[8:9], v2, s[4:7], s56 offen sc1")
for i in range(40):
    a(f"buffer_store_dwordx4 v[4:7], v1, s[4:7], s57 offen offset:{(i%4)*1024} sc1")
    if i % 4 == 3: a("s_add_u32 s57, s57, 4096")
a("s_waitcnt vmcnt(0)\ns_barrier\ns_cmp_eq_u32 s62, 0\ns_cbranch_scc0 L_clrd")
a(f"v_mov_b32 v1, {4*D_CLR}\nv_mov_b32 v2, 1\ns_mov_b64 exec, 1\nglobal_atomic_add v1, v2, s[64:65]\ns_mov_b64 exec, -1")
a("L_clrd:")
roles.gate_role(a, 0, 59, 62, 'sc1')
rec_seen()
a("s_branch L_p1done")
a("L_proj:")
a(f"s_lshr_b32 {S(proj.sCB)}, s60, 2\ns_and_b32 {S(proj.sR)}, s60, 3\ns_mov_b32 {S(proj.sW)}, s62")
a("s_cmp_lt_u32 s60, 128\ns_cselect_b32 s58, 1, 0\ns_cmp_eq_u32 s62, 0\ns_cselect_b32 s58, s58, 0")
a(f"s_lshl_b32 s57, {S(proj.sCB)}, 7\ns_lshl_b32 s56, {S(proj.sR)}, 2\ns_add_u32 s57, s57, s56\ns_add_u32 s57, s57, {F_KV}")
def publish(a, cnt_ops):
    L = a.newlabel("PB")
    a("s_cmp_eq_u32 s58, 0")
    a(f"s_cbranch_scc1 {L}")
    for x in cnt_ops: a(x)
    a("v_mov_b32 v123, s56\ns_mov_b64 exec, 1")
    a("buffer_store_dword v123, off, s[4:7], s57 sc1")
    a("s_mov_b64 exec, -1")
    a(f"{L}:")
def hook(a, par, typ):
    if typ == 0:
        publish(a, [f"s_add_u32 s56, {S(proj.sI)}, {par}", "s_max_u32 s56, s56, 1", "s_sub_u32 s56, s56, 1"])
def pre():
    if PROF: a("s_memrealtime s[92:93]")
    rec_seen()
    if PROF: a("s_memrealtime s[90:91]\ns_memtime s[94:95]")
proj.proj_role(a, 0, CFG.get('pst', 'sc1'), hook, pre)
if PROF: a("s_memtime s[96:97]\ns_waitcnt lgkmcnt(0)\ns_sub_u32 s94, s96, s94")
a("s_barrier")
publish(a, ["s_mov_b32 s56, 16"])
a("L_p1done:")
wstamp(0)
a(f"s_lshl_b32 s56, s60, 2\ns_add_u32 s56, s56, {F_DONE}")
roles.signal_set(a, "s56", 62)
a("s_cmp_ge_u32 s60, 192")
a("s_cbranch_scc1 L_p2done")
a(f"s_mov_b32 s56, {F_DONE + 192*4}")
roles.wait_flags(a, "s56", 32, 1, 62)
wstamp(1)
a("s_mul_i32 s61, s60, 43691\ns_lshr_b32 s61, s61, 18")
a("s_mul_i32 s59, s61, 6\ns_sub_u32 s59, s60, s59")
roles.battn_role(a, 61, 59, 62, 'sc1', 'sc1')
a(f"s_lshl_b32 s56, s60, 2\ns_add_u32 s56, s56, {F_OB}")
roles.signal_set(a, "s56", 62)
a("L_p2done:")
wstamp(2)
a("s_cmp_ge_u32 s60, 128")
a("s_cbranch_scc1 L_t6")
a("s_lshr_b32 s61, s60, 2\ns_and_b32 s59, s60, 3")
a(f"s_lshr_b32 s56, s61, 1\ns_lshl_b32 s56, s56, 2\ns_add_u32 s56, s56, s59\ns_lshl_b32 s56, s56, 2\ns_add_u32 s56, s56, {F_DONE + 128*4}")
roles.wait_flags(a, "s56", 1, 1, 62)
roles.T5FAST[:] = CFG.get('t5f', [63, 32])
roles.t5p_role(a, 61, 59, 62)
a("s_branch L_wend")
a("L_t6:")
a("s_sub_u32 s59, s60, 128\ns_and_b32 s61, s59, 15\ns_lshr_b32 s59, s59, 4")
roles.t6_setup(a, 0, 61, 62)
roles.VW[0] = 30
a(f"s_mov_b32 s56, {F_OB}")
roles.wait_flags(a, "s56", 48, 4, 62, 32)
a("L_t6loop:")
a(f"s_lshl_b32 s56, s59, 7\ns_add_u32 s56, s56, {F_SEG}")
roles.wait_flags(a, "s56", 32, 1, 62, 4)
roles.t6_unit(a, 59, 'sc1')
a("s_add_u32 s59, s59, 6\ns_cmp_lt_u32 s59, 64\ns_cbranch_scc1 L_t6loop")
a("L_wend:")
if PROF:
    wstamp(3)
    a("s_waitcnt lgkmcnt(0)")
    a(f"s_lshl_b32 s20, s60, 5\ns_add_u32 s20, s20, {PROFB + 65536}")
    a("v_mov_b32 v1, 0")
    for i in range(8):
        a(f"v_mov_b32 v2, s{80+2*i}")
        a(f"buffer_store_dword v2, v1, s[4:7], s20 offen offset:{4*i}")
a("s_branch L_end")
a("L_rec:")
a(f"s_mov_b32 {S(rec.sH)}, s60")
rec.rec_role(a, 0, 64, 62, 63, "L_end", PROF, CFG)
a("L_end:")
a("s_endpgm")
a.raw('.section .rodata,"a"')
a.raw(kernel_desc(KN))
out = sys.argv[1] if len(sys.argv) > 1 else f"cdna_kernels/{NAME}.s"
open(out, "w").write(a.finalize(True))
if PROF > 1: json.dump(rec.STNAMES, open("stnames.json", "w"))
```

```python
from asm import *
import math

from layout import *

L_M, L_KX, L_Q, L_O, L_W = 0, 8192, 16384, 22016, 24576
QA, QB, QC = 336, 72, 160
WREG = 17 * 2048

vL16, vIdx, vWl, vQKw, vQKr, vP1st, vM2st, vWarm = range(8)
vSel = 8
vB0, vBias = 12, 14
accQ, accK, accV = 16, 24, 32
vVx = 40
RING = [56, 60, 48, 52]
X = 64
RES = 136
sSRD = 4
sH, sS, sM2r, sKX, sVX, sWarm, sP1st, sP1st2, sP1ld, sM2w, sMG, sSpin, sTmp = range(8, 21)
sReady, sFlag = 96, 98
vPub = 15
sC = 56
sOne = 58
sTag, sTag2, sClr = 21, 60, 61
sPm = 22
DBG_M = False
sT = 24
SPIN_MAX = 1 << 20
NST = 16

NQL = 9
def korder(w):
    ev = [(2 * w + 2 * i) % 8 for i in range(4)]
    return ev + [k + 1 for k in ev]
def qidx(w, ks, t): return korder(w).index(ks) * 2 + t
def qblk(w, ks, t):
    i = qidx(w, ks, t)
    return V(X + 8 * i, 8) if i < NQL else V(RES + 8 * (i - NQL), 8)
def kblk(ks, t): return A(8 * (ks * 2 + t), 8)
def vblk(ks, t): return A(128 + 8 * (ks * 2 + t), 8)
def oblk(T, ko):
    i = T * 2 + ko
    return V(RES + 56 + 8 * i, 8) if i < 8 else V(X + 8 * (i - 8), 8)

def smf_s(acc, areg, b):
    return f"v_smfmac_f32_16x16x64_bf16 {V(acc,4)}, {V(areg,4)}, {b}, {V(vIdx)}"

STN = [0]
STNAMES = []
STSEL = [None]
MC = [None]
PSTART = [0]
def stamp(a, n, prof):
    if prof and (STSEL[0] is None or n in STSEL[0]):
        k = STN[0]; STN[0] += 1
        if len(STNAMES) <= k: STNAMES.append(str(n))
        assert k < NST
        a(f"s_memtime {S(sT + 2*k, 2)}")

def chk_ops(r, n, tmp):
    if n == 8:
        o = [f"v_max3_u32 {V(tmp)}, {V(r)}, {V(r+1)}, {V(r+2)}",
             f"v_max3_u32 {V(tmp+1)}, {V(r+3)}, {V(r+4)}, {V(r+5)}",
             f"v_max3_u32 {V(tmp)}, {V(tmp)}, {V(r+6)}, {V(r+7)}",
             f"v_max_u32 {V(tmp)}, {V(tmp)}, {V(tmp+1)}"]
    else:
        o = [f"v_max3_u32 {V(tmp)}, {V(r)}, {V(r+1)}, {V(r+2)}",
             f"v_max_u32 {V(tmp)}, {V(tmp)}, {V(r+3)}"]
    return o + [f"v_cmp_eq_u32 vcc, -1, {V(tmp)}"]

def poll_ops(r, n, soff, off=0):
    return [f"buffer_load_dwordx4 {V(r+4*i,4)}, {V(vL16)}, {S(sSRD,4)}, {S(soff)} offen offset:{off + 1024*i} sc1" for i in range(n // 4)]

def poll_retry(tail, name, r, n, soff, off, tmp, redo=()):
    tail.append(f"{name}:")
    tail += poll_ops(r, n, soff, off)
    tail.append(f"s_sub_u32 {S(sSpin)}, {S(sSpin)}, 1")
    tail.append(f"s_cbranch_scc1 {name}_to")
    tail.append("s_waitcnt vmcnt(0)")
    tail += list(redo)
    tail += chk_ops(r, n, tmp)
    tail.append(f"s_cbranch_vccnz {name}")
    tail.append(f"s_branch {name}_ok")
    tail.append(f"{name}_to:")
    tail.append(f"s_mov_b32 {S(sSpin)}, 0")
    tail.append("s_waitcnt vmcnt(0)")
    tail += list(redo)
    tail.append(f"s_branch {name}_ok")

def ready_calc(r):
    u = 100
    o = []
    for i in range(4):
        o += [f"v_readfirstlane_b32 {S(u)}, {V(r+i)}", f"s_lshl_b32 {S(u)}, {S(u)}, 2", f"s_add_u32 {S(u)}, {S(u)}, {i}"]
        o += [f"s_mov_b32 {S(sReady)}, {S(u)}"] if i == 0 else [f"s_min_u32 {S(sReady)}, {S(sReady)}, {S(u)}"]
    return o + [f"s_cmp_ge_u32 {S(sReady)}, 64", f"s_cselect_b32 {S(sReady)}, 128, {S(sReady)}"]

def ready_wait(name, ok, r):
    o = [f"buffer_load_dwordx4 {V(r,4)}, off, {S(sSRD,4)}, {S(sFlag)} sc1",
         f"s_sub_u32 {S(sSpin)}, {S(sSpin)}, 1", f"s_cbranch_scc1 {name}_to",
         "s_waitcnt vmcnt(0)"] + ready_calc(r)
    o += [f"s_cmp_lt_u32 {S(sTmp)}, {S(sReady)}", f"s_cbranch_scc1 {ok}", "s_sleep 8", f"s_branch {name}",
          f"{name}_to:", f"s_mov_b32 {S(sSpin)}, 0", f"s_mov_b32 {S(sReady)}, 128", "s_waitcnt vmcnt(0)", f"s_branch {ok}"]
    return o

def weave(a, main, fill, per=1, start=0):
    fill = list(fill)
    for i, m in enumerate(main):
        a(m)
        if i >= start:
            for _ in range(per):
                if fill: a(fill.pop(0))
    for f in fill: a(f)

def rec_loop(a, w, st, prof=False, sto='', cfg={}):
    P = f"R{w}{'s' if st else 'f'}"
    STN[0] = 0
    STSEL[0] = cfg.get('stamps')
    if cfg.get('free'):
        a0 = a
        def a(t):
            if t.startswith('s_cbranch_vcc'): return
            import re
            if any(re.search(p, t) for p in cfg.get('drop', [])): return
            if t.startswith('s_waitcnt vmcnt'):
                t = 's_waitcnt lgkmcnt(0)' if 'lgkm' in t else 's_waitcnt vmcnt(40)'
            a0(t)
            if t.endswith('_top:'): MC[0] = 0
            if (t.startswith('v_smf') or t.startswith('v_mfma')) and MC[0] is not None:
                MC[0] += 1
                if MC[0] in cfg.get('mst', []):
                    STSEL[0] = None; stamp(a0, f"m{MC[0]}", prof); STSEL[0] = cfg.get('stamps')
            if t.startswith('s_branch') and t.endswith('_top'): MC[0] = None
    tail = []
    sto = cfg.get('sto', sto); ldk = cfg.get('ldk', 'nt'); ldw = cfg.get('ldw', '')
    Ee, e1, e2, e3, Oo, o1, o2, o3 = korder(w)
    s0, s1, s2, s3 = RING
    def rdm(slot, ks): return f"ds_read_b128 {V(slot,4)}, {V(vL16)} offset:{L_M + ks*1024}"
    def wrm(slot, ks): return f"ds_write_b128 {V(vL16)}, {V(slot,4)} offset:{L_M + ks*1024}"
    def QQ(ks, slot): return [smf_s(accQ, slot, qblk(w, ks, 0)), smf_s(accQ + 4, slot, qblk(w, ks, 1))]
    def KK(ks, slot): return [smf_s(accK, slot, kblk(ks, 0)), smf_s(accK + 4, slot, kblk(ks, 1))]
    def VV(ks, slot): return [smf_s(accV, slot, vblk(ks, 0)), smf_s(accV + 4, slot, vblk(ks, 1))]
    stQ = [f"ds_read_b128 {V(X + 8*i + 4*hf, 4)}, {V(vWl)} offset:{i*2048 + hf*1024}" for i in range(NQL) for hf in range(2)]
    stO = [f"ds_read_b128 {V(X + 8*i + 4*hf, 4)}, {V(vWl)} offset:{(NQL + i)*2048 + hf*1024}" for i in range(8) for hf in range(2)]
    def zero(r, n): return [f"v_mov_b64 {V(r+i,2)}, 0" for i in range(0, n, 2)]
    kxl = [f"buffer_load_dwordx4 {V(vL16)}, {S(sSRD,4)}, {S(sKX)} offen offset:{1024*i} {ldk} lds" for i in range(2)]
    vxl = [f"buffer_load_dwordx4 {V(vVx+4*i,4)}, {V(vL16)}, {S(sSRD,4)}, {S(sVX)} offen offset:{1024*i} {ldk}" for i in range(2)]
    qf, kxf, kmf = X, X + 16, X + 48
    kvm = X + 64
    tmp = X + 68
    sx1, sx2, sm, pf = accQ, accQ + 4, accK, accK + 4
    oacc, of = 48, 56
    ones, lacc = 56, 60
    def padd(r): return [f"v_add_f32 {V(r)}, {V(r)}, {V(r+2)}", f"v_add_f32 {V(r+1)}, {V(r+1)}, {V(r+3)}"]
    def cvt(d, x, y): return f"v_cvt_pk_bf16_f32 {V(d)}, {V(x)}, {V(y)}"
    def lg(n): return f"s_waitcnt lgkmcnt({n})"
    def vm(n): return f"s_waitcnt vmcnt({n})"
    def seq(*xs):
        for x in xs:
            if isinstance(x, (list, tuple)):
                for y in x: a(y)
            else: a(x)
    spin = lambda to: [f"s_sub_u32 {S(sSpin)}, {S(sSpin)}, 1", f"s_cbranch_scc1 {to}"]
    peA, peB, po = poll_ops(s0, 4, sM2r), poll_ops(s3, 4, sM2r), poll_ops(s1, 4, sM2r, 1024)

    a(f"s_mov_b32 {S(sTmp)}, 1")
    a(f"s_cmp_lt_u32 {S(sTmp)}, {S(sReady)}")
    a(f"s_cbranch_scc1 {P}_r0_ok")
    a(f"{P}_r0:")
    seq(ready_wait(f"{P}_r0", f"{P}_r0_ok", X))
    a(f"{P}_r0_ok:")
    a(f"s_mov_b32 m0, {L_KX + w*2048}")
    seq(kxl, stQ, zero(accQ, 24))
    a(f"s_add_u32 {S(sKX)}, {S(sKX)}, {32*8192}")
    peC = poll_ops(s1, 4, sM2r)
    seq(peA, peB, peC, vm(2))
    a(f"{P}_top:")
    a(f"s_waitcnt vmcnt({2 if w < 2 else 3}) lgkmcnt(0)")
    stamp(a, 'peA', prof)
    ck = chk_ops(s0, 4, vWarm)
    seq(wrm(s0, Ee), ck)
    a(f"s_cbranch_vccnz {P}_pe")
    a(f"{P}_pe_go:")
    stamp(a, 'peok', prof)
    x = QQ(Ee, s0) + KK(Ee, s0)
    seq(x[0], po, x[1], x[2], x[3])
    cb, cc = chk_ops(s3, 4, vWarm), chk_ops(s1, 4, vWarm)
    def mv(r): return [f"v_mov_b64 {V(s0,2)}, {V(r,2)}", f"v_mov_b64 {V(s0+2,2)}, {V(r+2,2)}"]
    slp = ["s_nop 7"] * cfg.get('slp', 1)
    tail += [f"{P}_pe:"] + peA + [vm(2), wrm(s3, Ee)] + cb + [f"s_cbranch_vccz {P}_peb"]
    tail += slp + peB + [vm(2), wrm(s1, Ee)] + cc + [f"s_cbranch_vccz {P}_pec"]
    tail += spin(f"{P}_pe_to") + slp + peC + [vm(2), wrm(s0, Ee)] + ck + [f"s_cbranch_vccz {P}_pe_go"] + slp + [f"s_branch {P}_pe"]
    tail += [f"{P}_peb:"] + mv(s3) + [f"s_branch {P}_pe_go"]
    tail += [f"{P}_pec:"] + mv(s1) + [f"s_branch {P}_pe_go"]
    tail += [f"{P}_pe_to:", f"s_mov_b32 {S(sSpin)}, 0", f"s_branch {P}_pe_go"]
    seq(lg(0), "s_barrier")
    stamp(a, 'B1a', prof)
    kxr = [f"ds_read_b128 {V(kxf+16*tj+4*kk,4)}, {V(vL16)} offset:{L_KX + (tj*4+kk)*1024}" for tj in range(2) for kk in range(4)]
    x = VV(Ee, s0)
    seq(rdm(s2, e1), x[0], x[1], vm(1), rdm(s0, e2), rdm(s3, e3), lg(2))
    x = QQ(e1, s2) + KK(e1, s2)
    seq(x[0], x[1], kxr[0], x[2], kxr[1], x[3], lg(3), f"v_mov_b32 {V(vB0)}, -1")
    x = QQ(e2, s0) + KK(e2, s0)
    seq(x[0], kxr[2], x[1], x[2], x[3], vm(0))
    stamp(a, 'pook', prof)
    ck = chk_ops(s1, 4, vWarm)
    x = QQ(e3, s3) + KK(e3, s3) + VV(e3, s3)
    nv3 = cfg.get('nv3', 2)
    seq(wrm(s1, Oo), lg(4), x[0], vxl[0], ck[0], x[1], vxl[1], ck[1], x[2],
        f"buffer_store_dword {V(vB0)}, {V(vM2st)}, {S(sSRD,4)}, {S(sClr)} offen {st}", ck[2], x[3])
    a(f"s_cbranch_vccnz {P}_po")
    a(f"{P}_po_ok:")
    poll_retry(tail, f"{P}_po", s1, 4, sM2r, 1024, vWarm, redo=[wrm(s1, Oo)])
    seq(x[4], lg(0), "s_barrier")
    stamp(a, 'B1b', prof)
    seq(rdm(s2, o1), x[5], rdm(s0, o2))
    x = QQ(Oo, s1) + KK(Oo, s1)
    seq(x[0], rdm(s3, o3), x[1], f"s_add_u32 {S(sTmp)}, {S(sS)}, 2", f"s_cmp_lt_u32 {S(sTmp)}, {S(sReady)}",
        x[2], f"s_cbranch_scc0 {P}_rd")
    a(f"{P}_rd_ok:")
    tail += [f"{P}_rd:"] + ready_wait(f"{P}_rd", f"{P}_rd_ok", X)
    seq(f"buffer_store_dword {V(vPub)}, {V(vM2st)}, {S(sSRD,4)}, {S(sClr if cfg.get('nomg') else sMG)} offen {'' if cfg.get('nomg') else 'sc1'}".replace(V(vPub), V(vB0) if cfg.get('nomg') else V(vPub)), f"v_lshlrev_b32 {V(vWarm)}, 2, {V(vL16)}", x[3], lg(2), kxr[3])
    x = QQ(o1, s2) + QQ(o2, s0) + QQ(o3, s3)
    seq(x[0], f"buffer_load_dword {V(vWarm)}, {V(vWarm)}, {S(sSRD,4)}, {S(sWarm)} offen {ldw}", kxr[4], x[1], lg(3), kxr[5],
        x[2], kxr[6], x[3], lg(4), kxr[7], x[4], stO[12], x[5], stO[13])
    qe = padd(accQ) + padd(accQ + 4) + [cvt(accQ+2, accQ, accQ+4), cvt(accQ+3, accQ+1, accQ+5),
          f"ds_write2_b32 {V(vQKw)}, {V(accQ+2)}, {V(accQ+3)} offset0:0 offset1:{QB}"]
    ke = padd(accK) + padd(accK + 4) + [cvt(kvm, accK, accK+4), cvt(kvm+1, accK+1, accK+5),
          f"ds_write2_b32 {V(vQKw)}, {V(kvm)}, {V(kvm+1)} offset0:{QC} offset1:{QC+QB}"]
    k6 = KK(o1, s2) + KK(o2, s0) + KK(o3, s3)
    vq = VV(o1, s2) + VV(o3, s3) + VV(Oo, s1) + VV(o2, s0) + VV(e1, s2) + VV(e2, s3)
    seq(k6[0], stO[14], k6[1], stO[15], qe[0], k6[2], qe[1], k6[3], qe[2], k6[4], qe[3], k6[5], qe[4])
    seq(vq[0], qe[5], vq[1], qe[6], rdm(s2, e1), ke[0:6], vq[2], ke[6])
    seq(vq[3], rdm(s3, e2), vq[4], vq[5], vq[6], lg(1), "s_barrier")
    stamp(a, 'B2', prof)
    rq = [f"ds_read_b128 {V(qf+4*kk,4)}, {V(vQKr)} offset:{64*kk}" for kk in range(4)]
    seq(rq[0], vq[7], rq[1], rq[2], vq[8], rq[3], vq[9], lg(4), vq[10], lg(3))
    def SX(kk, tj):
        d = sx1 if tj == 0 else sx2
        c = "0" if kk == 0 else V(d, 4)
        return f"v_mfma_f32_16x16x32_bf16 {V(d,4)}, {V(kxf+16*tj+4*kk,4)}, {V(qf+4*kk,4)}, {c}"
    def SM(kk):
        c = "0" if kk == 0 else V(sm, 4)
        return f"v_mfma_f32_16x16x32_bf16 {V(sm,4)}, {V(qf+4*kk,4)}, {V(qf+4*kk,4)}, {c}"
    ve = padd(accV) + padd(accV + 4) + [cvt(kvm+2, accV, accV+1), cvt(kvm+3, accV+4, accV+5)]
    m0_, m1_ = sm + 2, sm + 3
    seq(SM(0), kxl[0], SX(0, 0), kxl[1], SX(0, 1), lg(2), vq[11], stO[4])
    seq(SM(1), stO[8], f"v_mov_b64 {V(ones,2)}, {S(sOne,2)}", f"v_mov_b64 {V(ones+2,2)}, {S(sOne,2)}", SX(1, 0), stO[0], SX(1, 1), lg(4), ve[0], ve[1])
    seq(SM(2), stO[5], ve[2], ve[3], SX(2, 0), stO[9], ve[4], ve[5], SX(2, 1), lg(5))
    seq(SM(3), stO[1], SX(3, 0), stO[6], SX(3, 1), stO[10], stO[2])
    a(f"v_max_f32 {V(tmp)}, {V(m0_)}, {V(m1_)}")
    seq(stO[7], stO[11])
    a(f"v_max3_f32 {V(tmp)}, {V(tmp)}, {V(sx1)}, {V(sx1+1)}")
    a(f"v_max3_f32 {V(tmp)}, {V(tmp)}, {V(sx1+2)}, {V(sx1+3)}")
    stamp(a, 'Sdone', prof)
    a(f"v_max3_f32 {V(tmp+2)}, {V(tmp)}, {V(sx2)}, {V(sx2+1)}")
    a(f"v_max3_f32 {V(tmp)}, {V(tmp+2)}, {V(sx2+2)}, {V(sx2+3)}")
    a(f"v_max3_f32 {V(tmp+1)}, {V(tmp+2)}, {V(sx2+2)}, {V(sx2+3)}")
    z = zero(accV, 8) + zero(oacc + 4, 4) + zero(sm, 4) + zero(sx2, 4) + zero(sx1, 4) + zero(pf, 4) + zero(oacc, 4)
    seq(z[0], z[1])
    a(f"v_permlane16_swap_b32 {V(tmp)}, {V(tmp+1)}")
    a(f"v_max_f32 {V(tmp+2)}, {V(tmp)}, {V(tmp+1)}")
    a(f"v_max_f32 {V(tmp+3)}, {V(tmp)}, {V(tmp+1)}")
    seq(z[2], z[3])
    a(f"v_permlane32_swap_b32 {V(tmp+2)}, {V(tmp+3)}")
    a(f"v_max_f32 {V(tmp)}, {V(tmp+2)}, {V(tmp+3)}")
    a(f"v_fma_f32 {V(tmp)}, {V(tmp)}, {S(sC)}, {V(vBias)}")
    for r in (m0_, sx1, sx1+2, sx2, sx2+2):
        a(f"v_pk_fma_f32 {V(r,2)}, {V(r,2)}, {S(sC,2)}, {V(tmp,2)} op_sel_hi:[1,1,0] neg_lo:[0,0,1] neg_hi:[0,0,1]")
    def ex(r): return f"v_exp_f32 {V(r)}, {V(r)}"
    def swp(d, r): return f"v_mov_b32_dpp {V(d)}, {V(r)} quad_perm:[2,3,0,1] row_mask:0xf bank_mask:0xf"
    p1f = sx1
    seq(ex(m0_), ex(m1_), ex(sx1), cvt(vB0, m0_, m1_), ex(sx1+1), ex(sx1+2), swp(vB0+1, vB0), ex(sx1+3), cvt(pf, sx1, sx1+1))
    seq(f"v_mfma_f32_16x16x16_bf16 {V(lacc,4)}, {V(ones,2)}, {V(vB0,2)}, 0", stO[3], ex(sx2), cvt(pf+1, sx1+2, sx1+3))
    seq(f"v_mfma_f32_16x16x16_bf16 {V(oacc,4)}, {V(kvm+2,2)}, {V(vB0,2)}, 0", vm(5), ex(sx2+1), ex(sx2+2), ex(sx2+3), cvt(pf+2, sx2, sx2+1), cvt(pf+3, sx2+2, sx2+3))
    stamp(a, 'smx', prof)
    seq(swp(p1f, pf), swp(p1f+1, pf+1))
    seq(f"v_mfma_f32_16x16x32_bf16 {V(lacc,4)}, {V(ones,4)}, {V(pf,4)}, {V(lacc,4)}", swp(p1f+2, pf+2), swp(p1f+3, pf+3))
    seq(f"v_mfma_f32_16x16x32_bf16 {V(oacc,4)}, {V(vVx,4)}, {V(pf,4)}, {V(oacc,4)}", z[4], z[5])
    seq(f"v_mfma_f32_16x16x32_bf16 {V(oacc,4)}, {V(vVx+4,4)}, {V(p1f,4)}, {V(oacc,4)}")
    seq(f"v_rcp_f32_dpp {V(tmp)}, {V(lacc)} quad_perm:[0,1,0,1] row_mask:0xf bank_mask:0xf", z[6:12])
    a(f"v_pk_mul_f32 {V(oacc,2)}, {V(oacc,2)}, {V(tmp,2)} op_sel_hi:[1,0]")
    a(f"v_pk_mul_f32 {V(oacc+2,2)}, {V(oacc+2,2)}, {V(tmp,2)} op_sel_hi:[1,0]")
    seq(cvt(tmp+2, oacc, oacc+1), cvt(tmp+3, oacc+2, oacc+3))
    a(f"ds_write_b64 {V(vL16)}, {V(tmp+2,2)} offset:{L_O + (w//2)*1024 + (w%2)*8}")
    kvs = 0 if cfg.get('samekv') else 32*8192
    sal = [f"s_add_u32 {S(sKX)}, {S(sKX)}, {kvs}",
           f"s_add_u32 {S(sVX)}, {S(sVX)}, {kvs}",
           f"s_add_u32 {S(sS)}, {S(sS)}, 1",
           f"s_add_u32 {S(sM2r)}, {S(sM2r)}, 8192",
           f"s_and_b32 {S(sM2r)}, {S(sM2r)}, {~0x8000 & 0xffffffff:#x}",
           f"s_add_u32 {S(sWarm)}, {S(sWarm)}, {kvs}",
           f"s_add_u32 {S(sMG)}, {S(sMG)}, 8192",
           f"s_xor_b32 {S(sClr)}, {S(sM2w)}, 16384"]
    if cfg.get('tl'): a("s_memtime s[24:25]" if cfg.get('tlo') else "s_memrealtime s[24:25]")
    seq(z[12:], sal, lg(0))
    if cfg.get('tl'):
        seq(f"s_max_u32 m0, {S(sS)}, {cfg.get('tlo', 0)}", f"s_sub_u32 m0, m0, {cfg.get('tlo', 0)}", f"s_lshr_b32 m0, m0, {cfg['tl']-1}", "s_min_u32 m0, m0, 15", "s_nop 0", "s_movreld_b32 s72, s24", f"s_mov_b32 m0, {L_KX + w*2048}")
    if prof:
        a(f"s_cmp_eq_u32 {S(sS)}, {cfg.get('snap', 41)}")
        a(f"s_cbranch_scc0 {P}_nd")
        for i in range(NST):
            a(f"s_mov_b32 {S(72 + i)}, {S(sT + 2*i)}")
        a(f"{P}_nd:")
    a("s_barrier")
    stamp(a, 'B4', prof)
    a(f"ds_read_b128 {V(of,4)}, {V(vL16)} offset:{L_O}")
    a(f"ds_read_b128 {V(of+4,4)}, {V(vL16)} offset:{L_O + 1024}")
    wacc = [accQ + 4 * i for i in range(6)] + [oacc, oacc + 4]
    ms = [smf_s(wacc[T], of + 4 * ko, oblk(T, ko)) for T in range(8) for ko in range(2)]
    def ad(T): return padd(wacc[T])
    def pk(tt):
        r0, r1, r2, r3 = wacc[4*tt:4*tt+4]
        return [cvt(r0, r0, r1), f"v_bfi_b32 {V(r0)}, 1, {S(sTag)}, {V(r0)}", cvt(r0+1, r0+1, r1+1), cvt(r0+2, r2, r3), cvt(r0+3, r2+1, r3+1),
                f"buffer_store_dwordx4 {V(r0,4)}, {V(vP1st)}, {S(sSRD,4)}, {S(sP1st if tt == 0 else sP1st2)} offen {st}"]
    p0, p1 = pk(0), pk(1)
    seq(lg(1), ms[0], ms[2], lg(0), ms[1], ms[3], ms[4], ad(0)[0], ms[5], ad(1)[0], ms[6], ad(0)[1], ms[7], ad(1)[1])
    seq(ms[8], p0[0], ad(2)[0], ms[9], ad(2)[1], ad(3), p0[1:5], ms[10], p0[5])
    stamp(a, 'st0', prof)
    seq(ms[11], ad(4)[0], ms[12], ad(4)[1], ms[13], ad(5)[0], ms[14], ad(5)[1], ms[15], p1[0:3], ad(6), ad(7), p1[3:5])
    fillers = stQ + zero(accQ, 24) + [f"s_xor_b32 {S(sP1st)}, {S(sP1st)}, 262144", f"s_xor_b32 {S(sP1st2)}, {S(sP1st2)}, 262144"]
    early = w < 2
    cuts = list(cfg.get('e', [0, 10, 18, 32, 32]) if early else cfg.get('l', [16, 24, 32, 32, 32]))
    pads = list(cfg.get('pe', [8, 0, 4, 4, 4]) if early else cfg.get('pl', [14, 0, 0, 0, 4]))
    def pad(n): return ["s_nop 3"] * n
    pA, pB = poll_ops(56, 8, sP1ld), poll_ops(vVx, 8, sP1ld)
    d1 = cfg.get('d1')
    if d1 is None:
        seq(p1[5])
        stamp(a, 'st1', prof)
        seq(fillers[:cuts[0]], pad(pads[0]), pA)
        nA = 2
    elif early:
        seq(pad(d1[0]), pA, p1[5])
        stamp(a, 'st1', prof)
        seq(fillers[:cuts[0]])
        nA = 3
    else:
        seq(pad(d1[1]), p1[5])
        stamp(a, 'st1', prof)
        seq(fillers[:cuts[0]], pad(pads[0]), pA)
        nA = 2
    seq(fillers[cuts[0]:cuts[1]], pad(pads[1]), pB, fillers[cuts[1]:cuts[2]])
    stamp(a, 'p1beg', prof)
    def red(r): return [f"v_mfma_f32_16x16x32_bf16 {V(48,4)}, {V(vSel,4)}, {V(r,4)}, 0",
                        f"v_mfma_f32_16x16x32_bf16 {V(48,4)}, {V(vSel,4)}, {V(r+4,4)}, {V(48,4)}"]
    def tck(r): return [f"v_and_b32 {V(vWarm)}, 1, {V(r)}", f"v_and_b32 {V(vB0)}, 1, {V(r+4)}",
                        f"v_add_u32 {V(vWarm)}, {V(vWarm)}, {V(vB0)}", f"v_cmp_ne_u32 vcc, {S(sTag2)}, {V(vWarm)}"]
    seq(vm(nA + 1), red(56)[0], vm(nA), red(56)[1])
    stamp(a, 'p1A', prof)
    seq(tck(56))
    a(f"s_cbranch_vccnz {P}_p1")
    a(f"{P}_p1_ok:")
    tail += [f"{P}_p1:"] + pA + [vm(2)] + red(vVx) + tck(vVx) + [f"s_cbranch_vccz {P}_p1_ok"]
    tail += [f"{P}_p1l:"] + spin(f"{P}_p1_to") + slp + pB + [vm(2)] + red(56) + tck(56) + [f"s_cbranch_vccz {P}_p1_ok"]
    tail += slp + pA + [vm(2)] + red(vVx) + tck(vVx) + [f"s_cbranch_vccnz {P}_p1l", f"s_branch {P}_p1_ok"]
    tail += [f"{P}_p1_to:", f"s_mov_b32 {S(sSpin)}, 0", f"s_branch {P}_p1_ok"]
    stamp(a, 'p1ok', prof)
    fin = [f"v_add_f32_dpp {V(48)}, {V(48)}, {V(48)} row_ror:4 row_mask:0xf bank_mask:0xf",
           f"v_add_f32_dpp {V(49)}, {V(49)}, {V(49)} row_ror:4 row_mask:0xf bank_mask:0xf",
           f"v_add_f32_dpp {V(48)}, {V(48)}, {V(48)} row_ror:8 row_mask:0xf bank_mask:0xf",
           f"v_add_f32_dpp {V(49)}, {V(49)}, {V(49)} row_ror:8 row_mask:0xf bank_mask:0xf",
           cvt(vPub, 48, 49)]
    seq(f"s_cmp_eq_u32 {S(sS)}, 63", f"s_cbranch_scc1 {P}_fin")
    if not early: seq(peA)
    seq(fin)
    a(f"buffer_store_dword {V(vPub)}, {V(vM2st)}, {S(sSRD,4)}, {S(sM2w)} offen {st}")
    stamp(a, 'st2', prof)
    post = [f"s_add_u32 {S(sM2w)}, {S(sM2w)}, 8192", f"s_and_b32 {S(sM2w)}, {S(sM2w)}, {~0x8000 & 0xffffffff:#x}",
            f"s_xor_b32 {S(sP1ld)}, {S(sP1ld)}, 262144", f"s_and_b32 {S(sTag2)}, {S(sS)}, 2", f"s_lshr_b32 {S(sTag)}, {S(sTag2)}, 1"]
    seq(fillers[cuts[2]:cuts[3]], post, pad(pads[2]))
    if early: seq(peA)
    seq(fillers[cuts[3]:cuts[4]], pad(pads[3]), peB, fillers[cuts[4]:], pad(pads[4]), peC)
    a(f"s_branch {P}_top")
    if cfg.get('cnt'):
        t2 = []; k = 0
        for x in tail:
            t2.append(x)
            if x.startswith('buffer_load') and 'offset:1024' not in x or (x.startswith('buffer_load') and t2[-2].endswith('_po:')):
                t2.append(f"s_add_u32 s{72+k}, s{72+k}, 1"); k += 1
        tail = t2
    seq(tail)
    a(f"{P}_fin:")
    seq(fin)
    a(f"buffer_store_dword {V(vPub)}, {V(vM2st)}, {S(sSRD,4)}, {S(sMG)} offen sc1")

def rec_setup_consts(a, w):
    t0, t1, t2 = 16, 17, 18
    a(f"v_and_b32 {V(t0)}, 15, v0")
    a(f"v_lshrrev_b32 {V(t1)}, 4, v0")
    a(f"v_lshlrev_b32 {V(vL16)}, 4, v0")
    a(f"v_add_u32 {V(vWl)}, {L_W + w*WREG}, {V(vL16)}")
    a(f"v_and_b32 {V(t2)}, 2, {V(t0)}")
    a(f"v_mov_b32 {V(vIdx)}, 0x4444")
    a(f"v_mov_b32 {V(vWarm)}, 0xeeee")
    a(f"v_cmp_eq_u32 vcc, 2, {V(t2)}")
    a(f"v_cndmask_b32 {V(vIdx)}, {V(vIdx)}, {V(vWarm)}, vcc")
    a(f"v_mov_b32 {V(vBias)}, 0")
    a(f"v_mov_b32 {V(vWarm)}, 0x7f800000")
    a(f"v_cndmask_b32 {V(vBias)}, {V(vBias)}, {V(vWarm)}, vcc")
    a(f"v_mul_u32_u24 {V(vQKw)}, {4*QA}, {V(t1)}")
    a(f"v_lshl_add_u32 {V(vQKw)}, {V(t0)}, 2, {V(vQKw)}")
    a(f"v_add_u32 {V(vQKw)}, {L_Q + 64*w}, {V(vQKw)}")
    a(f"v_lshrrev_b32 {V(t2)}, 2, {V(t0)}")
    a(f"v_mul_u32_u24 {V(vQKr)}, {4*QA}, {V(t2)}")
    a(f"v_and_b32 {V(t2)}, 1, {V(t0)}")
    a(f"v_mul_u32_u24 {V(t2)}, {4*QB}, {V(t2)}")
    a(f"v_add_u32 {V(vQKr)}, {V(vQKr)}, {V(t2)}")
    a(f"v_bfe_u32 {V(t2)}, {V(t0)}, 1, 1")
    a(f"v_mul_u32_u24 {V(t2)}, {4*QC}, {V(t2)}")
    a(f"v_add_u32 {V(vQKr)}, {V(vQKr)}, {V(t2)}")
    a(f"v_lshl_add_u32 {V(vQKr)}, {V(t1)}, 4, {V(vQKr)}")
    a(f"v_add_u32 {V(vQKr)}, {L_Q}, {V(vQKr)}")
    a(f"v_lshlrev_b32 {V(vP1st)}, 14, {V(t1)}")
    a(f"v_lshrrev_b32 {V(t2)}, 3, {V(t0)}")
    a(f"v_lshl_add_u32 {V(vP1st)}, {V(t2)}, 13, {V(vP1st)}")
    a(f"v_bfe_u32 {V(t2)}, {V(t0)}, 2, 1")
    a(f"v_lshl_add_u32 {V(vP1st)}, {V(t2)}, 11, {V(vP1st)}")
    a(f"v_and_b32 {V(t2)}, 3, {V(t0)}")
    a(f"v_lshl_add_u32 {V(vP1st)}, {V(t2)}, 4, {V(vP1st)}")
    a(f"v_lshlrev_b32 {V(vM2st)}, 4, {V(t1)}")
    a(f"v_lshl_add_u32 {V(vM2st)}, {V(t0)}, 2, {V(vM2st)}")
    a(f"v_mov_b32 {V(vWarm)}, 0x40000000")
    a(f"v_cmp_gt_u32 vcc, 4, {V(t0)}")
    a(f"v_cndmask_b32 {V(vM2st)}, {V(vWarm)}, {V(vM2st)}, vcc")
    for r in range(4):
        a(f"v_mov_b32 {V(vSel+r)}, 0")
        a(f"v_mov_b32 {V(vWarm)}, 0x3f80")
        a(f"v_cmp_eq_u32 vcc, {4*r}, {V(t0)}")
        a(f"v_cndmask_b32 {V(vSel+r)}, {V(vSel+r)}, {V(vWarm)}, vcc")
        a(f"v_mov_b32 {V(vWarm)}, 1.0")
        a(f"v_cmp_eq_u32 vcc, {4*r+1}, {V(t0)}")
        a(f"v_cndmask_b32 {V(vSel+r)}, {V(vSel+r)}, {V(vWarm)}, vcc")
    a(f"s_mov_b32 {S(sS)}, 0")
    a(f"s_mov_b32 {S(sM2r)}, {M2B + w*2048}")
    a(f"s_lshl_b32 {S(sTmp)}, {S(sH)}, 13")
    a(f"s_add_u32 {S(sKX)}, {S(sTmp)}, {KXB + w*2048}")
    a(f"s_add_u32 {S(sVX)}, {S(sTmp)}, {VXB + w*2048}")
    a(f"s_add_u32 {S(sWarm)}, {S(sTmp)}, {(KXB if w < 2 else VXB) + (w%2)*4096 + (2 if w < 2 else 1)*32*8192}")
    a(f"s_add_u32 {S(sP1ld)}, {S(sTmp)}, {P1B + w*2048}")
    a(f"s_lshr_b32 {S(sTmp)}, {S(sH)}, 4")
    a(f"s_lshl_b32 {S(sP1st)}, {S(sTmp)}, 10")
    a(f"s_and_b32 {S(sTmp)}, {S(sH)}, 3")
    a(f"s_lshl_b32 {S(sTmp)}, {S(sTmp)}, 8")
    a(f"s_add_u32 {S(sP1st)}, {S(sP1st)}, {S(sTmp)}")
    a(f"s_and_b32 {S(sTmp)}, {S(sH)}, 12")
    a(f"s_lshl_b32 {S(sTmp)}, {S(sTmp)}, 4")
    a(f"s_add_u32 {S(sP1st)}, {S(sP1st)}, {S(sTmp)}")
    a(f"s_add_u32 {S(sP1st)}, {S(sP1st)}, {P1B + 8*w*8192}")
    a(f"s_add_u32 {S(sP1st2)}, {S(sP1st)}, 4096")
    a(f"s_lshr_b32 {S(sTmp)}, {S(sH)}, 3")
    a(f"s_lshl_b32 {S(sM2w)}, {S(sTmp)}, 11")
    a(f"s_and_b32 {S(sTmp)}, {S(sH)}, 6")
    a(f"s_lshl_b32 {S(sTmp)}, {S(sTmp)}, 5")
    a(f"s_add_u32 {S(sM2w)}, {S(sM2w)}, {S(sTmp)}")
    a(f"s_and_b32 {S(sTmp)}, {S(sH)}, 1")
    a(f"s_lshl_b32 {S(sTmp)}, {S(sTmp)}, 9")
    a(f"s_add_u32 {S(sM2w)}, {S(sM2w)}, {S(sTmp)}")
    a(f"s_add_u32 {S(sM2w)}, {S(sM2w)}, {M2B + 1024*(w//2) + 256*(w%2)}")
    a(f"s_mov_b32 {S(sSpin)}, {SPIN_MAX}")
    a(f"s_mov_b32 {S(sTag)}, 0")
    a(f"s_mov_b32 {S(sTag2)}, 0")
    a(f"s_add_u32 {S(sClr)}, {S(sM2w)}, 16384")
    a(f"s_sub_u32 {S(sMG)}, {S(sM2w)}, {M2B - MGB}")
    a(f"s_mov_b32 {S(sReady)}, 0")
    import struct
    c = struct.unpack('<I', struct.pack('<f', 128 ** -0.5 * math.log2(math.e)))[0]
    a(f"s_mov_b32 {S(sC)}, {c:#x}")
    a(f"s_mov_b32 {S(sC+1)}, {c:#x}")
    a(f"s_mov_b32 {S(sOne)}, 0x3f803f80")
    a(f"s_mov_b32 {S(sOne+1)}, 0x3f803f80")


def rec_load_weights(a, w, sArg, lane, mid, late, cfg):
    sq, sk, sv, so = 32, 36, 40, 44
    a(f"s_load_dwordx2 {S(sq,2)}, {S(sArg,2)}, 16")
    a(f"s_load_dwordx2 {S(sk,2)}, {S(sArg,2)}, 24")
    a(f"s_load_dwordx2 {S(sv,2)}, {S(sArg,2)}, 32")
    a(f"s_load_dwordx2 {S(so,2)}, {S(sArg,2)}, 40")
    for r in (sq, sk, sv, so):
        a(f"s_mov_b32 {S(r+2)}, {4 << 20}")
        a(f"s_mov_b32 {S(r+3)}, 0x20000")
    va, vb, ra, rb, t0, t1 = 16, 17, 18, 19, 21, 22
    base = L_W + w * WREG
    a(f"v_lshrrev_b32 {V(va)}, 2, {V(lane)}")
    a(f"v_lshlrev_b32 {V(va)}, 13, {V(va)}")
    a(f"v_and_b32 {V(t0)}, 3, {V(lane)}")
    a(f"v_lshl_add_u32 {V(va)}, {V(t0)}, 4, {V(va)}")
    a(f"v_lshrrev_b32 {V(vb)}, 3, {V(lane)}")
    a(f"v_lshlrev_b32 {V(vb)}, 10, {V(vb)}")
    a(f"v_and_b32 {V(t1)}, 7, {V(lane)}")
    a(f"v_lshl_add_u32 {V(vb)}, {V(t1)}, 4, {V(vb)}")
    a(f"v_lshlrev_b32 {V(ra)}, 3, {V(t0)}")
    a(f"v_add_u32 {V(ra)}, {base}, {V(ra)}")
    a(f"v_mov_b32 {V(rb)}, {V(ra)}")
    a(f"v_bfe_u32 {V(t1)}, {V(lane)}, 2, 2")
    a(f"v_lshl_add_u32 {V(ra)}, {V(t1)}, 10, {V(ra)}")
    a(f"v_lshrrev_b32 {V(t1)}, 4, {V(lane)}")
    a(f"v_lshl_add_u32 {V(ra)}, {V(t1)}, 7, {V(ra)}")
    for bit, sh in ((4, 12), (3, 11), (5, 9), (2, 7)):
        a(f"v_bfe_u32 {V(t1)}, {V(lane)}, {bit}, 1")
        a(f"v_lshl_add_u32 {V(rb)}, {V(t1)}, {sh}, {V(rb)}")
    s1, s2 = 48, 49
    a(f"s_lshl_b32 {S(s1)}, {S(sH)}, 8")
    a(f"s_add_u32 {S(s1)}, {S(s1)}, {64*w}")
    if cfg.get('rot', 0):
        a(f"s_and_b32 {S(sTmp)}, {S(sH)}, 12")
        a(f"s_lshl_b32 {S(s2)}, {S(sTmp)}, 18")
        a(f"s_add_u32 {S(s1)}, {S(s1)}, {S(s2)}")
        a(f"s_lshl_b32 {S(s2)}, {S(sTmp)}, 9")
        a(f"s_xor_b32 {S(sM2r)}, {S(sM2r)}, {S(s2)}")
    a(f"s_lshl_b32 {S(s2)}, {S(sH)}, 17")
    a(f"s_add_u32 {S(s2)}, {S(s2)}, {256*w}")
    a("s_waitcnt lgkmcnt(0)")
    order = korder(w)
    def slot_off(u): return (u % 4) * 4096 + (9 * 2048 if (u // 4) % 2 else 0)
    def sub(blk, p2):
        k, b = blk[0], int(blk[2:].split(':')[0])
        return R(k, b + 2 * p2, 2)
    qd = lambda ks, t: qblk(w, ks, t)
    mid_units = []
    for i in range(8):
        mid_units += [('m', sk, i, kblk), ('m', sv, i, vblk)]
        if i % 2 == 1: mid_units.append(('m', sq, order[4 + i // 2], qd))
    units = [('o', 0, q) for q in range(4)] + mid_units + [('m', sq, ks, qd) for ks in order[:4]] + [('o', 1, q) for q in range(4)]
    assert len(units) == 32
    def dma(u):
        x = units[u]
        for j in range(4):
            a(f"s_mov_b32 m0, {base + slot_off(u) + j*1024}")
            if x[0] == 'm':
                a(f"s_xor_b32 {S(sTmp)}, {S(s1)}, {(64*x[2] + 16*j) * 8192}")
                a(f"buffer_load_dwordx4 {V(va)}, {S(x[1],4)}, {S(sTmp)} offen lds")
            else:
                a(f"s_add_u32 {S(sTmp)}, {S(s2)}, {(4*x[2] + j)*8192 + x[1]*128}")
                a(f"buffer_load_dwordx4 {V(vb)}, {S(so,4)}, {S(sTmp)} offen lds")
    def rd(u):
        x = units[u]
        if x[0] == 'm':
            for t in range(2):
                for p2 in range(4):
                    a(f"ds_read_b64_tr_b16 {sub(x[3](x[2], t), p2)}, {V(ra)} offset:{slot_off(u) + (8*(p2//2) + p2%2)*64 + t*32}")
        elif x[2] % 2 == 1:
            ko = x[2] // 2
            for tp in range(4):
                for p2 in range(4):
                    a(f"ds_read_b64_tr_b16 {sub(oblk(4*x[1]+tp, ko), p2)}, {V(rb)} offset:{slot_off(u-1) + (8*(p2//2) + 2*(p2%2))*128 + tp*32}")
    def wb(slot0, x0, n):
        for i in range(n):
            for hf in range(2):
                a(f"ds_write_b128 {V(vWl)}, {V(X + 8*(x0+i) + 4*hf, 4)} offset:{(slot0+i)*2048 + hf*1024}")
    log = []
    def issue(u): dma(u); log.extend([u] * 4)
    def younger(u): return len(log) - 1 - max(i for i, x in enumerate(log) if x == u)
    for u in range(8): issue(u)
    for u in range(32):
        x = units[u]
        if x[0] == 'o' and x[2] % 2 == 0: continue
        a(f"s_waitcnt vmcnt({younger(u) if u < 31 else 0})")
        if PSTART[0] and u % 4 == 3: a(f"s_memrealtime {S(72+2*(u//4),2)}")
        if u == 26:
            a(f"s_waitcnt vmcnt({younger('m')})")
            late()
        rd(u)
        a("s_waitcnt lgkmcnt(0)")
        if x[0] == 'm' and x[1] == sq and x[2] == order[4]: wb(8, 8, 1)
        if 24 <= u < 28: wb(2 * (u - 24), 2 * (u - 24), 2)
        if u == 27: a("s_waitcnt lgkmcnt(0)")
        if u == 31: wb(9, 0, 8); a("s_waitcnt lgkmcnt(0)")
        if u == 18: mid(); log.extend(['m'] * 3)
        for v in ([u - 1, u] if x[0] == 'o' else [u]):
            if v + 8 < 32: issue(v + 8)

def rec_m0_loads(a, w, sMem, lane):
    a(f"v_and_b32 v21, 3, {V(lane)}")
    a(f"v_lshrrev_b32 v22, 4, {V(lane)}")
    a("v_and_b32 v23, 1, v22")
    a("v_lshlrev_b32 v23, 10, v23")
    a("v_lshrrev_b32 v22, 1, v22")
    a("v_lshl_add_u32 v23, v22, 6, v23")
    a("v_lshl_add_u32 v23, v21, 1, v23")
    a(f"s_and_b32 {S(sTmp)}, {S(sH)}, 6")
    a(f"s_lshl_b32 {S(sTmp)}, {S(sTmp)}, 10")
    a(f"s_lshr_b32 s100, {S(sH)}, 3")
    a(f"s_lshl_b32 s100, s100, 8")
    a(f"s_add_u32 {S(sTmp)}, {S(sTmp)}, s100")
    a(f"s_and_b32 s100, {S(sH)}, 1")
    a(f"s_lshl_b32 s100, s100, 4")
    a(f"s_add_u32 {S(sTmp)}, {S(sTmp)}, s100")
    a(f"s_add_u32 {S(sTmp)}, {S(sTmp)}, {128*(w//2) + 8*(w%2)}")
    a(f"v_add_u32 v23, {S(sTmp)}, v23")
    a(f"global_load_ushort v24, v23, {S(sMem,2)}")
    a(f"global_load_ushort v25, v23, {S(sMem,2)} offset:32")

def rec_role(a, sArg, sDbg, sW, sXcc, end, prof=0, cfg={}):
    L = a.newlabel("RR")
    sMem, sMode = 50, 97
    if prof: a("s_memrealtime s[90:91]")
    PSTART[0] = prof == 1 and not cfg.get('tl') and not cfg.get('cnt')
    if cfg.get('cnt'):
        for i in range(16): a(f's_mov_b32 s{72+i}, 0')
    a(f"s_load_dwordx2 {S(sMem,2)}, {S(sArg,2)}, 8")
    a(f"s_lshl_b32 {S(sFlag)}, {S(sH)}, 7")
    a(f"s_add_u32 {S(sFlag)}, {S(sFlag)}, {F_KV}")
    for w in range(1, 4):
        a(f"s_cmp_eq_u32 {S(sW)}, {w}")
        a(f"s_cbranch_scc1 {L}_w{w}")
    for w in range(4):
        a(f"{L}_w{w}:")
        a("v_mov_b32 v20, v0")
        rec_setup_consts(a, w)
        def mid():
            rec_m0_loads(a, w, sMem, 20)
            a(f"v_mov_b32 v22, {4*D_REC}")
            a(f"global_load_dwordx2 v[26:27], v22, {S(sDbg,2)} sc1")
        def late():
            a(f"{L}_c{w}:")
            a(f"v_readfirstlane_b32 {S(sMode)}, v26")
            a(f"v_readfirstlane_b32 s101, v27")
            a(f"s_and_b32 s100, {S(sMode)}, 0xffff")
            a(f"s_lshl_b32 s101, s101, 2")
            a(f"s_min_u32 s100, s100, s101")
            a(f"s_cmp_ge_u32 s100, 32")
            a(f"s_cbranch_scc1 {L}_d{w}")
            a(f"global_load_dwordx2 v[26:27], v22, {S(sDbg,2)} sc1")
            a(f"s_sub_u32 {S(sSpin)}, {S(sSpin)}, 1")
            a(f"s_cbranch_scc1 {end}")
            a("s_waitcnt vmcnt(0)")
            a(f"s_branch {L}_c{w}")
            a(f"{L}_d{w}:")
            a(f"v_lshl_or_b32 {V(vPub)}, v25, 16, v24")
            a(f"buffer_store_dword {V(vPub)}, {V(vM2st)}, {S(sSRD,4)}, {S(sM2w)} offen sc1")
            a(f"buffer_load_dwordx4 {V(28,4)}, off, {S(sSRD,4)}, {S(sFlag)} sc1")
            a(f"s_add_u32 {S(sM2w)}, {S(sM2w)}, 8192")
        rec_load_weights(a, w, sArg, 20, mid, late, cfg)
        for x in ready_calc(28): a(x)
        a(f"s_cmp_gt_u32 {S(sMode)}, 0xffff")
        a(f"s_cbranch_scc1 {L}_s{w}")
        if prof:
            a("s_memtime s[68:69]\ns_memrealtime s[92:93]\ns_waitcnt lgkmcnt(0)")
        rec_loop(a, w, '', prof > 1, cfg=cfg)
        if prof:
            a("s_memtime s[70:71]\ns_memrealtime s[94:95]\ns_waitcnt lgkmcnt(0)")
            if cfg.get('dbg'):
                a("s_mov_b64 exec, 1\ns_not_b32 s21, s92")
                for off, r in ((36, 92), (40, 94), (60, 21)):
                    a(f"v_mov_b32 v1, {off}\nv_mov_b32 v2, s{r}\nglobal_atomic_umax v1, v2, {S(sDbg,2)}")
                a("s_mov_b64 exec, -1")
            a("s_sub_u32 s88, s70, s68\ns_sub_u32 s89, s94, s92\ns_sub_u32 s90, s92, s90")
            a(f"s_mov_b32 s91, {S(sSpin)}")
            a(f"s_lshl_b32 s63, {S(sH)}, 9")
            a(f"s_add_u32 s63, s63, {PROFB + w*128}")
            a("v_mov_b32 v1, 0")
            a("s_mov_b32 s93, s68")
            if PSTART[0]: a("s_getreg_b32 s73, hwreg(HW_REG_HW_ID)")
            for i in range(22):
                a(f"v_mov_b32 v2, {S(72+i)}")
                a(f"buffer_store_dword v2, v1, {S(sSRD,4)}, s63 offen offset:{4*i}")
        a(f"s_branch {end}")
        a(f"{L}_s{w}:")
        rec_loop(a, w, 'sc1', False, cfg=cfg)
        a(f"s_branch {end}")
```

```python
from asm import *
from layout import *
import proj, roles, rec
import sys, json
NAME = "gated_mix__memory_aug_recurrent_mem_tr__softmax_full_mha__prompt"
PROF = int(sys.argv[2]) if len(sys.argv) > 2 else 0
CFG = json.loads(sys.argv[3]) if len(sys.argv) > 3 else {}
hdr = open(f"cdna_kernels/{NAME}.s.ref").read().split("; Override launch")[0]
KN = NAME + "_kernel"
a = Asm()
a.raw(hdr.rstrip())
if CFG.get('list'): a.raw(f"; @launch kernel={KN} grid=(256,1,1) block=(256,1,1) lds=163840")
else: a.raw("; @launch grid=(256,1,1) block=(256,1,1) lds=163840")
a.raw('.amdgcn_target "amdgcn-amd-amdhsa--gfx950"\n.text')
a.raw(f".globl {KN}\n.p2align 8\n.type {KN},@function")
a(f"{KN}:")
a("s_cmp_ge_u32 s2, 256")
a("s_cbranch_scc1 L_end")
a("s_load_dwordx4 s[64:67], s[0:1], 96")
a("s_load_dwordx8 s[16:23], s[0:1], 16")
a("s_load_dwordx2 s[24:25], s[0:1], 0")
a("s_load_dwordx2 s[26:27], s[0:1], 64")
if PROF: a("s_memrealtime s[80:81]")
a("v_lshrrev_b32 v1, 6, v0")
a("v_readfirstlane_b32 s62, v1")
a("v_and_b32 v0, 63, v0")
a("s_getreg_b32 s63, hwreg(HW_REG_XCC_ID)")
a("s_and_b32 s63, s63, 7")
a("s_waitcnt lgkmcnt(0)")
a(f"s_mov_b32 s4, s66\ns_mov_b32 s5, s67\ns_mov_b32 s6, {WS_BYTES}\ns_mov_b32 s7, 0x20000")
def claim():
    a("s_lshl_b32 s61, s60, 2")
    a("s_cmp_eq_u32 s60, 0")
    a("s_cselect_b32 s61, 128, s61")
    a("v_mov_b32 v1, s61")
    a("global_atomic_add v3, v1, v2, s[64:65] sc0")
a("s_cmp_eq_u32 s62, 0")
a("s_cbranch_scc1 L_w0")
a("s_barrier")
if CFG.get('gpf', 1):
    a("s_cmp_eq_u32 s63, 0")
    a("s_cbranch_scc1 L_tk")
    a("s_lshr_b32 s56, s2, 3\ns_mul_i32 s56, s56, 7\ns_add_u32 s56, s56, s63\ns_mul_i32 s56, s56, 3\ns_add_u32 s56, s56, s62\ns_sub_u32 s56, s56, 4")
    a("s_mul_i32 s57, s56, 49\nv_min_u32 v1, 48, v0\nv_add_u32 v1, s57, v1\nv_lshlrev_b32 v1, 7, v1")
    a("s_mul_i32 s57, s56, 25\nv_min_u32 v2, 24, v0\nv_add_u32 v2, s57, v2\nv_lshlrev_b32 v2, 7, v2")
    for n, (r, sz, v) in enumerate([[(18, 4 << 20, 1), (20, 4 << 20, 1), (16, 4 << 20, 1), (24, 2 << 20, 2), (22, 4 << 20, 1), (26, 512 * 3072, 2)][i] for i in CFG.get('gl', [4])]):
        b = 32 + 4 * n
        a(f"s_mov_b32 s{b}, s{r}\ns_mov_b32 s{b+1}, s{r+1}\ns_mov_b32 s{b+2}, {sz}\ns_mov_b32 s{b+3}, 0x20000")
        a(f"buffer_load_dword v{240+n}, v{v}, s[{b}:{b+3}], 0 offen")
a("s_branch L_tk")
a("L_w0:")
a("s_mov_b32 s60, s63")
a("s_mov_b64 exec, 1")
a("v_mov_b32 v2, 1")
claim()
a("s_barrier")
a("s_branch L_try1")
a("L_try:")
a("v_mov_b32 v2, 0x10001")
claim()
a("L_try1:")
a("s_waitcnt vmcnt(0)")
a("v_readfirstlane_b32 s61, v3")
a("s_and_b32 s61, s61, 0xffff")
a("s_cmp_lt_u32 s61, 32")
a("s_cbranch_scc1 L_got")
a("s_add_u32 s60, s60, 1")
a("s_and_b32 s60, s60, 7")
a("s_cmp_lg_u32 s60, s63")
a("s_cbranch_scc1 L_try")
a("s_mov_b32 s60, 8")
a("L_got:")
a("s_lshl_b32 s60, s60, 5")
a("s_add_u32 s60, s60, s61")
a("v_mov_b32 v3, s60")
a("v_mov_b32 v1, 0")
a("ds_write_b32 v1, v3")
a("s_mov_b64 exec, -1")
a("s_waitcnt lgkmcnt(0)")
a("L_tk:")
a("s_barrier")
a("v_mov_b32 v1, 0")
a("ds_read_b32 v3, v1")
a("s_waitcnt lgkmcnt(0)")
a("v_readfirstlane_b32 s60, v3")
a("s_barrier")
a("s_cmp_lt_u32 s60, 32")
a("s_cbranch_scc1 L_rec")
a("s_cmp_ge_u32 s60, 256")
a("s_cbranch_scc1 L_end")
a("s_sub_u32 s60, s60, 32")
a(f"s_mov_b32 s70, {CFG.get('wspin', 1 << 20)}")
def wstamp(i):
    if PROF: a(f"s_memrealtime s[{82+2*i}:{83+2*i}]")
def rec_seen(): roles.wait_word(a, 4*D_CLR, lambda r: a(f"s_cmp_ge_u32 s{r}, 8"), 62)
a("s_cmp_ge_u32 s60, 216")
a("s_cbranch_scc0 L_proj")
a("s_sub_u32 s59, s60, 216")
a("s_lshl_b32 s56, s59, 2\ns_add_u32 s56, s56, s62")
a(f"s_mul_i32 s57, s56, {40*1024}\ns_add_u32 s57, s57, {CLRB}")
a(f"s_lshl_b32 s56, s56, 9\ns_add_u32 s56, s56, {FLB}")
a("v_lshlrev_b32 v1, 4, v0\nv_lshlrev_b32 v2, 3, v0\nv_mov_b64 v[4:5], -1\nv_mov_b64 v[6:7], -1\nv_mov_b64 v[8:9], 0")
a("buffer_store_dwordx2 v[8:9], v2, s[4:7], s56 offen sc1")
for i in range(40):
    a(f"buffer_store_dwordx4 v[4:7], v1, s[4:7], s57 offen offset:{(i%4)*1024} sc1")
    if i % 4 == 3: a("s_add_u32 s57, s57, 4096")
a("s_waitcnt vmcnt(0)\ns_barrier\ns_cmp_eq_u32 s62, 0\ns_cbranch_scc0 L_clrd")
a(f"v_mov_b32 v1, {4*D_CLR}\nv_mov_b32 v2, 1\ns_mov_b64 exec, 1\nglobal_atomic_add v1, v2, s[64:65]\ns_mov_b64 exec, -1")
a("L_clrd:")
roles.gate_role(a, 0, 59, 62, 'sc1')
rec_seen()
a("s_branch L_p1done")
a("L_proj:")
a(f"s_lshr_b32 {S(proj.sCB)}, s60, 2\ns_and_b32 {S(proj.sR)}, s60, 3\ns_mov_b32 {S(proj.sW)}, s62")
a("s_cmp_lt_u32 s60, 128\ns_cselect_b32 s58, 1, 0\ns_cmp_eq_u32 s62, 0\ns_cselect_b32 s58, s58, 0")
a(f"s_lshl_b32 s57, {S(proj.sCB)}, 7\ns_lshl_b32 s56, {S(proj.sR)}, 2\ns_add_u32 s57, s57, s56\ns_add_u32 s57, s57, {F_KV}")
def publish(a, cnt_ops):
    L = a.newlabel("PB")
    a("s_cmp_eq_u32 s58, 0")
    a(f"s_cbranch_scc1 {L}")
    for x in cnt_ops: a(x)
    a("v_mov_b32 v123, s56\ns_mov_b64 exec, 1")
    a("buffer_store_dword v123, off, s[4:7], s57 sc1")
    a("s_mov_b64 exec, -1")
    a(f"{L}:")
def hook(a, par, typ):
    if typ == 0:
        publish(a, [f"s_add_u32 s56, {S(proj.sI)}, {par}"])
def pre():
    if PROF: a("s_memrealtime s[92:93]")
    rec_seen()
    if PROF: a("s_memrealtime s[90:91]\ns_memtime s[94:95]")
proj.proj_role(a, 0, CFG.get('pst', 'sc1'), hook, pre)
if PROF: a("s_memtime s[96:97]\ns_waitcnt lgkmcnt(0)\ns_sub_u32 s94, s96, s94")
a("s_barrier")
publish(a, ["s_mov_b32 s56, 16"])
a("L_p1done:")
wstamp(0)
a(f"s_lshl_b32 s56, s60, 2\ns_add_u32 s56, s56, {F_DONE}")
roles.signal_set(a, "s56", 62)
a("s_cmp_ge_u32 s60, 192")
a("s_cbranch_scc1 L_p2done")
a(f"s_mov_b32 s56, {F_DONE + 192*4}")
roles.wait_flags(a, "s56", 32, 1, 62)
wstamp(1)
a("s_mul_i32 s61, s60, 43691\ns_lshr_b32 s61, s61, 18")
a("s_mul_i32 s59, s61, 6\ns_sub_u32 s59, s60, s59")
roles.battn_role(a, 61, 59, 62, 'sc1', 'sc1')
a(f"s_lshl_b32 s56, s60, 2\ns_add_u32 s56, s56, {F_OB}")
roles.signal_set(a, "s56", 62)
a("L_p2done:")
wstamp(2)
a("s_cmp_ge_u32 s60, 128")
a("s_cbranch_scc1 L_t6")
a("s_lshr_b32 s61, s60, 2\ns_and_b32 s59, s60, 3")
a(f"s_lshr_b32 s56, s61, 1\ns_lshl_b32 s56, s56, 2\ns_add_u32 s56, s56, s59\ns_lshl_b32 s56, s56, 2\ns_add_u32 s56, s56, {F_DONE + 128*4}")
roles.wait_flags(a, "s56", 1, 1, 62)
roles.T5FAST[:] = CFG.get('t5f', [63, 32])
roles.t5p_role(a, 61, 59, 62)
a("s_branch L_wend")
a("L_t6:")
a("s_sub_u32 s59, s60, 128\ns_and_b32 s61, s59, 15\ns_lshr_b32 s59, s59, 4")
roles.t6_setup(a, 0, 61, 62)
roles.VW[0] = 30
a(f"s_mov_b32 s56, {F_OB}")
roles.wait_flags(a, "s56", 48, 4, 62, 32)
a("L_t6loop:")
a(f"s_lshl_b32 s56, s59, 7\ns_add_u32 s56, s56, {F_SEG}")
roles.wait_flags(a, "s56", 32, 1, 62, 4)
roles.t6_unit(a, 59, 'sc1')
a("s_add_u32 s59, s59, 6\ns_cmp_lt_u32 s59, 64\ns_cbranch_scc1 L_t6loop")
a("L_wend:")
if PROF:
    wstamp(3)
    a("s_waitcnt lgkmcnt(0)")
    a(f"s_lshl_b32 s20, s60, 5\ns_add_u32 s20, s20, {PROFB + 65536}")
    if CFG.get('dbg'):
        a("s_not_b32 s21, s80\ns_mov_b64 exec, 1")
        for off, r in ((32, 21), (44, 88), (48, 82), (52, 86), (56, 92)):
            a(f"v_mov_b32 v1, {off}\nv_mov_b32 v2, s{r}\nglobal_atomic_umax v1, v2, s[64:65]")
        a("s_mov_b64 exec, -1")
    a("v_mov_b32 v1, 0")
    for i in range(8):
        a(f"v_mov_b32 v2, s{80+2*i}")
        a(f"buffer_store_dword v2, v1, s[4:7], s20 offen offset:{4*i}")
a("s_branch L_end")
a("L_rec:")
a(f"s_mov_b32 {S(rec.sH)}, s60")
rec.rec_role(a, 0, 64, 62, 63, "L_end", PROF, CFG)
a("L_end:")
a("s_endpgm")
a.raw('.section .rodata,"a"')
a.raw(kernel_desc(KN))
out = sys.argv[1] if len(sys.argv) > 1 else f"cdna_kernels/{NAME}.s"
open(out, "w").write(a.finalize(True))
if PROF > 1: json.dump(rec.STNAMES, open("stnames.json", "w"))
```

```python
from asm import *
from layout import *
import struct, math

def f32bits(x): return struct.unpack('<I', struct.pack('<f', x))[0]

XROW = 1040
XBUF = 32 * XROW
sWS = 4
sXS = 8
sWT = 12
sCB, sR, sW, sStr, sWoff, sOut, sOstep, sOp, sOt, sScale, sI, sBuf, sXoff, sTmp, sTmp2, sM, sDb, sOcur = range(16, 34)
vLane, vXr, vXa, vOut, vT0, vT1, vT2, vL16 = range(8)
ACC = [8, 40]
FR = 72
PK = 104
vOc = 120
NFR = 8
AHEAD = 6

def proj_setup(a, sArg):
    L = a.newlabel("PJ")
    a(f"s_load_dwordx2 {S(sXS,2)}, {S(sArg,2)}, 0")
    a(f"s_mov_b32 {S(sXS+2)}, {2048*1024}")
    a(f"s_mov_b32 {S(sXS+3)}, 0x20000")
    a(f"s_mov_b32 {S(sWT+3)}, 0x20000")
    a(f"s_mov_b32 {S(sScale)}, 1.0")
    a(f"s_and_b32 {S(sTmp)}, {S(sW)}, 1")
    a(f"s_lshr_b32 {S(sTmp2)}, {S(sW)}, 1")
    a(f"s_cmp_ge_u32 {S(sCB)}, 48")
    a(f"s_cbranch_scc1 {L}_B")
    a(f"s_mov_b32 {S(sStr)}, 8192")
    a(f"s_mov_b32 {S(sWT+2)}, {512*8192}")
    a(f"s_mov_b32 {S(sOstep)}, {4*32*8192}")
    a(f"s_mov_b32 {S(sOp)}, 512")
    a(f"s_cmp_ge_u32 {S(sCB)}, 32")
    a(f"s_cbranch_scc1 {L}_Q")
    a(f"s_mov_b32 {S(sI)}, {S(sCB)}")
    a(f"s_cmp_eq_u32 {S(sTmp2)}, 0")
    a(f"s_cbranch_scc0 {L}_V")
    a(f"s_load_dwordx2 {S(sWT,2)}, {S(sArg,2)}, 24")
    a(f"s_mov_b32 {S(sOut)}, {KXB}")
    a(f"s_branch {L}_KQ")
    a(f"{L}_Q:")
    a(f"s_load_dwordx2 {S(sWT,2)}, {S(sArg,2)}, 16")
    a(f"s_sub_u32 {S(sI)}, {S(sCB)}, 32")
    a(f"s_lshl_b32 {S(sI)}, {S(sI)}, 1")
    a(f"s_add_u32 {S(sI)}, {S(sI)}, {S(sTmp2)}")
    a(f"s_mov_b32 {S(sOut)}, {QXB}")
    a(f"{L}_KQ:")
    a(f"s_mov_b32 {S(sM)}, 0")
    a(f"s_mov_b32 {S(sOt)}, 1024")
    a(f"s_lshl_b32 {S(sBuf)}, {S(sTmp)}, 11")
    a(f"s_branch {L}_A")
    a(f"{L}_V:")
    a(f"s_load_dwordx2 {S(sWT,2)}, {S(sArg,2)}, 32")
    a(f"s_mov_b32 {S(sOut)}, {VXB}")
    a(f"s_mov_b32 {S(sM)}, 1")
    a(f"s_mov_b32 {S(sOt)}, 2048")
    a(f"s_lshl_b32 {S(sBuf)}, {S(sTmp)}, 12")
    a(f"{L}_A:")
    a(f"s_add_u32 {S(sOut)}, {S(sOut)}, {S(sBuf)}")
    a(f"s_lshl_b32 {S(sBuf)}, {S(sI)}, 13")
    a(f"s_add_u32 {S(sOut)}, {S(sOut)}, {S(sBuf)}")
    a(f"s_lshl_b32 {S(sBuf)}, {S(sR)}, 18")
    a(f"s_add_u32 {S(sOut)}, {S(sOut)}, {S(sBuf)}")
    a(f"s_lshl_b32 {S(sWoff)}, {S(sI)}, 8")
    a(f"s_lshl_b32 {S(sTmp)}, {S(sTmp)}, 7")
    a(f"s_add_u32 {S(sWoff)}, {S(sWoff)}, {S(sTmp)}")
    a(f"s_branch {L}_done")
    a(f"{L}_B:")
    a(f"s_load_dwordx2 {S(sWT,2)}, {S(sArg,2)}, 64")
    a(f"s_mov_b32 {S(sStr)}, 3072")
    a(f"s_mov_b32 {S(sWT+2)}, {512*3072}")
    a(f"s_mov_b32 {S(sOstep)}, 4096")
    a(f"s_mov_b32 {S(sOt)}, {2*65536}")
    a(f"s_sub_u32 {S(sI)}, {S(sCB)}, 48")
    a(f"s_lshl_b32 {S(sI)}, {S(sI)}, 2")
    a(f"s_add_u32 {S(sI)}, {S(sI)}, {S(sW)}")
    a(f"s_lshl_b32 {S(sWoff)}, {S(sI)}, 7")
    a(f"s_lshl_b32 {S(sOut)}, {S(sI)}, 18")
    a(f"s_add_u32 {S(sOut)}, {S(sOut)}, {QBB}")
    a(f"s_lshl_b32 {S(sBuf)}, {S(sR)}, 10")
    a(f"s_add_u32 {S(sOut)}, {S(sOut)}, {S(sBuf)}")
    a(f"s_mov_b32 {S(sM)}, 2")
    a(f"s_mov_b32 {S(sOp)}, 65536")
    a(f"s_cmp_lt_u32 {S(sI)}, 8")
    a(f"s_cselect_b32 {S(sScale)}, {f32bits(0.25 * math.log2(math.e)):#x}, 1.0")
    a(f"s_cmp_lt_u32 {S(sI)}, 16")
    a(f"s_cbranch_scc1 {L}_done")
    a(f"s_mov_b32 {S(sM)}, 3")
    a(f"s_mov_b32 {S(sOp)}, 512")
    a(f"{L}_done:")
    a("s_waitcnt lgkmcnt(0)")

def proj_load_weights(a):
    a(f"v_lshrrev_b32 {V(vT0)}, 3, {V(vLane)}")
    a(f"v_mul_lo_u32 {V(vT0)}, {V(vT0)}, {S(sStr)}")
    a(f"v_and_b32 {V(vT1)}, 7, {V(vLane)}")
    a(f"v_lshl_add_u32 {V(vT0)}, {V(vT1)}, 4, {V(vT0)}")
    a(f"v_add_u32 {V(vT0)}, {S(sWoff)}, {V(vT0)}")
    a(f"s_mul_i32 {S(sBuf)}, {S(sW)}, 40960")
    a(f"v_lshrrev_b32 {V(vT1)}, 5, {V(vLane)}")
    a(f"v_lshlrev_b32 {V(vT1)}, 10, {V(vT1)}")
    a(f"v_bfe_u32 {V(vT2)}, {V(vLane)}, 2, 2")
    a(f"v_lshl_add_u32 {V(vT1)}, {V(vT2)}, 7, {V(vT1)}")
    a(f"v_bfe_u32 {V(vT2)}, {V(vLane)}, 4, 1")
    a(f"v_lshl_add_u32 {V(vT1)}, {V(vT2)}, 5, {V(vT1)}")
    a(f"v_and_b32 {V(vT2)}, 3, {V(vLane)}")
    a(f"v_lshl_add_u32 {V(vT1)}, {V(vT2)}, 3, {V(vT1)}")
    a(f"v_add_u32 {V(vT1)}, {S(sBuf)}, {V(vT1)}")
    a(f"s_lshl_b32 {S(sTmp2)}, {S(sStr)}, 3")
    a(f"s_mov_b32 {S(sTmp)}, 0")
    def dma(qr):
        for j in range(16):
            a(f"s_add_u32 m0, {S(sBuf)}, {(qr % 2) * 16384 + j * 1024}")
            a(f"buffer_load_dwordx4 {V(vT0)}, {S(sWT,4)}, {S(sTmp)} offen lds")
            a(f"s_add_u32 {S(sTmp)}, {S(sTmp)}, {S(sTmp2)}")
    def rd(qr):
        for k8 in range(8):
            kk = qr * 8 + k8
            for T in range(2):
                for hf in range(2):
                    a(f"ds_read_b64_tr_b16 {A((T*32+kk)*4 + 2*hf, 2)}, {V(vT1)} offset:{(qr%2)*16384 + k8*2048 + hf*512 + T*64}")
    a(f"v_lshlrev_b32 {V(vT2)}, 7, {V(vLane)}")
    a(f"s_lshl_b32 {S(sXoff)}, {S(sR)}, 15")
    a(f"s_lshl_b32 {S(sI)}, {S(sW)}, 13")
    a(f"s_add_u32 {S(sXoff)}, {S(sXoff)}, {S(sI)}")
    a(f"buffer_load_dword v246, {V(vT2)}, {S(sXS,4)}, {S(sXoff)} offen")
    a(f"s_add_u32 {S(sXoff)}, {S(sXoff)}, {4*32*1024}")
    a(f"buffer_load_dword v247, {V(vT2)}, {S(sXS,4)}, {S(sXoff)} offen")
    dma(0); dma(1)
    a("s_waitcnt vmcnt(16)"); rd(0); a("s_waitcnt lgkmcnt(0)")
    dma(2)
    a("s_waitcnt vmcnt(16)"); rd(1); a("s_waitcnt lgkmcnt(0)")
    dma(3)
    a("s_waitcnt vmcnt(16)"); rd(2)
    a("s_waitcnt vmcnt(0)"); rd(3); a("s_waitcnt lgkmcnt(0)")

def xdma(buf_sgpr):
    ops = []
    for j in range(8):
        if j % 4 == 0:
            ops.append(f"s_add_u32 {S(sTmp2)}, {S(sXoff)}, {j*1024}")
        ops.append(f"s_add_u32 m0, {S(buf_sgpr)}, {j*XROW - (j%4)*1024}")
        ops.append(f"buffer_load_dwordx4 {V(vL16)}, {S(sXS,4)}, {S(sTmp2)} offen offset:{(j%4)*1024} lds")
    return ops

def proj_main(a, typ, st='', hook=None):
    L = a.newlabel(f"PM{typ}")
    trans = typ in (0, 2)
    def mf(acc, T, kk, fr, first):
        wreg = A((T*32+kk)*4, 4); x = V(fr, 4)
        d = V(acc + 16*T, 16)
        c = "0" if first else d
        return f"v_mfma_f32_32x32x16_bf16 {d}, {wreg}, {x}, {c}" if trans else f"v_mfma_f32_32x32x16_bf16 {d}, {x}, {wreg}, {c}"
    def epilogue(acc):
        ops = []
        for T in range(2):
            b = acc + 16 * T
            if typ == 2:
                ops += [f"v_mul_f32 {V(b+i)}, {S(sScale)}, {V(b+i)}" for i in range(16)]
            for q in range(2):
                d = PK + 8 * T + 4 * q
                if typ == 0: prs = [(4*q + x, 4*(q+2) + x) for x in range(4)]
                elif typ == 1: prs = [(4*q, 4*q+1), (4*q+2, 4*q+3), (4*q+8, 4*q+9), (4*q+10, 4*q+11)]
                else: prs = [(8*q + 2*x, 8*q + 2*x + 1) for x in range(4)]
                ops += [f"v_cvt_pk_bf16_f32 {V(d+i)}, {V(b+p0)}, {V(b+p1)}" for i, (p0, p1) in enumerate(prs)]
                if (T, q) == (0, 0): ops.append(f"s_mov_b32 {S(sTmp)}, {S(sOut)}")
                elif q == 1: ops.append(f"s_add_u32 {S(sTmp)}, {S(sTmp)}, {S(sOp)}")
                else: ops.append(f"s_add_u32 {S(sTmp)}, {S(sOut)}, {S(sOt)}")
                ops.append(f"buffer_store_dwordx4 {V(d,4)}, {V(vOc)}, {S(sWS,4)}, {S(sTmp)} offen {st}")
        ops.append(f"s_add_u32 {S(sOut)}, {S(sOut)}, {S(sOcur)}")
        ops.append(f"s_mov_b32 {S(sOcur)}, {S(sOstep)}")
        ops.append(f"v_mov_b32 {V(vOc)}, {V(vOut)}")
        return ops
    n16 = {0: 4096, 1: 1024, 2: 256, 3: 65536}[typ]
    hs = {0: 256, 1: 256, 2: 512, 3: 256}[typ]
    a(f"v_bfe_u32 {V(vT0)}, {V(vLane)}, 4, 1")
    a(f"v_mul_u32_u24 {V(vOut)}, {n16}, {V(vT0)}")
    a(f"v_lshrrev_b32 {V(vT0)}, 5, {V(vLane)}")
    a(f"v_mul_u32_u24 {V(vT0)}, {hs}, {V(vT0)}")
    a(f"v_add_u32 {V(vOut)}, {V(vOut)}, {V(vT0)}")
    a(f"v_and_b32 {V(vT0)}, 15, {V(vLane)}")
    a(f"v_lshl_add_u32 {V(vOut)}, {V(vT0)}, 4, {V(vOut)}")
    def rdf(kk): return f"ds_read_b128 {V(FR + 4*(kk % NFR), 4)}, {V(vXa)} offset:{32*(kk % 32)}"
    a(f"v_mov_b32 {V(vOc)}, 0x40000000")
    a(f"s_mov_b32 {S(sOcur)}, 0")
    a("s_waitcnt vmcnt(8)")
    a("s_barrier")
    a(f"v_mov_b32 {V(vXa)}, {V(vXr)}")
    for kk in range(AHEAD): a(rdf(kk))
    a(f"s_mov_b32 {S(sI)}, 0")
    a(f"s_mov_b32 {S(sBuf)}, 0")
    def tile(par):
        acc = ACC[par]
        fill = ["s_nop 0"] * 4 + epilogue(ACC[1 - par]) + [f"s_add_u32 {S(sXoff)}, {S(sXoff)}, {4*32*1024}",
                f"s_add_u32 {S(sDb)}, {S(sDb)}, {XBUF}",
                f"s_cmp_ge_u32 {S(sDb)}, {4*XBUF}",
                f"s_cselect_b32 {S(sTmp)}, {4*XBUF}, 0",
                f"s_sub_u32 {S(sDb)}, {S(sDb)}, {S(sTmp)}"] + xdma(sDb)
        per = 2
        for kk in range(32):
            a(f"s_waitcnt lgkmcnt({AHEAD-1})")
            a(mf(acc, 0, kk, FR + 4*(kk % NFR), kk == 0))
            for _ in range(per):
                if fill: a(fill.pop(0))
            a(mf(acc, 1, kk, FR + 4*(kk % NFR), kk == 0))
            if kk + AHEAD == 32:
                assert not fill
                a(f"s_add_u32 {S(sBuf)}, {S(sBuf)}, {XBUF}")
                a(f"s_cmp_ge_u32 {S(sBuf)}, {4*XBUF}")
                a(f"s_cselect_b32 {S(sBuf)}, 0, {S(sBuf)}")
                a(f"v_add_u32 {V(vXa)}, {S(sBuf)}, {V(vXr)}")
                a(f"s_waitcnt vmcnt({8 if typ < 2 else 12})")
                a("s_barrier")
                if hook: hook(a, par, typ)
            a(rdf(kk + AHEAD))
            for _ in range(per):
                if fill: a(fill.pop(0))
    a(f"{L}_loop:")
    tile(0); tile(1)
    a(f"s_add_u32 {S(sI)}, {S(sI)}, 2")
    a(f"s_cmp_lt_u32 {S(sI)}, 16")
    a(f"s_cbranch_scc1 {L}_loop")
    for x in epilogue(ACC[1]): a(x)
    a("s_waitcnt vmcnt(0) lgkmcnt(0)")

def proj_start(a):
    a(f"v_lshlrev_b32 {V(vL16)}, 4, {V(vLane)}")
    a(f"v_and_b32 {V(vT0)}, 31, {V(vLane)}")
    a(f"v_mul_u32_u24 {V(vXr)}, {XROW}, {V(vT0)}")
    a(f"v_lshrrev_b32 {V(vT0)}, 5, {V(vLane)}")
    a(f"v_lshl_add_u32 {V(vXr)}, {V(vT0)}, 4, {V(vXr)}")
    a(f"s_lshl_b32 {S(sXoff)}, {S(sR)}, 15")
    a(f"s_lshl_b32 {S(sTmp)}, {S(sW)}, 13")
    a(f"s_add_u32 {S(sXoff)}, {S(sXoff)}, {S(sTmp)}")
    a(f"s_mul_i32 {S(sDb)}, {S(sW)}, {8*XROW}")
    a("s_barrier")
    for x in xdma(sDb): a(x)
    a(f"s_add_u32 {S(sXoff)}, {S(sXoff)}, {4*32*1024}")
    a(f"s_add_u32 {S(sDb)}, {S(sDb)}, {XBUF}")
    for x in xdma(sDb): a(x)

def proj_role(a, sArg, st='', hook=None, pre=None):
    L = a.newlabel("PR")
    proj_setup(a, sArg)
    proj_load_weights(a)
    if pre: pre()
    proj_start(a)
    for t in range(1, 4):
        a(f"s_cmp_eq_u32 {S(sM)}, {t}")
        a(f"s_cbranch_scc1 {L}_t{t}")
    for t in range(4):
        a(f"{L}_t{t}:")
        proj_main(a, t, st, hook)
        if t < 3: a(f"s_branch {L}_end")
    a(f"{L}_end:")
```

```python
from asm import *
import math

from layout import *

L_M, L_KX, L_Q, L_O, L_W = 0, 8192, 16384, 22016, 24576
QA, QB, QC = 336, 72, 160
WREG = 17 * 2048

vL16, vIdx, vWl, vQKw, vQKr, vP1st, vM2st, vWarm = range(8)
vSel = 8
vB0, vBias = 12, 14
accQ, accK, accV = 16, 24, 32
vVx = 40
RING = [56, 60, 48, 52]
X = 64
RES = 136
sSRD = 4
sH, sS, sM2r, sKX, sVX, sWarm, sP1st, sP1st2, sP1ld, sM2w, sMG, sSpin, sTmp = range(8, 21)
sReady, sFlag = 96, 98
vPub = 15
sC = 56
sOne = 58
sTag, sTag2, sClr = 21, 60, 61
sPm = 22
DBG_M = False
sT = 24
SPIN_MAX = 1 << 20
NST = 16

NQL = 9
def korder(w):
    ev = [(2 * w + 2 * i) % 8 for i in range(4)]
    return ev + [k + 1 for k in ev]
def qidx(w, ks, t): return korder(w).index(ks) * 2 + t
def qblk(w, ks, t):
    i = qidx(w, ks, t)
    return V(X + 8 * i, 8) if i < NQL else V(RES + 8 * (i - NQL), 8)
def kblk(ks, t): return A(8 * (ks * 2 + t), 8)
def vblk(ks, t): return A(128 + 8 * (ks * 2 + t), 8)
def oblk(T, ko):
    i = T * 2 + ko
    return V(RES + 56 + 8 * i, 8) if i < 8 else V(X + 8 * (i - 8), 8)

def smf_s(acc, areg, b):
    return f"v_smfmac_f32_16x16x64_bf16 {V(acc,4)}, {V(areg,4)}, {b}, {V(vIdx)}"

STN = [0]
STNAMES = []
STSEL = [None]
MC = [None]
PSTART = [0]
def stamp(a, n, prof):
    if prof and (STSEL[0] is None or n in STSEL[0]):
        k = STN[0]; STN[0] += 1
        if len(STNAMES) <= k: STNAMES.append(str(n))
        assert k < NST
        a(f"s_memtime {S(sT + 2*k, 2)}")

def chk_ops(r, n, tmp):
    if n == 8:
        o = [f"v_max3_u32 {V(tmp)}, {V(r)}, {V(r+1)}, {V(r+2)}",
             f"v_max3_u32 {V(tmp+1)}, {V(r+3)}, {V(r+4)}, {V(r+5)}",
             f"v_max3_u32 {V(tmp)}, {V(tmp)}, {V(r+6)}, {V(r+7)}",
             f"v_max_u32 {V(tmp)}, {V(tmp)}, {V(tmp+1)}"]
    else:
        o = [f"v_max3_u32 {V(tmp)}, {V(r)}, {V(r+1)}, {V(r+2)}",
             f"v_max_u32 {V(tmp)}, {V(tmp)}, {V(r+3)}"]
    return o + [f"v_cmp_eq_u32 vcc, -1, {V(tmp)}"]

def poll_ops(r, n, soff, off=0):
    return [f"buffer_load_dwordx4 {V(r+4*i,4)}, {V(vL16)}, {S(sSRD,4)}, {S(soff)} offen offset:{off + 1024*i} sc1" for i in range(n // 4)]

def poll_retry(tail, name, r, n, soff, off, tmp, redo=()):
    tail.append(f"{name}:")
    tail += poll_ops(r, n, soff, off)
    tail.append(f"s_sub_u32 {S(sSpin)}, {S(sSpin)}, 1")
    tail.append(f"s_cbranch_scc1 {name}_to")
    tail.append("s_waitcnt vmcnt(0)")
    tail += list(redo)
    tail += chk_ops(r, n, tmp)
    tail.append(f"s_cbranch_vccnz {name}")
    tail.append(f"s_branch {name}_ok")
    tail.append(f"{name}_to:")
    tail.append(f"s_mov_b32 {S(sSpin)}, 0")
    tail.append("s_waitcnt vmcnt(0)")
    tail += list(redo)
    tail.append(f"s_branch {name}_ok")

def ready_load(r):
    return f"buffer_load_dword {V(r)}, {V(vM2st)}, {S(sSRD,4)}, {S(sFlag)} offen sc1"

def ready_calc(r):
    u = 100
    o = []
    for i in range(4):
        o += [f"v_readlane_b32 {S(u)}, {V(r)}, {i}", f"s_lshl_b32 {S(u)}, {S(u)}, 2", f"s_add_u32 {S(u)}, {S(u)}, {i}"]
        o += [f"s_mov_b32 {S(sReady)}, {S(u)}"] if i == 0 else [f"s_min_u32 {S(sReady)}, {S(sReady)}, {S(u)}"]
    return o + [f"s_cmp_ge_u32 {S(sReady)}, 64", f"s_cselect_b32 {S(sReady)}, 128, {S(sReady)}"]

def ready_wait(name, ok, r):
    o = [ready_load(r),
         f"s_sub_u32 {S(sSpin)}, {S(sSpin)}, 1", f"s_cbranch_scc1 {name}_to",
         "s_waitcnt vmcnt(0)"] + ready_calc(r)
    o += [f"s_cmp_lt_u32 {S(sTmp)}, {S(sReady)}", f"s_cbranch_scc1 {ok}", "s_sleep 8", f"s_branch {name}",
          f"{name}_to:", f"s_mov_b32 {S(sSpin)}, 0", f"s_mov_b32 {S(sReady)}, 128", "s_waitcnt vmcnt(0)", f"s_branch {ok}"]
    return o

def weave(a, main, fill, per=1, start=0):
    fill = list(fill)
    for i, m in enumerate(main):
        a(m)
        if i >= start:
            for _ in range(per):
                if fill: a(fill.pop(0))
    for f in fill: a(f)

def first_warm(w):
    o = [f"v_lshlrev_b32 v30, 1, {V(vL16)}"]
    o += [f"buffer_load_dword {V(vWarm)}, v30, {S(sSRD,4)}, {S(sKX)} offen", f"buffer_load_dword {V(vWarm)}, v30, {S(sSRD,4)}, {S(sVX)} offen",
          f"s_add_u32 {S(sTmp)}, {S(sKX)}, {32*8192}", f"buffer_load_dword {V(vWarm)}, v30, {S(sSRD,4)}, {S(sTmp)} offen"]
    return o

def rec_loop(a, w, st, prof=False, sto='', cfg={}):
    P = f"R{w}{'s' if st else 'f'}"
    STN[0] = 0
    STSEL[0] = cfg.get('stamps')
    if cfg.get('free'):
        a0 = a
        def a(t):
            if t.startswith('s_cbranch_vcc'): return
            import re
            if any(re.search(p, t) for p in cfg.get('drop', [])): return
            if t.startswith('s_waitcnt vmcnt'):
                t = 's_waitcnt lgkmcnt(0)' if 'lgkm' in t else 's_waitcnt vmcnt(40)'
            a0(t)
            if t.endswith('_top:'): MC[0] = 0
            if (t.startswith('v_smf') or t.startswith('v_mfma')) and MC[0] is not None:
                MC[0] += 1
                if MC[0] in cfg.get('mst', []):
                    STSEL[0] = None; stamp(a0, f"m{MC[0]}", prof); STSEL[0] = cfg.get('stamps')
            if t.startswith('s_branch') and t.endswith('_top'): MC[0] = None
    tail = []
    sto = cfg.get('sto', sto); ldk = cfg.get('ldk', 'nt'); ldw = cfg.get('ldw', '')
    Ee, e1, e2, e3, Oo, o1, o2, o3 = korder(w)
    s0, s1, s2, s3 = RING
    def rdm(slot, ks): return f"ds_read_b128 {V(slot,4)}, {V(vL16)} offset:{L_M + ks*1024}"
    def wrm(slot, ks): return f"ds_write_b128 {V(vL16)}, {V(slot,4)} offset:{L_M + ks*1024}"
    def QQ(ks, slot): return [smf_s(accQ, slot, qblk(w, ks, 0)), smf_s(accQ + 4, slot, qblk(w, ks, 1))]
    def KK(ks, slot): return [smf_s(accK, slot, kblk(ks, 0)), smf_s(accK + 4, slot, kblk(ks, 1))]
    def VV(ks, slot): return [smf_s(accV, slot, vblk(ks, 0)), smf_s(accV + 4, slot, vblk(ks, 1))]
    stQ = [f"ds_read_b128 {V(X + 8*i + 4*hf, 4)}, {V(vWl)} offset:{i*2048 + hf*1024}" for i in range(NQL) for hf in range(2)]
    stO = [f"ds_read_b128 {V(X + 8*i + 4*hf, 4)}, {V(vWl)} offset:{(NQL + i)*2048 + hf*1024}" for i in range(8) for hf in range(2)]
    def zero(r, n): return [f"v_mov_b64 {V(r+i,2)}, 0" for i in range(0, n, 2)]
    kxl = [f"buffer_load_dwordx4 {V(vL16)}, {S(sSRD,4)}, {S(sKX)} offen offset:{1024*i} {ldk} lds" for i in range(2)]
    vxl = [f"buffer_load_dwordx4 {V(vVx+4*i,4)}, {V(vL16)}, {S(sSRD,4)}, {S(sVX)} offen offset:{1024*i} {ldk}" for i in range(2)]
    qf, kxf, kmf = X, X + 16, X + 48
    kvm = X + 64
    tmp = X + 68
    sx1, sx2, sm, pf = accQ, accQ + 4, accK, accK + 4
    oacc, of = 48, 56
    ones, lacc = 56, 60
    def padd(r): return [f"v_add_f32 {V(r)}, {V(r)}, {V(r+2)}", f"v_add_f32 {V(r+1)}, {V(r+1)}, {V(r+3)}"]
    def cvt(d, x, y): return f"v_cvt_pk_bf16_f32 {V(d)}, {V(x)}, {V(y)}"
    def lg(n): return f"s_waitcnt lgkmcnt({n})"
    def vm(n): return f"s_waitcnt vmcnt({n})"
    def seq(*xs):
        for x in xs:
            if isinstance(x, (list, tuple)):
                for y in x: a(y)
            else: a(x)
    spin = lambda to: [f"s_sub_u32 {S(sSpin)}, {S(sSpin)}, 1", f"s_cbranch_scc1 {to}"]
    peA, peB, po = poll_ops(s0, 4, sM2r), poll_ops(s3, 4, sM2r), poll_ops(s1, 4, sM2r, 1024)

    a(f"s_mov_b32 {S(sTmp)}, 1")
    a(f"s_cmp_lt_u32 {S(sTmp)}, {S(sReady)}")
    a(f"s_cbranch_scc1 {P}_r0_ok")
    a(f"{P}_r0:")
    seq(ready_wait(f"{P}_r0", f"{P}_r0_w", vWarm))
    a(f"{P}_r0_w:")
    seq(first_warm(w))
    a(f"{P}_r0_ok:")
    a(f"s_mov_b32 m0, {L_KX + w*2048}")
    seq(kxl, stQ, zero(accQ, 24))
    a(f"s_add_u32 {S(sKX)}, {S(sKX)}, {32*8192}")
    peC = poll_ops(s1, 4, sM2r)
    seq(peA, peB, peC, vm(2))
    a(f"{P}_top:")
    a(f"s_waitcnt vmcnt({2 if (w < 2 or ' a' in cfg.get('l', ' a')) else 3}) lgkmcnt(0)")
    stamp(a, 'peA', prof)
    ck = chk_ops(s0, 4, vWarm)
    seq(wrm(s0, Ee), ck)
    a(f"s_cbranch_vccnz {P}_pe")
    a(f"{P}_pe_go:")
    stamp(a, 'peok', prof)
    x = QQ(Ee, s0) + KK(Ee, s0)
    seq(x[0], po, x[1], x[2], x[3])
    cb, cc = chk_ops(s3, 4, vWarm), chk_ops(s1, 4, vWarm)
    def mv(r): return [f"v_mov_b64 {V(s0,2)}, {V(r,2)}", f"v_mov_b64 {V(s0+2,2)}, {V(r+2,2)}"]
    slp = [cfg.get('slp', "s_sleep 1")]
    tail += [f"{P}_pe:"] + peA + [vm(2), wrm(s3, Ee)] + cb + [f"s_cbranch_vccz {P}_peb"]
    tail += slp + peB + [vm(2), wrm(s1, Ee)] + cc + [f"s_cbranch_vccz {P}_pec"]
    tail += spin(f"{P}_pe_to") + slp + peC + [vm(2), wrm(s0, Ee)] + ck + [f"s_cbranch_vccz {P}_pe_go"] + slp + [f"s_branch {P}_pe"]
    tail += [f"{P}_peb:"] + mv(s3) + [f"s_branch {P}_pe_go"]
    tail += [f"{P}_pec:"] + mv(s1) + [f"s_branch {P}_pe_go"]
    tail += [f"{P}_pe_to:", f"s_mov_b32 {S(sSpin)}, 0", f"s_branch {P}_pe_go"]
    seq(lg(0), "s_barrier")
    stamp(a, 'B1a', prof)
    kxr = [f"ds_read_b128 {V(kxf+16*tj+4*kk,4)}, {V(vL16)} offset:{L_KX + (tj*4+kk)*1024}" for tj in range(2) for kk in range(4)]
    x = VV(Ee, s0)
    seq(rdm(s2, e1), x[0], x[1], vm(1), rdm(s0, e2), rdm(s3, e3), lg(2))
    x = QQ(e1, s2) + KK(e1, s2)
    seq(x[0], x[1], kxr[0], x[2], kxr[1], x[3], lg(3), f"v_mov_b32 {V(vB0)}, -1")
    x = QQ(e2, s0) + KK(e2, s0)
    seq(x[0], kxr[2], x[1], x[2], x[3], vm(0))
    stamp(a, 'pook', prof)
    ck = chk_ops(s1, 4, vWarm)
    x = QQ(e3, s3) + KK(e3, s3) + VV(e3, s3)
    nv3 = cfg.get('nv3', 2)
    seq(wrm(s1, Oo), lg(4), x[0], vxl[0], ck[0], x[1], vxl[1], ck[1], x[2],
        f"buffer_store_dword {V(vB0)}, {V(vM2st)}, {S(sSRD,4)}, {S(sClr)} offen {st}", ck[2], x[3])
    a(f"s_cbranch_vccnz {P}_po")
    a(f"{P}_po_ok:")
    poll_retry(tail, f"{P}_po", s1, 4, sM2r, 1024, vWarm, redo=[wrm(s1, Oo)])
    seq(x[4], lg(0), "s_barrier")
    stamp(a, 'B1b', prof)
    seq(rdm(s2, o1), x[5], rdm(s0, o2))
    x = QQ(Oo, s1) + KK(Oo, s1)
    seq(x[0], rdm(s3, o3), x[1], f"s_add_u32 {S(sTmp)}, {S(sS)}, 2", f"s_cmp_lt_u32 {S(sTmp)}, {S(sReady)}",
        x[2], f"s_cbranch_scc0 {P}_rd")
    a(f"{P}_rd_ok:")
    tail += [f"{P}_rd:"] + ready_wait(f"{P}_rd", f"{P}_rd_ok", vWarm)
    seq(f"buffer_store_dword {V(vPub)}, {V(vM2st)}, {S(sSRD,4)}, {S(sClr if cfg.get('nomg') else sMG)} offen {'' if cfg.get('nomg') else 'sc1'}".replace(V(vPub), V(vB0) if cfg.get('nomg') else V(vPub)), f"v_lshlrev_b32 {V(vWarm)}, 2, {V(vL16)}", x[3], lg(2), kxr[3])
    x = QQ(o1, s2) + QQ(o2, s0) + QQ(o3, s3)
    seq(x[0], f"buffer_load_dword {V(vWarm)}, {V(vWarm)}, {S(sSRD,4)}, {S(sWarm)} offen {ldw}", kxr[4], x[1], lg(3), kxr[5],
        x[2], ready_load(vWarm), kxr[6], x[3], lg(4), kxr[7], x[4], stO[12], x[5], stO[13])
    qe = padd(accQ) + padd(accQ + 4) + [cvt(accQ+2, accQ, accQ+4), cvt(accQ+3, accQ+1, accQ+5),
          f"ds_write2_b32 {V(vQKw)}, {V(accQ+2)}, {V(accQ+3)} offset0:0 offset1:{QB}"]
    ke = padd(accK) + padd(accK + 4) + [cvt(kvm, accK, accK+4), cvt(kvm+1, accK+1, accK+5),
          f"ds_write2_b32 {V(vQKw)}, {V(kvm)}, {V(kvm+1)} offset0:{QC} offset1:{QC+QB}"]
    k6 = KK(o1, s2) + KK(o2, s0) + KK(o3, s3)
    vq = VV(o1, s2) + VV(o3, s3) + VV(Oo, s1) + VV(o2, s0) + VV(e1, s2) + VV(e2, s3)
    seq(k6[0], stO[14], k6[1], stO[15], qe[0], k6[2], qe[1], k6[3], qe[2], k6[4], qe[3], k6[5], qe[4])
    seq(vq[0], qe[5], vq[1], qe[6], rdm(s2, e1), ke[0:6], vq[2], ke[6])
    seq(vq[3], rdm(s3, e2), vq[4], vq[5], vq[6], lg(1), "s_barrier")
    stamp(a, 'B2', prof)
    rq = [f"ds_read_b128 {V(qf+4*kk,4)}, {V(vQKr)} offset:{64*kk}" for kk in range(4)]
    seq(rq[0], vq[7], rq[1], rq[2], vq[8], rq[3], vq[9], lg(4), vq[10], lg(3))
    def SX(kk, tj):
        d = sx1 if tj == 0 else sx2
        c = "0" if kk == 0 else V(d, 4)
        return f"v_mfma_f32_16x16x32_bf16 {V(d,4)}, {V(kxf+16*tj+4*kk,4)}, {V(qf+4*kk,4)}, {c}"
    def SM(kk):
        c = "0" if kk == 0 else V(sm, 4)
        return f"v_mfma_f32_16x16x32_bf16 {V(sm,4)}, {V(qf+4*kk,4)}, {V(qf+4*kk,4)}, {c}"
    ve = padd(accV) + padd(accV + 4) + [cvt(kvm+2, accV, accV+1), cvt(kvm+3, accV+4, accV+5)]
    m0_, m1_ = sm + 2, sm + 3
    seq(SM(0), kxl[0], SX(0, 0), kxl[1], SX(0, 1), lg(2), vq[11], stO[4])
    seq(SM(1), stO[8], f"v_mov_b64 {V(ones,2)}, {S(sOne,2)}", f"v_mov_b64 {V(ones+2,2)}, {S(sOne,2)}", SX(1, 0), stO[0], SX(1, 1), lg(4), ve[0], ve[1])
    seq(SM(2), stO[5], ve[2], ve[3], SX(2, 0), stO[9], ve[4], ve[5], SX(2, 1), lg(5))
    seq(SM(3), stO[1], SX(3, 0), stO[6], SX(3, 1), stO[10], stO[2])
    a(f"v_max_f32 {V(tmp)}, {V(m0_)}, {V(m1_)}")
    seq(stO[7], stO[11])
    a(f"v_max3_f32 {V(tmp)}, {V(tmp)}, {V(sx1)}, {V(sx1+1)}")
    a(f"v_max3_f32 {V(tmp)}, {V(tmp)}, {V(sx1+2)}, {V(sx1+3)}")
    stamp(a, 'Sdone', prof)
    a(f"v_max3_f32 {V(tmp+2)}, {V(tmp)}, {V(sx2)}, {V(sx2+1)}")
    a(f"v_max3_f32 {V(tmp)}, {V(tmp+2)}, {V(sx2+2)}, {V(sx2+3)}")
    a(f"v_max3_f32 {V(tmp+1)}, {V(tmp+2)}, {V(sx2+2)}, {V(sx2+3)}")
    z = zero(accV, 8) + zero(oacc + 4, 4) + zero(sm, 4) + zero(sx2, 4) + zero(sx1, 4) + zero(pf, 4) + zero(oacc, 4)
    seq(z[0], z[1])
    a(f"v_permlane16_swap_b32 {V(tmp)}, {V(tmp+1)}")
    a(f"v_max_f32 {V(tmp+2)}, {V(tmp)}, {V(tmp+1)}")
    a(f"v_max_f32 {V(tmp+3)}, {V(tmp)}, {V(tmp+1)}")
    seq(z[2], z[3])
    a(f"v_permlane32_swap_b32 {V(tmp+2)}, {V(tmp+3)}")
    a(f"v_max_f32 {V(tmp)}, {V(tmp+2)}, {V(tmp+3)}")
    a(f"v_fma_f32 {V(tmp)}, {V(tmp)}, {S(sC)}, {V(vBias)}")
    for r in (m0_, sx1, sx1+2, sx2, sx2+2):
        a(f"v_pk_fma_f32 {V(r,2)}, {V(r,2)}, {S(sC,2)}, {V(tmp,2)} op_sel_hi:[1,1,0] neg_lo:[0,0,1] neg_hi:[0,0,1]")
    def ex(r): return f"v_exp_f32 {V(r)}, {V(r)}"
    def swp(d, r): return f"v_mov_b32_dpp {V(d)}, {V(r)} quad_perm:[2,3,0,1] row_mask:0xf bank_mask:0xf"
    p1f = sx1
    seq(ex(m0_), ex(m1_), ex(sx1), cvt(vB0, m0_, m1_), ex(sx1+1), ex(sx1+2), swp(vB0+1, vB0), ex(sx1+3), cvt(pf, sx1, sx1+1))
    seq(f"v_mfma_f32_16x16x16_bf16 {V(lacc,4)}, {V(ones,2)}, {V(vB0,2)}, 0", stO[3], ex(sx2), cvt(pf+1, sx1+2, sx1+3))
    seq(f"v_mfma_f32_16x16x16_bf16 {V(oacc,4)}, {V(kvm+2,2)}, {V(vB0,2)}, 0", vm(6), ex(sx2+1), ex(sx2+2), ex(sx2+3), cvt(pf+2, sx2, sx2+1), cvt(pf+3, sx2+2, sx2+3))
    stamp(a, 'smx', prof)
    seq(swp(p1f, pf), swp(p1f+1, pf+1))
    seq(f"v_mfma_f32_16x16x32_bf16 {V(lacc,4)}, {V(ones,4)}, {V(pf,4)}, {V(lacc,4)}", swp(p1f+2, pf+2), swp(p1f+3, pf+3))
    seq(f"v_mfma_f32_16x16x32_bf16 {V(oacc,4)}, {V(vVx,4)}, {V(pf,4)}, {V(oacc,4)}", z[4], z[5])
    seq(f"v_mfma_f32_16x16x32_bf16 {V(oacc,4)}, {V(vVx+4,4)}, {V(p1f,4)}, {V(oacc,4)}")
    seq(f"v_rcp_f32_dpp {V(tmp)}, {V(lacc)} quad_perm:[0,1,0,1] row_mask:0xf bank_mask:0xf", z[6:12])
    a(f"v_pk_mul_f32 {V(oacc,2)}, {V(oacc,2)}, {V(tmp,2)} op_sel_hi:[1,0]")
    a(f"v_pk_mul_f32 {V(oacc+2,2)}, {V(oacc+2,2)}, {V(tmp,2)} op_sel_hi:[1,0]")
    seq(cvt(tmp+2, oacc, oacc+1), cvt(tmp+3, oacc+2, oacc+3))
    a(f"ds_write_b64 {V(vL16)}, {V(tmp+2,2)} offset:{L_O + (w//2)*1024 + (w%2)*8}")
    kvs = 0 if cfg.get('samekv') else 32*8192
    sal = [f"s_add_u32 {S(sKX)}, {S(sKX)}, {kvs}",
           f"s_add_u32 {S(sVX)}, {S(sVX)}, {kvs}",
           f"s_add_u32 {S(sS)}, {S(sS)}, 1",
           f"s_add_u32 {S(sM2r)}, {S(sM2r)}, 8192",
           f"s_and_b32 {S(sM2r)}, {S(sM2r)}, {~0x8000 & 0xffffffff:#x}",
           f"s_add_u32 {S(sWarm)}, {S(sWarm)}, {kvs}",
           f"s_add_u32 {S(sMG)}, {S(sMG)}, 8192",
           f"s_xor_b32 {S(sClr)}, {S(sM2w)}, 16384"]
    if cfg.get('tl'): a("s_memtime s[24:25]" if (cfg.get('tlo') or w == 1) else "s_memrealtime s[24:25]")
    seq(z[12:], sal, lg(0))
    if cfg.get('tl'):
        seq(f"s_max_u32 m0, {S(sS)}, {cfg.get('tlo', 0)}", f"s_sub_u32 m0, m0, {cfg.get('tlo', 0)}", f"s_lshr_b32 m0, m0, {cfg['tl']-1}", "s_min_u32 m0, m0, 15", "s_nop 0", "s_movreld_b32 s72, s24", f"s_mov_b32 m0, {L_KX + w*2048}")
    if prof:
        a(f"s_cmp_eq_u32 {S(sS)}, {cfg.get('snap', 41)}")
        a(f"s_cbranch_scc0 {P}_nd")
        for i in range(NST):
            a(f"s_mov_b32 {S(72 + i)}, {S(sT + 2*i)}")
        a(f"{P}_nd:")
    a("s_barrier")
    stamp(a, 'B4', prof)
    a(f"ds_read_b128 {V(of,4)}, {V(vL16)} offset:{L_O}")
    a(f"ds_read_b128 {V(of+4,4)}, {V(vL16)} offset:{L_O + 1024}")
    wacc = [accQ + 4 * i for i in range(6)] + [oacc, oacc + 4]
    ms = [smf_s(wacc[T], of + 4 * ko, oblk(T, ko)) for T in range(8) for ko in range(2)]
    def ad(T): return padd(wacc[T])
    def pk(tt):
        r0, r1, r2, r3 = wacc[4*tt:4*tt+4]
        return [cvt(r0, r0, r1), f"v_bfi_b32 {V(r0)}, 1, {S(sTag)}, {V(r0)}", cvt(r0+1, r0+1, r1+1), cvt(r0+2, r2, r3), cvt(r0+3, r2+1, r3+1),
                f"buffer_store_dwordx4 {V(r0,4)}, {V(vP1st)}, {S(sSRD,4)}, {S(sP1st if tt == 0 else sP1st2)} offen {st}"]
    p0, p1 = pk(0), pk(1)
    seq(lg(1), ms[0], ms[2], lg(0), ms[1], ms[3], ms[4], ad(0)[0], ms[5], ad(1)[0], ms[6], ad(0)[1], ms[7], ad(1)[1])
    seq(ms[8], p0[0], ad(2)[0], ms[9], ad(2)[1], ad(3), p0[1:5], ms[10], p0[5])
    stamp(a, 'st0', prof)
    seq(ms[11], ad(4)[0], ms[12], ad(4)[1], ms[13], ad(5)[0], ms[14], ad(5)[1], ms[15], p1[0:3], ad(6), ad(7), p1[3:5])
    early = w < 2
    rds, zs = list(stQ), zero(accQ, 24)
    post = [f"s_xor_b32 {S(sP1st)}, {S(sP1st)}, 262144", f"s_xor_b32 {S(sP1st2)}, {S(sP1st2)}, 262144",
            f"s_add_u32 {S(sM2w)}, {S(sM2w)}, 8192", f"s_and_b32 {S(sM2w)}, {S(sM2w)}, {~0x8000 & 0xffffffff:#x}",
            f"s_xor_b32 {S(sP1ld)}, {S(sP1ld)}, 262144", f"s_and_b32 {S(sTag2)}, {S(sS)}, 2", f"s_lshr_b32 {S(sTag)}, {S(sTag2)}, 1"]
    pA, pB = poll_ops(56, 8, sP1ld), poll_ops(vVx, 8, sP1ld)
    prog = (cfg.get('e', "r6 v1 A r4 l B - z12 p a r4 l b r4 l c") if early else cfg.get('l', "r10 v0 A z12 B r4 - p a r2 l b r2 l c")).split()
    def run(toks):
        for t in toks:
            k, n = t[0], int(t[1:] or 0)
            if k == 'r': seq([rds.pop(0) for _ in range(n)])
            elif k == 'z': seq([zs.pop(0) for _ in range(n)])
            elif k == 'v': seq(vm(n))
            elif k == 'l': seq(lg(n))
            elif k == 'n': seq(["s_nop 3"] * n)
            else: seq({'A': pA, 'B': pB, 'p': post, 'a': peA, 'b': peB, 'c': peC}[k])
    seq(p1[5])
    stamp(a, 'st1', prof)
    nA = 2
    run(prog[:prog.index('-')])
    stamp(a, 'p1beg', prof)
    def red(r): return [f"v_mfma_f32_16x16x32_bf16 {V(48,4)}, {V(vSel,4)}, {V(r,4)}, 0",
                        f"v_mfma_f32_16x16x32_bf16 {V(48,4)}, {V(vSel,4)}, {V(r+4,4)}, {V(48,4)}"]
    def tck(r): return [f"v_and_b32 {V(vB0+1)}, 1, {V(r)}", f"v_and_b32 {V(vB0)}, 1, {V(r+4)}",
                        f"v_add_u32 {V(vB0)}, {V(vB0+1)}, {V(vB0)}", f"v_cmp_ne_u32 vcc, {S(sTag2)}, {V(vB0)}"]
    seq(vm(nA + 1), red(56)[0], vm(nA), red(56)[1])
    stamp(a, 'p1A', prof)
    seq(tck(56))
    a(f"s_cbranch_vccnz {P}_p1")
    a(f"{P}_p1_ok:")
    tail += [f"{P}_p1:"] + pA + [vm(2)] + red(vVx) + tck(vVx) + [f"s_cbranch_vccz {P}_p1_ok"]
    tail += [f"{P}_p1l:"] + spin(f"{P}_p1_to") + slp + pB + [vm(2)] + red(56) + tck(56) + [f"s_cbranch_vccz {P}_p1_ok"]
    tail += slp + pA + [vm(2)] + red(vVx) + tck(vVx) + [f"s_cbranch_vccnz {P}_p1l", f"s_branch {P}_p1_ok"]
    tail += [f"{P}_p1_to:", f"s_mov_b32 {S(sSpin)}, 0", f"s_branch {P}_p1_ok"]
    stamp(a, 'p1ok', prof)
    fin = [f"v_add_f32_dpp {V(48)}, {V(48)}, {V(48)} row_ror:4 row_mask:0xf bank_mask:0xf",
           f"v_add_f32_dpp {V(49)}, {V(49)}, {V(49)} row_ror:4 row_mask:0xf bank_mask:0xf",
           f"v_add_f32_dpp {V(48)}, {V(48)}, {V(48)} row_ror:8 row_mask:0xf bank_mask:0xf",
           f"v_add_f32_dpp {V(49)}, {V(49)}, {V(49)} row_ror:8 row_mask:0xf bank_mask:0xf",
           cvt(vPub, 48, 49)]
    seq(f"s_cmp_eq_u32 {S(sS)}, 63", f"s_cbranch_scc1 {P}_fin")
    if 'a' not in prog: seq(peA)
    seq(fin)
    a(f"buffer_store_dword {V(vPub)}, {V(vM2st)}, {S(sSRD,4)}, {S(sM2w)} offen {st}")
    stamp(a, 'st2', prof)
    run(prog[prog.index('-') + 1:])
    assert not rds and not zs
    seq(f"s_cmp_eq_u32 {S(sReady)}, 128", f"s_cbranch_scc1 {P}_top", ready_calc(vWarm))
    a(f"s_branch {P}_top")
    if cfg.get('cnt'):
        t2 = []; k = 0
        for x in tail:
            t2.append(x)
            if x.startswith('buffer_load') and 'offset:1024' not in x or (x.startswith('buffer_load') and t2[-2].endswith('_po:')):
                t2.append(f"s_add_u32 s{72+k}, s{72+k}, 1"); k += 1
        tail = t2
    seq(tail)
    a(f"{P}_fin:")
    seq(fin)
    a(f"buffer_store_dword {V(vPub)}, {V(vM2st)}, {S(sSRD,4)}, {S(sMG)} offen sc1")

def rec_setup_consts(a, w):
    t0, t1, t2 = 16, 17, 18
    a(f"v_and_b32 {V(t0)}, 15, v0")
    a(f"v_lshrrev_b32 {V(t1)}, 4, v0")
    a(f"v_lshlrev_b32 {V(vL16)}, 4, v0")
    a(f"v_add_u32 {V(vWl)}, {L_W + w*WREG}, {V(vL16)}")
    a(f"v_and_b32 {V(t2)}, 2, {V(t0)}")
    a(f"v_mov_b32 {V(vIdx)}, 0x4444")
    a(f"v_mov_b32 {V(vWarm)}, 0xeeee")
    a(f"v_cmp_eq_u32 vcc, 2, {V(t2)}")
    a(f"v_cndmask_b32 {V(vIdx)}, {V(vIdx)}, {V(vWarm)}, vcc")
    a(f"v_mov_b32 {V(vBias)}, 0")
    a(f"v_mov_b32 {V(vWarm)}, 0x7f800000")
    a(f"v_cndmask_b32 {V(vBias)}, {V(vBias)}, {V(vWarm)}, vcc")
    a(f"v_mul_u32_u24 {V(vQKw)}, {4*QA}, {V(t1)}")
    a(f"v_lshl_add_u32 {V(vQKw)}, {V(t0)}, 2, {V(vQKw)}")
    a(f"v_add_u32 {V(vQKw)}, {L_Q + 64*w}, {V(vQKw)}")
    a(f"v_lshrrev_b32 {V(t2)}, 2, {V(t0)}")
    a(f"v_mul_u32_u24 {V(vQKr)}, {4*QA}, {V(t2)}")
    a(f"v_and_b32 {V(t2)}, 1, {V(t0)}")
    a(f"v_mul_u32_u24 {V(t2)}, {4*QB}, {V(t2)}")
    a(f"v_add_u32 {V(vQKr)}, {V(vQKr)}, {V(t2)}")
    a(f"v_bfe_u32 {V(t2)}, {V(t0)}, 1, 1")
    a(f"v_mul_u32_u24 {V(t2)}, {4*QC}, {V(t2)}")
    a(f"v_add_u32 {V(vQKr)}, {V(vQKr)}, {V(t2)}")
    a(f"v_lshl_add_u32 {V(vQKr)}, {V(t1)}, 4, {V(vQKr)}")
    a(f"v_add_u32 {V(vQKr)}, {L_Q}, {V(vQKr)}")
    a(f"v_lshlrev_b32 {V(vP1st)}, 14, {V(t1)}")
    a(f"v_lshrrev_b32 {V(t2)}, 3, {V(t0)}")
    a(f"v_lshl_add_u32 {V(vP1st)}, {V(t2)}, 13, {V(vP1st)}")
    a(f"v_bfe_u32 {V(t2)}, {V(t0)}, 2, 1")
    a(f"v_lshl_add_u32 {V(vP1st)}, {V(t2)}, 11, {V(vP1st)}")
    a(f"v_and_b32 {V(t2)}, 3, {V(t0)}")
    a(f"v_lshl_add_u32 {V(vP1st)}, {V(t2)}, 4, {V(vP1st)}")
    a(f"v_lshlrev_b32 {V(vM2st)}, 4, {V(t1)}")
    a(f"v_lshl_add_u32 {V(vM2st)}, {V(t0)}, 2, {V(vM2st)}")
    a(f"v_mov_b32 {V(vWarm)}, 0x40000000")
    a(f"v_cmp_gt_u32 vcc, 4, {V(t0)}")
    a(f"v_cndmask_b32 {V(vM2st)}, {V(vWarm)}, {V(vM2st)}, vcc")
    for r in range(4):
        a(f"v_mov_b32 {V(vSel+r)}, 0")
        a(f"v_mov_b32 {V(vWarm)}, 0x3f80")
        a(f"v_cmp_eq_u32 vcc, {4*r}, {V(t0)}")
        a(f"v_cndmask_b32 {V(vSel+r)}, {V(vSel+r)}, {V(vWarm)}, vcc")
        a(f"v_mov_b32 {V(vWarm)}, 1.0")
        a(f"v_cmp_eq_u32 vcc, {4*r+1}, {V(t0)}")
        a(f"v_cndmask_b32 {V(vSel+r)}, {V(vSel+r)}, {V(vWarm)}, vcc")
    a(f"s_mov_b32 {S(sS)}, 0")
    a(f"s_mov_b32 {S(sM2r)}, {M2B + w*2048}")
    a(f"s_lshl_b32 {S(sTmp)}, {S(sH)}, 13")
    a(f"s_add_u32 {S(sKX)}, {S(sTmp)}, {KXB + w*2048}")
    a(f"s_add_u32 {S(sVX)}, {S(sTmp)}, {VXB + w*2048}")
    a(f"s_add_u32 {S(sWarm)}, {S(sTmp)}, {(KXB if w < 2 else VXB) + (w%2)*4096 + (2 if w < 2 else 1)*32*8192}")
    a(f"s_add_u32 {S(sP1ld)}, {S(sTmp)}, {P1B + w*2048}")
    a(f"s_lshr_b32 {S(sTmp)}, {S(sH)}, 4")
    a(f"s_lshl_b32 {S(sP1st)}, {S(sTmp)}, 10")
    a(f"s_and_b32 {S(sTmp)}, {S(sH)}, 3")
    a(f"s_lshl_b32 {S(sTmp)}, {S(sTmp)}, 8")
    a(f"s_add_u32 {S(sP1st)}, {S(sP1st)}, {S(sTmp)}")
    a(f"s_and_b32 {S(sTmp)}, {S(sH)}, 12")
    a(f"s_lshl_b32 {S(sTmp)}, {S(sTmp)}, 4")
    a(f"s_add_u32 {S(sP1st)}, {S(sP1st)}, {S(sTmp)}")
    a(f"s_add_u32 {S(sP1st)}, {S(sP1st)}, {P1B + 8*w*8192}")
    a(f"s_add_u32 {S(sP1st2)}, {S(sP1st)}, 4096")
    a(f"s_lshr_b32 {S(sTmp)}, {S(sH)}, 3")
    a(f"s_lshl_b32 {S(sM2w)}, {S(sTmp)}, 11")
    a(f"s_and_b32 {S(sTmp)}, {S(sH)}, 6")
    a(f"s_lshl_b32 {S(sTmp)}, {S(sTmp)}, 5")
    a(f"s_add_u32 {S(sM2w)}, {S(sM2w)}, {S(sTmp)}")
    a(f"s_and_b32 {S(sTmp)}, {S(sH)}, 1")
    a(f"s_lshl_b32 {S(sTmp)}, {S(sTmp)}, 9")
    a(f"s_add_u32 {S(sM2w)}, {S(sM2w)}, {S(sTmp)}")
    a(f"s_add_u32 {S(sM2w)}, {S(sM2w)}, {M2B + 1024*(w//2) + 256*(w%2)}")
    a(f"s_mov_b32 {S(sSpin)}, {SPIN_MAX}")
    a(f"s_mov_b32 {S(sTag)}, 0")
    a(f"s_mov_b32 {S(sTag2)}, 0")
    a(f"s_add_u32 {S(sClr)}, {S(sM2w)}, 16384")
    a(f"s_sub_u32 {S(sMG)}, {S(sM2w)}, {M2B - MGB}")
    a(f"s_mov_b32 {S(sReady)}, 0")
    import struct
    c = struct.unpack('<I', struct.pack('<f', 128 ** -0.5 * math.log2(math.e)))[0]
    a(f"s_mov_b32 {S(sC)}, {c:#x}")
    a(f"s_mov_b32 {S(sC+1)}, {c:#x}")
    a(f"s_mov_b32 {S(sOne)}, 0x3f803f80")
    a(f"s_mov_b32 {S(sOne+1)}, 0x3f803f80")


def rec_load_weights(a, w, sArg, lane, mid, late, late2, cfg):
    sq, sk, sv, so = 32, 36, 40, 44
    a(f"s_load_dwordx2 {S(sq,2)}, {S(sArg,2)}, 16")
    a(f"s_load_dwordx2 {S(sk,2)}, {S(sArg,2)}, 24")
    a(f"s_load_dwordx2 {S(sv,2)}, {S(sArg,2)}, 32")
    a(f"s_load_dwordx2 {S(so,2)}, {S(sArg,2)}, 40")
    for r in (sq, sk, sv, so):
        a(f"s_mov_b32 {S(r+2)}, {4 << 20}")
        a(f"s_mov_b32 {S(r+3)}, 0x20000")
    va, vb, ra, rb, t0, t1 = 16, 17, 18, 19, 21, 22
    base = L_W + w * WREG
    a(f"v_lshrrev_b32 {V(va)}, 4, {V(lane)}")
    a(f"v_lshlrev_b32 {V(va)}, 13, {V(va)}")
    a(f"v_and_b32 {V(t0)}, 15, {V(lane)}")
    a(f"v_lshl_add_u32 {V(va)}, {V(t0)}, 4, {V(va)}")
    a(f"v_and_b32 {V(t0)}, 3, {V(lane)}")
    a(f"v_lshrrev_b32 {V(vb)}, 3, {V(lane)}")
    a(f"v_lshlrev_b32 {V(vb)}, 10, {V(vb)}")
    a(f"v_and_b32 {V(t1)}, 7, {V(lane)}")
    a(f"v_lshl_add_u32 {V(vb)}, {V(t1)}, 4, {V(vb)}")
    a(f"v_lshlrev_b32 {V(ra)}, 3, {V(t0)}")
    a(f"v_add_u32 {V(rb)}, {base}, {V(ra)}")
    a(f"v_add_u32 {V(ra)}, {L_W + 64*w}, {V(ra)}")
    a(f"v_bfe_u32 {V(t1)}, {V(lane)}, 2, 2")
    a(f"v_mul_u32_u24 {V(t1)}, {WREG}, {V(t1)}")
    a(f"v_add_u32 {V(ra)}, {V(ra)}, {V(t1)}")
    a(f"v_lshrrev_b32 {V(t1)}, 4, {V(lane)}")
    a(f"v_lshl_add_u32 {V(ra)}, {V(t1)}, 9, {V(ra)}")
    for bit, sh in ((4, 12), (3, 11), (5, 9), (2, 7)):
        a(f"v_bfe_u32 {V(t1)}, {V(lane)}, {bit}, 1")
        a(f"v_lshl_add_u32 {V(rb)}, {V(t1)}, {sh}, {V(rb)}")
    s1, s2 = 48, 49
    a(f"s_lshl_b32 {S(s1)}, {S(sH)}, 8")
    a(f"s_lshl_b32 {S(s2)}, {S(sH)}, 17")
    a(f"s_add_u32 {S(s2)}, {S(s2)}, {256*w}")
    a("s_waitcnt lgkmcnt(0)")
    order = korder(w)
    def slot_off(u): return (u % 4) * 4096 + (9 * 2048 if (u // 4) % 2 else 0)
    def sub(blk, p2):
        k, b = blk[0], int(blk[2:].split(':')[0])
        return R(k, b + 2 * p2, 2)
    qd = lambda ks, t: qblk(w, ks, t)
    mid_units = []
    for i in range(8):
        mid_units += [('m', sk, i, kblk), ('m', sv, i, vblk)]
        if i % 2 == 1: mid_units.append(('m', sq, i, qd))
    units = [('o', 0, q) for q in range(4)] + mid_units + [('m', sq, ks, qd) for ks in (0, 2, 4, 6)] + [('o', 1, q) for q in range(4)]
    assert len(units) == 32
    def dma(u):
        x = units[u]
        for j in range(4):
            a(f"s_mov_b32 m0, {base + slot_off(u) + j*1024}")
            if x[0] == 'm':
                a(f"s_add_u32 {S(sTmp)}, {S(s1)}, {(64*x[2] + 16*w + 4*j) * 8192}")
                a(f"buffer_load_dwordx4 {V(va)}, {S(x[1],4)}, {S(sTmp)} offen lds")
            else:
                a(f"s_add_u32 {S(sTmp)}, {S(s2)}, {(4*x[2] + j)*8192 + x[1]*128}")
                a(f"buffer_load_dwordx4 {V(vb)}, {S(so,4)}, {S(sTmp)} offen lds")
    def rd(u):
        x = units[u]
        if x[0] == 'm':
            for t in range(2):
                for p2 in range(4):
                    a(f"ds_read_b64_tr_b16 {sub(x[3](x[2], t), p2)}, {V(ra)} offset:{slot_off(u) + (8*(p2//2) + p2%2)*256 + t*32}")
        elif x[2] % 2 == 1:
            ko = x[2] // 2
            for tp in range(4):
                for p2 in range(4):
                    a(f"ds_read_b64_tr_b16 {sub(oblk(4*x[1]+tp, ko), p2)}, {V(rb)} offset:{slot_off(u-1) + (8*(p2//2) + 2*(p2%2))*128 + tp*32}")
    def wb(slot0, x0, n):
        for i in range(n):
            for hf in range(2):
                a(f"ds_write_b128 {V(vWl)}, {V(X + 8*(x0+i) + 4*hf, 4)} offset:{(slot0+i)*2048 + hf*1024}")
    log = []
    def issue(u): dma(u); log.extend([u] * 4)
    def younger(u): return len(log) - 1 - max(i for i, x in enumerate(log) if x == u)
    if PSTART[0] and cfg.get('ps2'): a('s_memrealtime s[84:85]')
    for u in range(8): issue(u)
    if PSTART[0] and cfg.get('ps2'): a('s_memrealtime s[86:87]')
    pend = []
    for u in range(32):
        x = units[u]
        if x[0] == 'o' and x[2] % 2 == 0: continue
        if u == 29:
            a("s_barrier")
            wb(0, 0, 8); a("s_waitcnt lgkmcnt(0)")
        a(f"s_waitcnt vmcnt({younger(u) if u < 31 else 0})")
        if PSTART[0] and u % 4 == 3 and not (cfg.get('ps2') and u > 23): a(f"s_memrealtime {S(72+2*(u//4),2)}")
        if x[0] == 'm': a("s_barrier")
        if u == 13: mid(); log.extend(['m'] * 3)
        if u == 21:
            a(f"s_waitcnt vmcnt({younger('m')})")
            late(); log.extend(['l'] * 7)
        for v in pend:
            if v + 8 < 32: issue(v + 8)
        pend = []
        if u == 29: late2()
        rd(u)
        a("s_waitcnt lgkmcnt(0)")
        if x[0] == 'm' and x[1] == sq and x[2] == order[4]: wb(8, 8, 1)
        if u == 31: wb(9, 0, 8); a("s_waitcnt lgkmcnt(0)")
        if x[0] == 'o':
            for v in (u - 1, u):
                if v + 8 < 32: issue(v + 8)
        else: pend = [u]

def rec_m0_loads(a, w, sMem, lane):
    a(f"v_and_b32 v21, 3, {V(lane)}")
    a(f"v_lshrrev_b32 v22, 4, {V(lane)}")
    a("v_and_b32 v23, 1, v22")
    a("v_lshlrev_b32 v23, 10, v23")
    a("v_lshrrev_b32 v22, 1, v22")
    a("v_lshl_add_u32 v23, v22, 6, v23")
    a("v_lshl_add_u32 v23, v21, 1, v23")
    a(f"s_and_b32 {S(sTmp)}, {S(sH)}, 6")
    a(f"s_lshl_b32 {S(sTmp)}, {S(sTmp)}, 10")
    a(f"s_lshr_b32 s100, {S(sH)}, 3")
    a(f"s_lshl_b32 s100, s100, 8")
    a(f"s_add_u32 {S(sTmp)}, {S(sTmp)}, s100")
    a(f"s_and_b32 s100, {S(sH)}, 1")
    a(f"s_lshl_b32 s100, s100, 4")
    a(f"s_add_u32 {S(sTmp)}, {S(sTmp)}, s100")
    a(f"s_add_u32 {S(sTmp)}, {S(sTmp)}, {128*(w//2) + 8*(w%2)}")
    a(f"v_add_u32 v23, {S(sTmp)}, v23")
    a(f"global_load_ushort v24, v23, {S(sMem,2)}")
    a(f"global_load_ushort v25, v23, {S(sMem,2)} offset:32")

def rec_role(a, sArg, sDbg, sW, sXcc, end, prof=0, cfg={}):
    L = a.newlabel("RR")
    sMem, sMode = 50, 97
    if prof: a("s_memrealtime s[90:91]")
    PSTART[0] = prof == 1 and not cfg.get('tl') and not cfg.get('cnt')
    if cfg.get('cnt'):
        for i in range(16): a(f's_mov_b32 s{72+i}, 0')
    a(f"s_load_dwordx2 {S(sMem,2)}, {S(sArg,2)}, 8")
    a(f"s_lshl_b32 {S(sFlag)}, {S(sH)}, 7")
    a(f"s_add_u32 {S(sFlag)}, {S(sFlag)}, {F_KV}")
    for w in range(1, 4):
        a(f"s_cmp_eq_u32 {S(sW)}, {w}")
        a(f"s_cbranch_scc1 {L}_w{w}")
    for w in range(4):
        a(f"{L}_w{w}:")
        a("v_mov_b32 v20, v0")
        rec_setup_consts(a, w)
        def mid():
            rec_m0_loads(a, w, sMem, 20)
            a(f"v_mov_b32 v22, {4*D_REC}")
            a(f"global_load_dwordx2 v[26:27], v22, {S(sDbg,2)} sc1")
        def late():
            a(f"{L}_c{w}:")
            a(f"v_readfirstlane_b32 {S(sMode)}, v26")
            a(f"v_readfirstlane_b32 s101, v27")
            a(f"s_and_b32 s100, {S(sMode)}, 0xffff")
            a(f"s_lshl_b32 s101, s101, 2")
            a(f"s_min_u32 s100, s100, s101")
            a(f"s_cmp_ge_u32 s100, 32")
            a(f"s_cbranch_scc1 {L}_d{w}")
            a(f"global_load_dwordx2 v[26:27], v22, {S(sDbg,2)} sc1")
            a(f"s_sub_u32 {S(sSpin)}, {S(sSpin)}, 1")
            a(f"s_cbranch_scc1 {end}")
            a("s_waitcnt vmcnt(0)")
            a(f"s_branch {L}_c{w}")
            a(f"{L}_d{w}:")
            a(f"v_lshl_or_b32 {V(vPub)}, v25, 16, v24")
            a(f"buffer_store_dword {V(vPub)}, {V(vM2st)}, {S(sSRD,4)}, {S(sM2w)} offen sc1")
            a(f"s_add_u32 {S(sM2w)}, {S(sM2w)}, 8192")
            a(f"v_lshlrev_b32 v30, 1, {V(vL16)}")
            for base, offs in ((sP1ld, (0, 262144)), (sM2r, (8192, 16384, 24576))):
                for o_ in offs:
                    a(f"s_add_u32 {S(sTmp)}, {S(base)}, {o_}")
                    a(f"buffer_load_dword v31, v30, {S(sSRD,4)}, {S(sTmp)} offen sc1")
            a(ready_load(28))
        def late2():
            for x in ready_calc(28): a(x)
            a(f"s_cmp_lt_u32 {S(sReady)}, 2")
            a(f"s_cbranch_scc1 {L}_n{w}")
            for x in first_warm(w): a(x)
            a(f"{L}_n{w}:")
        rec_load_weights(a, w, sArg, 20, mid, late, late2, cfg)
        a(f"s_cmp_gt_u32 {S(sMode)}, 0xffff")
        a(f"s_cbranch_scc1 {L}_s{w}")
        if prof:
            a("s_memtime s[68:69]\ns_memrealtime s[92:93]\ns_waitcnt lgkmcnt(0)")
        rec_loop(a, w, '', prof > 1, cfg=cfg)
        if prof:
            a("s_memtime s[70:71]\ns_memrealtime s[94:95]\ns_waitcnt lgkmcnt(0)")
            if cfg.get('dbg'):
                a("s_mov_b64 exec, 1\ns_not_b32 s21, s92")
                for off, r in ((36, 92), (40, 94), (60, 21)):
                    a(f"v_mov_b32 v1, {off}\nv_mov_b32 v2, s{r}\nglobal_atomic_umax v1, v2, {S(sDbg,2)}")
                a("s_mov_b64 exec, -1")
            a("s_sub_u32 s88, s70, s68\ns_sub_u32 s89, s94, s92\ns_sub_u32 s90, s92, s90")
            a(f"s_mov_b32 s91, {S(sSpin)}")
            a(f"s_lshl_b32 s63, {S(sH)}, 9")
            a(f"s_add_u32 s63, s63, {PROFB + w*128}")
            a("v_mov_b32 v1, 0")
            a("s_mov_b32 s93, s68")
            if PSTART[0]: a("s_getreg_b32 s73, hwreg(HW_REG_HW_ID)")
            for i in range(22):
                a(f"v_mov_b32 v2, {S(72+i)}")
                a(f"buffer_store_dword v2, v1, {S(sSRD,4)}, s63 offen offset:{4*i}")
        a(f"s_branch {end}")
        a(f"{L}_s{w}:")
        rec_loop(a, w, 'sc1', False, cfg=cfg)
        a(f"s_branch {end}")
```
